```python
import torch

def _softmax(x, axis=-1):
    return torch.softmax(x, dim=axis)
def _gelu(x):
    return torch.nn.functional.gelu(x, approximate="tanh")
def _silu(x):
    return torch.nn.functional.silu(x)
def _sigmoid(x):
    return torch.sigmoid(x)
def _layernorm(x, axis=-1, eps=1e-5):
    m = x.mean(dim=axis, keepdim=True)
    v = x.var(dim=axis, keepdim=True, unbiased=False)
    return (x - m) / torch.sqrt(v + eps)
def _scatter_add(tgt, idx, src, axis=0):
    return tgt.clone().index_add_(axis, idx, src)
def _segment_sum(src, seg, n):
    out = torch.zeros((n,) + src.shape[1:], dtype=src.dtype)
    return out.index_add_(0, seg, src)
def _pad(x, pw):
    flat = tuple(v for pair in reversed(pw) for v in pair)
    return torch.nn.functional.pad(x, flat)

kernel_name = 'gated_mix__linear_attn_block__mixer_channel_mlp__prompt'

def setup_inputs():

    _w = (lambda a: (lambda t: t.to(torch.bfloat16) if t.is_floating_point() else t)(torch.as_tensor(a)))
    def _A_setup():
        B, S, D = 1, 2048, 576
        return {
            "x": _w((lambda *s: torch.randn(*s, dtype=torch.bfloat16) * 0.05)(B, S, D)),
            "wqkv": _w((lambda *s: torch.randn(*s, dtype=torch.bfloat16) * 0.8)(D, 3 * D)),
            "wo": _w((lambda *s: torch.randn(*s, dtype=torch.bfloat16) * 0.2)(D, D)),
        }
    _A_in = _A_setup()

    def _B_setup():
        B, S, D, F = 1, 2048, 576, 4608
        return {
            "x": _w((lambda *s: torch.randn(*s, dtype=torch.bfloat16) * 0.05)(B, S, D)),
            "w1": _w((lambda *s: torch.randn(*s, dtype=torch.bfloat16) * 1.6)(D, F) * (D ** -0.5)),
            "b1": _w((lambda *s: torch.randn(*s, dtype=torch.bfloat16) * 0.4)(F)),
            "w2": _w((lambda *s: torch.randn(*s, dtype=torch.bfloat16) * 0.05)(F, D) * (F ** -0.5)),
            "b2": _w((lambda *s: torch.randn(*s, dtype=torch.bfloat16) * 0.05)(D)),
        }
    _B_in = _B_setup()

    return {
        "A_x": _A_in["x"],
        "A_wqkv": _A_in["wqkv"],
        "A_wo": _A_in["wo"],
        "B_x": _B_in["x"],
        "B_w1": _B_in["w1"],
        "B_b1": _B_in["b1"],
        "B_w2": _B_in["w2"],
        "B_b2": _B_in["b2"],
        "gate_w": _w((lambda *s: torch.randn(*s, dtype=torch.bfloat16) * 0.05)(576) * 16.0),
    }

def reference(A_x, A_wqkv, A_wo, B_x, B_w1, B_b1, B_w2, B_b2, gate_w):
    def _A_ref(x, wqkv, wo):
        B, S, D = x.shape
        H = 32; Dh = D // H
        qkv = (lambda x, *d: x.permute(*d))((x @ wqkv).reshape(B, S, 3, H, Dh), 2, 0, 3, 1, 4)
        q, k, v = qkv[0], qkv[1], qkv[2]
        phi = lambda t: torch.where(t > 0, t + 1, torch.exp(t)) + 1e-6
        pq, pk = phi(q), phi(k)
        kv = torch.einsum("bhsd,bhse->bhde", pk, v)
        z = torch.einsum("bhsd->bhd", pk)
        num = torch.einsum("bhqd,bhde->bhqe", pq, kv)
        den = torch.einsum("bhqd,bhd->bhq", pq, z)[..., None] + 1e-6
        o = num / den
        return (lambda x, *d: x.permute(*d))(o, 0, 2, 1, 3).reshape(B, S, D) @ wo

    def _B_ref(x, w1, b1, w2, b2):
        y = _layernorm(x, axis=-1)
        h = _gelu(torch.einsum("bsd,df->bsf", y, w1) + b1)
        return torch.einsum("bsf,fd->bsd", h, w2) + b2

    x = A_x
    g = _sigmoid((x * gate_w).sum(-1, keepdims=True))
    a = _A_ref(x, A_wqkv, A_wo)
    b = _B_ref(x, B_w1, B_b1, B_w2, B_b2)
    return g * a + (1 - g) * b
```

```python
class Asm:
    def __init__(self):
        self.lines = []
        self.uid = 0
    def __call__(self, s):
        for l in s.split("\n"):
            l = l.strip()
            if l:
                if l.endswith(":"):
                    self.lines.append(l)
                else:
                    self.lines.append("  " + l)
    def c(self, s):
        self.lines.append("  ; " + s)
    def label(self, base="L"):
        self.uid += 1
        return f"{base}_{self.uid}"
    def text(self):
        return "\n".join(self.lines) + "\n"

def kernel_wrap(name, body, vgpr=256, sgpr=102, accum=256, wgy=False):
    return f"""
.text
.globl {name}
.p2align 8
.type {name},@function
{name}:
{body}
  s_endpgm
.section .rodata,"a"
.p2align 6
.amdhsa_kernel {name}
  .amdhsa_next_free_vgpr {vgpr}
  .amdhsa_next_free_sgpr {sgpr}
  .amdhsa_accum_offset {accum}
  .amdhsa_group_segment_fixed_size 0
  .amdhsa_kernarg_size 96
  .amdhsa_user_sgpr_count 2
  .amdhsa_user_sgpr_kernarg_segment_ptr 1
  .amdhsa_system_sgpr_workgroup_id_x 1
{"  .amdhsa_system_sgpr_workgroup_id_y 1" if wgy else ""}
.end_amdhsa_kernel
"""
def file_wrap(launches, kernels):
    s = ""
    for (name, grid, block, lds) in launches:
        s += f"; @launch kernel={name} grid=({grid[0]},{grid[1]},{grid[2]}) block=({block[0]},{block[1]},{block[2]}) lds={lds}\n"
    s += '.amdgcn_target "amdgcn-amd-amdhsa--gfx950"\n'
    for k in kernels:
        s += k
    return s

KA = dict(A_x=0, A_wqkv=8, A_wo=16, B_x=24, B_w1=32, B_b1=40, B_w2=48, B_b2=56, gate_w=64, out=72, dbg=80, ws=88)
SIZES = dict(A_x=2359296, A_wqkv=576*1728*2, A_wo=576*576*2, B_x=2359296, B_w1=576*4608*2, B_b1=4608*2, B_w2=4608*576*2, B_b2=576*2, gate_w=576*2, out=2359296, dbg=256, ws=268435456)

def load_srd(a, sreg, name, size=None):
    a(f"s_load_dwordx2 s[{sreg}:{sreg+1}], s[0:1], {KA[name]}")
def finish_srd(a, sreg, name, size=None):
    size = SIZES[name] if size is None else size
    a(f"s_mov_b32 s{sreg+2}, {size}")
    a(f"s_mov_b32 s{sreg+3}, 0x00020000")
```

```python
from asmlib import *
from mlp2 import *
import mlp2

WQ_RS = 3456
TS = 272
LDS_T = LDS_H
LDS_KVA = LDS_T + 158 * TS
LDS_O2 = LDS_KVA + 16384
O2S = 304
assert LDS_O2 + 128 * O2S <= LDS_TOTAL
WS_KV = WS_G + 2048 * 4
KVH = 18 * 80
DBG_Z = 16 * 4
DBG_KV = 20 * 4
s_g4 = s_js
s_mask = 56
S_GW = 64

def gen_attn(g):
    a = g.a
    a.c("attention role")
    a(f"v_and_b32 v{v_lane}, 63, v{v_tid}")
    a(f"v_lshrrev_b32 v{V_M}, 6, v{v_tid}")
    a("s_nop 0")
    a(f"v_readfirstlane_b32 s{s_w}, v{V_M}")
    t0, t1, t2, xo = V_T, V_T+1, V_T+2, V_T+3
    v_row, v_cp = V_CS, V_CS + 1
    a(f"v_lshrrev_b32 v{t0}, 3, v{v_lane}")
    a(f"v_and_b32 v{t2}, 7, v{v_lane}")
    a(f"s_lshl_b32 s{s_tmp}, s{s_w}, 3")
    a(f"v_add_u32 v{t0}, s{s_tmp}, v{t0}")
    a(f"v_lshrrev_b32 v{t1}, 1, v{t0}")
    a(f"v_and_b32 v{t1}, 7, v{t1}")
    a(f"v_xor_b32 v{t1}, v{t1}, v{t2}")
    a(f"v_lshlrev_b32 v{t1}, 4, v{t1}")
    a(f"v_mul_u32_u24 v{xo}, {X_RS}, v{t0}")
    a(f"v_add_u32 v{xo}, v{xo}, v{t1}")
    a(f"s_mul_i32 s{s_xso}, s{s_t}, {128*X_RS}")
    a(f"s_lshl_b32 s{s_xw}, s{s_w}, 10")
    vq = Q()
    def x_dma(c):
        slot = c % 6
        a(f"s_add_u32 m0, s{s_xw}, {LDS_H+slot*16384}")
        a(f"s_add_u32 s{s_tmp}, s{s_xso}, {c*128}")
        a(f"buffer_load_dwordx4 v{xo}, {sr(SX,4)}, s{s_tmp} offen lds")
        vq.issue(f"x{c}")
        a(f"s_add_u32 m0, s{s_xw}, {LDS_H+slot*16384+8192}")
        a(f"s_add_u32 s{s_tmp}, s{s_xso}, {c*128+64*X_RS}")
        a(f"buffer_load_dwordx4 v{xo}, {sr(SX,4)}, s{s_tmp} offen lds")
        vq.issue(f"x{c}")
    x_dma(0)
    a(f"v_lshrrev_b32 v{t1}, 4, v{v_lane}")
    a(f"v_and_b32 v{t1}, 1, v{t1}")
    a(f"v_lshlrev_b32 v{t1}, 2, v{t1}")
    a(f"v_xor_b32 v{v_cp}, v{t1}, v{t2}")
    a(f"v_mul_u32_u24 v{v_row}, {WQ_RS}, v{t0}")
    a(f"v_lshlrev_b32 v{t1}, 4, v{v_cp}")
    a(f"v_mul_u32_u24 v{v_doffB}, {W2_RS}, v{t0}")
    a(f"v_add_u32 v{v_doffB}, v{v_doffB}, v{t1}")
    def set_doff(sP):
        m = V_M
        a(f"s_lshl_b32 s{s_tmp}, s{sP}, 6")
        a(f"v_lshlrev_b32 v{m}, 3, v{v_cp}")
        a(f"v_add_u32 v{m}, s{s_tmp}, v{m}")
        a(f"v_mov_b32 v{m+1}, 576")
        a(f"v_mov_b32 v{m+2}, 1008")
        a(f"v_cmp_le_u32 vcc, 144, v{m}")
        a("s_nop 1")
        a(f"v_cndmask_b32 v{m+1}, v{m+1}, v{m+2}, vcc")
        a(f"v_mov_b32 v{m+2}, -288")
        a(f"v_cmp_le_u32 vcc, 288, v{m}")
        a("s_nop 1")
        a(f"v_cndmask_b32 v{m+1}, v{m+1}, v{m+2}, vcc")
        a(f"v_add_u32 v{m}, v{m}, v{m+1}")
        a(f"s_mul_i32 s{s_tmp}, s{s_g4}, 144")
        a(f"v_add_u32 v{m}, s{s_tmp}, v{m}")
        a(f"v_lshlrev_b32 v{m}, 1, v{m}")
        a(f"v_add_u32 v{v_doff}, v{v_row}, v{m}")
    a(f"s_mov_b32 s{s_P}, 0")
    set_doff(s_P)
    a(f"s_add_u32 s{s_wbase}, s{s_xw}, {LDS_RING}")
    a(f"s_mov_b32 s{s_wo}, 0")
    a(f"s_mov_b32 s{s_dstep}, {64*WQ_RS}")
    a(f"s_mov_b32 s{s_dso}, 0")
    g.dma_full(vq, "r0")
    x_dma(1); g.dma_full(vq, "r1")
    a(f"s_cmp_eq_u32 s{s_t}, 0")
    a("s_cbranch_scc0 L_nozero")
    for r in range(4): a(f"v_mov_b32 v{V_HP+r}, 0")
    a(f"v_lshlrev_b32 v{V_M}, 4, v{v_tid}")
    a(f"s_mul_i32 s{s_tmp}, s{s_g4}, {8*KVH}")
    a(f"s_add_u32 s{s_tmp}, s{s_tmp}, {WS_KV}")
    a(f"buffer_store_dwordx4 {vr(V_HP,4)}, v{V_M}, {sr(SW,4)}, s{s_tmp} offen sc0 sc1")
    a(f"v_add_u32 v{V_M}, 8192, v{V_M}")
    a(f"v_cmp_gt_u32 vcc, 11520, v{V_M}")
    a(f"v_mov_b32 v{V_M+1}, {OOB}")
    a("s_nop 0")
    a(f"v_cndmask_b32 v{V_M}, v{V_M+1}, v{V_M}, vcc")
    a(f"buffer_store_dwordx4 {vr(V_HP,4)}, v{V_M}, {sr(SW,4)}, s{s_tmp} offen sc0 sc1")
    a("s_waitcnt vmcnt(0)")
    a("s_barrier")
    a(f"s_cmp_eq_u32 s{s_w}, 0")
    a("s_cbranch_scc0 L_nozero")
    a(f"v_mov_b32 v{V_M}, 1")
    a(f"s_lshl_b32 s{s_tmp}, s{s_g4}, 2")
    a(f"s_add_u32 s{s_tmp}, s{s_tmp}, {DBG_Z}")
    a(f"v_mov_b32 v{V_M+1}, s{s_tmp}")
    a("s_mov_b64 exec, 1")
    a(f"buffer_atomic_add v{V_M}, v{V_M+1}, {sr(SG,4)}, 0 offen sc1")
    a("s_mov_b64 exec, -1")
    a("L_nozero:")
    for c in range(2, 6):
        x_dma(c); g.dma_full(vq, f"r{c}")
    g.dma_full(vq, "r6")
    a(f"s_and_b32 s{s_i}, s{s_w}, 3")
    a(f"s_lshr_b32 s{s_jj}, s{s_w}, 2")
    a(f"v_and_b32 v{t0}, 15, v{v_lane}")
    a(f"v_lshrrev_b32 v{t0}, 2, v{t0}")
    a(f"v_lshrrev_b32 v{t1}, 1, v{t0}")
    a(f"v_xor_b32 v{t1}, s{s_jj}, v{t1}")
    a(f"v_lshlrev_b32 v{t1}, 6, v{t1}")
    a(f"v_lshlrev_b32 v{t0}, 7, v{t0}")
    a(f"v_add_u32 v{t0}, v{t0}, v{t1}")
    a(f"v_lshrrev_b32 v{t1}, 4, v{v_lane}")
    a(f"v_and_b32 v{t1}, 1, v{t1}")
    a(f"v_lshlrev_b32 v{t1}, 5, v{t1}")
    a(f"v_add_u32 v{t0}, v{t0}, v{t1}")
    a(f"v_and_b32 v{t1}, 3, v{v_lane}")
    a(f"v_lshlrev_b32 v{t1}, 3, v{t1}")
    a(f"v_add_u32 v{t0}, v{t0}, v{t1}")
    a(f"v_lshrrev_b32 v{t1}, 5, v{v_lane}")
    a(f"v_lshlrev_b32 v{t2}, 10, v{t1}")
    a(f"v_add_u32 v{v_abase}, v{t0}, v{t2}")
    a(f"v_mov_b32 v{v_rd}, v{v_abase}")
    a(f"s_mov_b32 s{s_ro}, 0")
    a(f"v_and_b32 v{t0}, 31, v{v_lane}")
    a(f"v_lshlrev_b32 v{v_l16}, 4, v{t0}")
    a(f"s_lshl_b32 s{s_tmp}, s{s_i}, 5")
    a(f"v_add_u32 v{t0}, s{s_tmp}, v{t0}")
    a(f"v_lshrrev_b32 v{t2}, 1, v{t0}")
    a(f"v_and_b32 v{t2}, 7, v{t2}")
    a(f"v_xor_b32 v{t2}, v{t2}, v{t1}")
    a(f"v_lshlrev_b32 v{t2}, 4, v{t2}")
    a(f"v_lshlrev_b32 v{t0}, 7, v{t0}")
    a(f"v_add_u32 v{v_xrd}, v{t0}, v{t2}")
    a(f"v_add_u32 v{v_xrd}, {LDS_H}, v{v_xrd}")
    a(f"v_lshlrev_b32 v{v_st}, 4, v{v_lane}")
    a(f"v_mov_b32 v{v_S}, 0")
    a(f"v_and_b32 v{t0}, 31, v{v_lane}")
    a(f"v_mul_u32_u24 v{v_hw}, {TS}, v{t0}")
    a(f"v_lshlrev_b32 v{t1}, 3, v{t1}")
    a(f"v_add_u32 v{v_hw}, v{v_hw}, v{t1}")
    a(f"s_lshl_b32 s{s_tmp}, s{s_i}, 6")
    a(f"s_add_u32 s{s_tmp}, s{s_tmp}, {LDS_T}")
    a(f"v_add_u32 v{v_hw}, s{s_tmp}, v{v_hw}")
    a(f"s_waitcnt vmcnt({vq.need('x0','r0')})")
    a("s_barrier")
    lq = Q()
    def y_read(c):
        slot = c % 6
        for s in range(4):
            reg = V_Y + (4*c + s) * 4
            tmp = V_M + 4 + (s % 2)
            off = slot * 16384
            a(f"v_xor_b32 v{tmp}, {s*32}, v{v_xrd}")
            if off >= 65536:
                a(f"v_add_u32 v{tmp}, {off}, v{tmp}")
                a(f"ds_read_b128 {vr(reg,4)}, v{tmp}")
            else:
                a(f"ds_read_b128 {vr(reg,4)}, v{tmp} offset:{off}")
            lq.issue(f"y{c}")
    def gate(c):
        lab = a.label("Lg")
        a(f"s_cmp_eq_u32 s{s_w}, s{s_g4}")
        a(f"s_cbranch_scc0 {lab}")
        a(f"s_load_dwordx16 s[{S_GW}:{S_GW+15}], s[58:59], {c*128}")
        a(f"s_load_dwordx16 s[{S_GW+16}:{S_GW+31}], s[58:59], {c*128+64}")
        a("s_waitcnt lgkmcnt(0)")
        a("s_mov_b32 exec_hi, 0")
        for s in range(4):
            for j in range(4):
                a(f"v_dot2c_f32_bf16 v{v_S}, s{S_GW+8*s+j}, v{V_Y+16*c+4*s+j}")
        a("s_mov_b32 exec_hi, -1")
        a("s_mov_b32 exec_lo, 0")
        for s in range(4):
            for j in range(4):
                a(f"v_dot2c_f32_bf16 v{v_S}, s{S_GW+8*s+4+j}, v{V_Y+16*c+4*s+j}")
        a("s_mov_b32 exec_lo, -1")
        a(f"{lab}:")
    def epilogue_compute():
        a("s_nop 15")
        a("s_nop 3")
        for q in range(4):
            T = [V_T + e for e in range(4)]; U = [V_T + 4 + e for e in range(4)]
            A = [V_ACC + 4*q + e for e in range(4)]
            for e in range(4): a(f"v_min_f32 v{T[e]}, 0, v{A[e]}")
            for e in range(4): a(f"v_mul_f32 v{T[e]}, {f2u(LOG2E):#x}, v{T[e]}")
            for e in range(4): a(f"v_exp_f32 v{T[e]}, v{T[e]}")
            for e in range(4): a(f"v_max_f32 v{U[e]}, 0, v{A[e]}")
            for e in range(4): a(f"v_add_f32 v{U[e]}, {f2u(1e-6):#x}, v{U[e]}")
            for e in range(4): a(f"v_add_f32 v{T[e]}, v{T[e]}, v{U[e]}")
            for e in range(4): a(f"v_cndmask_b32 v{T[e]}, v{A[e]}, v{T[e]}, s[{s_mask}:{s_mask+1}]")
            a(f"v_cvt_pk_bf16_f32 v{V_HP+2*q}, v{T[0]}, v{T[1]}")
            a(f"v_cvt_pk_bf16_f32 v{V_HP+2*q+1}, v{T[2]}, v{T[3]}")
    def set_mask_and_row(sP):
        a(f"s_lshl_b32 s{s_tmp}, s{sP}, 6")
        a(f"s_lshl_b32 s{s_tmp2}, s{s_jj}, 5")
        a(f"s_add_u32 s{s_tmp}, s{s_tmp}, s{s_tmp2}")
        a(f"v_lshrrev_b32 v{V_M}, 4, v{v_l16}")
        a(f"v_add_u32 v{V_M}, s{s_tmp}, v{V_M}")
        a(f"v_cmp_gt_u32 vcc, 144, v{V_M}")
        a(f"v_cmp_le_u32 s[{s_mask}:{s_mask+1}], 288, v{V_M}") if False else None
        a(f"v_mov_b32 v{V_M+1}, 288")
        a(f"v_cmp_ge_u32 s[{s_mask}:{s_mask+1}], v{V_M}, v{V_M+1}")
        a("s_nop 3")
        a(f"s_or_b64 s[{s_mask}:{s_mask+1}], s[{s_mask}:{s_mask+1}], vcc")
        a(f"s_cmp_ge_u32 s{s_tmp}, 288")
        a(f"s_cselect_b32 s{s_tmp2}, 288, 0")
        a(f"s_sub_u32 s{s_tmp}, s{s_tmp}, s{s_tmp2}")
        a(f"s_mul_i32 s{s_hwn}, s{s_tmp}, {TS}")
    def t_write():
        a(f"v_add_u32 v{V_M}, s{s_hwn}, v{v_hw}")
        for q in range(4):
            a(f"ds_write_b64 v{V_M}, {vr(V_HP+2*q,2)} offset:{16*q}")
    y_read(0)
    for s in range(4):
        g.frag_read(lq, s, s, 512, f"f{s}")
    for x in g.rd_salu() + g.rd_valu(): a(x)
    nofill = [[] for _ in range(36)]
    def next_pair_switch():
        a(f"s_add_u32 s{s_Pn}, s{s_P}, 1")
        a(f"s_min_u32 s{s_Pn}, s{s_Pn}, 6")
        set_doff(s_Pn)
        a(f"s_mov_b32 s{s_dso}, 0")
    for e in range(9):
        misc = [[] for _ in range(36)]
        need = [f"r{e+1}"] + ([f"x{e+1}"] if e + 1 <= 8 else [])
        if e + 1 <= 8: misc[4*e].append(lambda e=e: y_read(e + 1))
        if e < 3: misc[4*e+2].append(lambda e=e: x_dma(6 + e))
        misc[4*e+1].append(lambda e=e: gate(e))
        if e == 1: misc[4*e+2].append(next_pair_switch)
        emit_epoch(g, e, 36, vq, lq, need, 512, V_Y, nofill, misc, [f"r{e+7}"], tagp="f", force_lgkm=lq.need(f"y{e}"), swap=True, lastD=V_ACC)
    a(f"s_cmp_eq_u32 s{s_w}, s{s_g4}")
    a("s_cbranch_scc0 L_nogate")
    a(f"v_mov_b32 v{V_M}, v{v_S}")
    a("s_nop 1")
    a(f"v_permlane32_swap_b32 v{v_S}, v{V_M}")
    a("s_nop 1")
    a(f"v_add_f32 v{v_S}, v{v_S}, v{V_M}")
    a(f"v_mul_f32 v{v_S}, {f2u(-LOG2E):#x}, v{v_S}")
    a(f"v_exp_f32 v{v_S}, v{v_S}")
    a("s_nop 0")
    a(f"v_add_f32 v{v_S}, 1.0, v{v_S}")
    a(f"v_rcp_f32 v{v_S}, v{v_S}")
    a(f"s_lshl_b32 s{s_tmp}, s{s_t}, 7")
    a(f"s_lshl_b32 s{s_tmp2}, s{s_g4}, 5")
    a(f"s_add_u32 s{s_tmp}, s{s_tmp}, s{s_tmp2}")
    a(f"s_lshl_b32 s{s_tmp}, s{s_tmp}, 2")
    a(f"s_add_u32 s{s_tmp}, s{s_tmp}, {WS_G}")
    a(f"v_lshrrev_b32 v{V_M}, 2, v{v_l16}")
    a("s_mov_b32 exec_hi, 0")
    a(f"buffer_store_dword v{v_S}, v{V_M}, {sr(SW,4)}, s{s_tmp} offen")
    a("s_mov_b32 exec_hi, -1")
    a("L_nogate:")
    a("s_branch L_T_epi")
    a(".p2align 3")
    a("L_T:")
    vq = Q(); lq = Q()
    for e in range(-9, 0): vq.issue(f"r{e+7}")
    for s in range(0, 4): lq.issue(f"g{s}"); lq.issue(f"g{s}")
    for e in range(9):
        misc = [[] for _ in range(36)]
        if e == 1: misc[4*e+2].append(next_pair_switch)
        emit_epoch(g, e, 36, vq, lq, [f"r{e+1}"], 512, V_Y, nofill, misc, [f"r{e+7}"], swap=True, lastD=V_ACC)
    a("L_T_epi:")
    set_mask_and_row(s_P)
    epilogue_compute()
    a(f"s_lshl_b32 s{s_tmp}, s{s_P}, 1")
    a(f"s_add_u32 s{s_tmp}, s{s_tmp}, s{s_jj}")
    a(f"s_cmp_eq_u32 s{s_tmp}, 9")
    a("s_cbranch_scc1 L_T_nowr")
    t_write()
    a("L_T_nowr:")
    a(f"s_cmp_eq_u32 s{s_P}, 4")
    a("s_cbranch_scc1 L_KV")
    a("L_KV_ret:")
    a(f"s_mov_b32 s{s_P}, s{s_Pn}") if False else None
    a(f"s_add_u32 s{s_P}, s{s_P}, 1")
    a(f"s_cmp_le_u32 s{s_P}, 6")
    a("s_cbranch_scc1 L_T")
    a("s_branch L_T_done")
    a("L_KV:")
    a("s_waitcnt lgkmcnt(0)")
    a("s_barrier")
    m = V_M
    a(f"s_mul_i32 s{s_tmp}, s{s_w}, {18*TS}")
    a(f"s_add_u32 s{s_tmp}, s{s_tmp}, {LDS_T}")
    a(f"v_lshrrev_b32 v{m}, 4, v{v_l16}")
    a(f"v_mul_u32_u24 v{m+1}, {TS}, v{m}")
    a(f"v_lshrrev_b32 v{m+2}, 5, v{v_lane}")
    a(f"v_lshlrev_b32 v{m+2}, 4, v{m+2}")
    a(f"v_add_u32 v{m+1}, v{m+1}, v{m+2}")
    a(f"v_add_u32 v{m+1}, s{s_tmp}, v{m+1}")
    a(f"v_add_u32 v{m+2}, {144*TS}, v{m+1}")
    a(f"v_cmp_eq_u32 vcc, 18, v{m}")
    a(f"v_mov_b32 v{m+3}, 0x3f803f80")
    CSr = V_CS + 4
    for s in range(8):
        ra, rb = CSr + (s % 1) * 0, CSr + 4
        a(f"ds_read_b128 {vr(CSr,4)}, v{m+1} offset:{32*s}")
        a(f"ds_read_b128 {vr(CSr+4,4)}, v{m+2} offset:{32*s}")
        a("s_waitcnt lgkmcnt(0)")
        for j in range(4):
            a(f"v_cndmask_b32 v{CSr+4+j}, v{CSr+4+j}, v{m+3}, vcc")
        a("s_nop 1")
        C = "0" if s == 0 else vr(V_G, 16)
        a(f"{MFMA} {vr(V_G,16)}, {vr(CSr,4)}, {vr(CSr+4,4)}, {C}")
        a("s_nop 7")
    a(f"s_lshl_b32 s{s_tmp}, s{s_g4}, 2")
    a(f"s_add_u32 s{s_tmp}, s{s_tmp}, {DBG_Z}")
    a(f"v_mov_b32 v{m+4}, s{s_tmp}")
    a("L_zpoll:")
    a(f"buffer_load_dword v{m+5}, v{m+4}, {sr(SG,4)}, 0 offen sc1")
    a("s_waitcnt vmcnt(0)")
    a(f"v_readfirstlane_b32 s{s_tmp}, v{m+5}")
    a("s_nop 3")
    a(f"s_cmp_ge_u32 s{s_tmp}, 1")
    a("s_cbranch_scc1 L_zok")
    a("s_sleep 1")
    a("s_branch L_zpoll")
    a("L_zok:")
    a(f"s_lshl_b32 s{s_tmp}, s{s_g4}, 3")
    a(f"s_add_u32 s{s_tmp}, s{s_tmp}, s{s_w}")
    a(f"s_mul_i32 s{s_tmp}, s{s_tmp}, {KVH}")
    a(f"s_add_u32 s{s_tmp}, s{s_tmp}, {WS_KV}")
    a(f"v_lshrrev_b32 v{m+2}, 5, v{v_lane}")
    a(f"v_mul_u32_u24 v{m+2}, {4*80}, v{m+2}")
    a(f"v_lshlrev_b32 v{m+3}, 2, v{m}")
    a(f"v_add_u32 v{m+2}, v{m+2}, v{m+3}")
    a(f"v_cmp_gt_u32 vcc, 19, v{m}")
    a(f"v_mov_b32 v{m+3}, {OOB}")
    a("s_nop 0")
    a(f"v_cndmask_b32 v{m+2}, v{m+3}, v{m+2}, vcc")
    a(f"v_cmp_gt_u32 vcc, 32, v{v_lane}")
    a("s_nop 1")
    a(f"v_cndmask_b32 v{m+4}, v{m+3}, v{m+2}, vcc")
    a("s_nop 7")
    for r in range(10):
        d0 = 8 * (r // 4) + (r % 4)
        vo = m + 2 if r < 8 else m + 4
        a(f"buffer_atomic_add_f32 v{V_G+r}, v{vo}, {sr(SW,4)}, s{s_tmp} offen offset:{d0*80}")
    a("s_waitcnt vmcnt(0)")
    a("s_barrier")
    a(f"s_cmp_eq_u32 s{s_w}, 0")
    a("s_cbranch_scc0 L_kvnosig")
    a(f"v_mov_b32 v{m}, 1")
    a(f"s_lshl_b32 s{s_tmp}, s{s_g4}, 2")
    a(f"s_add_u32 s{s_tmp}, s{s_tmp}, {DBG_KV}")
    a(f"v_mov_b32 v{m+1}, s{s_tmp}")
    a("s_mov_b64 exec, 1")
    a(f"buffer_atomic_add v{m}, v{m+1}, {sr(SG,4)}, 0 offen sc1")
    a("s_mov_b64 exec, -1")
    a("L_kvnosig:")
    a(f"s_cmp_eq_u32 s{s_jj}, 1")
    a("s_cbranch_scc0 L_KV_ret")
    t_write()
    a("s_branch L_KV_ret")
    a("L_T_done:")
    a("s_waitcnt vmcnt(0) lgkmcnt(0)")
    a("s_barrier")
    a(f"s_mov_b32 s{SD}, s{S_W2}")
    a(f"s_mov_b32 s{SD+1}, s{S_W2+1}")
    a(f"s_mov_b32 s{SD+2}, {SIZES['A_wo']}")
    a(f"v_mov_b32 v{v_doff}, v{v_doffB}")
    a(f"s_mul_i32 s{s_F0}, s{s_g4}, {144*W2_RS}")
    def wo_base(dst, add):
        a(f"s_add_u32 s{s_tmp}, s{s_P}, {add}")
        a(f"s_cmp_ge_u32 s{s_tmp}, 9")
        a(f"s_cselect_b32 s{s_tmp2}, 9, 0")
        a(f"s_sub_u32 s{s_tmp}, s{s_tmp}, s{s_tmp2}")
        a(f"s_lshl_b32 s{s_tmp}, s{s_tmp}, 7")
        a(f"s_add_u32 s{dst}, s{s_F0}, s{s_tmp}")
    a(f"s_mov_b32 s{s_P}, s{s_Pd0}")
    a(f"s_mov_b32 s{s_wo}, 0")
    a(f"s_mov_b32 s{s_ro}, 0")
    def wo_dma(basereg, part):
        a(f"s_add_u32 m0, s{s_wo}, s{s_wbase}")
        a(f"s_add_u32 s{s_dso}, s{basereg}, {part*64*W2_RS}")
        a(f"buffer_load_dwordx4 v{v_doff}, {sr(SD,4)}, s{s_dso} offen lds")
        a(f"s_add_u32 s{s_wo}, s{s_wo}, {SLOT}")
        a(f"s_and_b32 s{s_wo}, s{s_wo}, {RINGSZ-1}")
    for sg in range(7):
        if sg % 3 == 0: wo_base(54, sg // 3)
        wo_dma(54, sg % 3)
    a(f"s_cmp_eq_u32 s{s_w}, 0")
    a("s_cbranch_scc0 L_kvnopoll")
    a(f"s_lshl_b32 s{s_tmp}, s{s_g4}, 2")
    a(f"s_add_u32 s{s_tmp}, s{s_tmp}, {DBG_KV}")
    a(f"v_mov_b32 v{m+4}, s{s_tmp}")
    a("L_kvpoll:")
    a(f"buffer_load_dword v{m+5}, v{m+4}, {sr(SG,4)}, 0 offen sc1")
    a("s_waitcnt vmcnt(0)")
    a(f"v_readfirstlane_b32 s{s_tmp}, v{m+5}")
    a("s_nop 3")
    a(f"s_cmp_ge_u32 s{s_tmp}, 16")
    a("s_cbranch_scc1 L_kvnopoll")
    a("s_sleep 1")
    a("s_branch L_kvpoll")
    a("L_kvnopoll:")
    a("s_barrier")
    a(f"s_lshl_b32 s{s_tmp}, s{s_g4}, 3")
    a(f"s_add_u32 s{s_tmp}, s{s_tmp}, s{s_w}")
    a(f"s_mul_i32 s{s_tmp}, s{s_tmp}, {KVH}")
    a(f"s_add_u32 s{s_tmp}, s{s_tmp}, {WS_KV}")
    a(f"v_lshrrev_b32 v{m}, 4, v{v_l16}")
    a(f"v_lshlrev_b32 v{m+1}, 2, v{m}")
    a(f"v_mov_b32 v{m+3}, {OOB}")
    a(f"v_cmp_gt_u32 vcc, 19, v{m}")
    a("s_nop 1")
    a(f"v_cndmask_b32 v{m+1}, v{m+3}, v{m+1}, vcc")
    a(f"v_cmp_gt_u32 vcc, 32, v{v_lane}")
    a(f"v_add_u32 v{m+2}, {16*80}, v{m+1}")
    a("s_nop 0")
    a(f"v_cndmask_b32 v{m+2}, v{m+2}, v{m+1}, vcc")
    a(f"v_cndmask_b32 v{m+4}, v{m+3}, v{m+1}, vcc")
    KL = V_G
    for j in range(16):
        vo = m + 2 if j < 2 else m + 4
        a(f"buffer_load_dword v{KL+j}, v{vo}, {sr(SW,4)}, s{s_tmp} offen offset:{j*80} sc0 sc1")
    a("s_waitcnt vmcnt(0)")
    for j in range(8):
        a(f"v_cvt_pk_bf16_f32 v{V_HP+j}, v{KL+2*j}, v{KL+2*j+1}")
    a(f"s_lshl_b32 s{s_tmp}, s{s_w}, 11")
    a(f"s_add_u32 s{s_tmp}, s{s_tmp}, {LDS_KVA}")
    a(f"v_lshlrev_b32 v{m}, 2, v{v_l16}")
    a(f"v_lshrrev_b32 v{m+1}, 5, v{v_lane}")
    a(f"v_lshlrev_b32 v{m+1}, 5, v{m+1}")
    a(f"v_add_u32 v{m}, v{m}, v{m+1}")
    a(f"v_add_u32 v{m}, s{s_tmp}, v{m}")
    a(f"ds_write_b128 v{m}, {vr(V_HP,4)}")
    a(f"ds_write_b128 v{m}, {vr(V_HP+4,4)} offset:16")
    a("s_waitcnt lgkmcnt(0)")
    a("s_barrier")
    a(f"v_and_b32 v{m}, 15, v{v_lane}")
    a(f"v_lshrrev_b32 v{m}, 2, v{m}")
    a(f"v_lshrrev_b32 v{m+1}, 5, v{v_lane}")
    a(f"v_lshlrev_b32 v{m+2}, 3, v{m+1}")
    a(f"v_add_u32 v{m}, v{m}, v{m+2}")
    a(f"v_mul_u32_u24 v{m}, {TS}, v{m}")
    a(f"v_lshrrev_b32 v{m+2}, 4, v{v_lane}")
    a(f"v_and_b32 v{m+2}, 1, v{m+2}")
    a(f"v_lshlrev_b32 v{m+2}, 5, v{m+2}")
    a(f"v_add_u32 v{m}, v{m}, v{m+2}")
    a(f"v_and_b32 v{m+2}, 3, v{v_lane}")
    a(f"v_lshlrev_b32 v{m+2}, 3, v{m+2}")
    a(f"v_add_u32 v{m}, v{m}, v{m+2}")
    a(f"s_lshl_b32 s{s_tmp}, s{s_i}, 6")
    a(f"s_mul_i32 s{s_tmp2}, s{s_jj}, {4*18*TS}")
    a(f"s_add_u32 s{s_tmp}, s{s_tmp}, s{s_tmp2}")
    a(f"s_add_u32 s{s_tmp}, s{s_tmp}, {LDS_T}")
    a(f"v_add_u32 v{m}, s{s_tmp}, v{m}")
    a(f"v_lshlrev_b32 v{m+2}, 2, v{v_l16}")
    a(f"v_lshlrev_b32 v{m+3}, 4, v{m+1}")
    a(f"v_add_u32 v{m+2}, v{m+2}, v{m+3}")
    a(f"s_lshl_b32 s{s_tmp}, s{s_jj}, 13")
    a(f"s_add_u32 s{s_tmp}, s{s_tmp}, {LDS_KVA}")
    a(f"v_add_u32 v{m+2}, s{s_tmp}, v{m+2}")
    a(f"v_lshrrev_b32 v{m+3}, 4, v{v_l16}")
    a(f"v_mul_u32_u24 v{m+3}, {O2S}, v{m+3}")
    a(f"v_lshlrev_b32 v{m+4}, 3, v{m+1}")
    a(f"v_add_u32 v{m+3}, v{m+3}, v{m+4}")
    a(f"s_mul_i32 s{s_tmp}, s{s_i}, {32*O2S}")
    a(f"s_mul_i32 s{s_tmp2}, s{s_jj}, {4*36}")
    a(f"s_add_u32 s{s_tmp}, s{s_tmp}, s{s_tmp2}")
    a(f"s_add_u32 s{s_tmp}, s{s_tmp}, {LDS_O2}")
    a(f"v_add_u32 v{m+3}, s{s_tmp}, v{m+3}")
    for hh in range(4):
        FA, FB = V_FR, V_FR + 8
        for s in range(2):
            a(f"ds_read_b128 {vr(FA+4*s,4)}, v{m+2} offset:{hh*2048+32*s}")
            a(f"ds_read_b64_tr_b16 {vr(FB+4*s,2)}, v{m} offset:{(18*hh+16*s)*TS}")
            a(f"ds_read_b64_tr_b16 {vr(FB+4*s+2,2)}, v{m} offset:{(18*hh+16*s+4)*TS}")
        a("s_waitcnt lgkmcnt(0)")
        a(f"{MFMA} {vr(V_G,16)}, {vr(FA,4)}, {vr(FB,4)}, 0")
        a(f"{MFMA} {vr(V_G,16)}, {vr(FA+4,4)}, {vr(FB+4,4)}, {vr(V_G,16)}")
        a("s_nop 15")
        a("s_nop 3")
        a(f"v_mov_b32 v{V_T}, v{V_G+10}")
        a(f"v_mov_b32 v{V_T+1}, v{V_G+10}")
        a("s_nop 1")
        a(f"v_permlane32_swap_b32 v{V_T+1}, v{V_T}")
        a("s_nop 1")
        a(f"v_add_f32 v{V_T+1}, {f2u(1e-6):#x}, v{V_T+1}")
        a(f"v_rcp_f32 v{V_T+1}, v{V_T+1}")
        a("s_nop 0")
        for r in range(10): a(f"v_mul_f32 v{V_G+r}, v{V_G+r}, v{V_T+1}")
        for p in range(5): a(f"v_cvt_pk_bf16_f32 v{V_HP+p}, v{V_G+2*p}, v{V_G+2*p+1}")
        for p in range(4):
            a(f"ds_write_b32 v{m+3}, v{V_HP+p} offset:{hh*36 + (p//2)*16 + (p%2)*4}")
        a("s_mov_b32 exec_hi, 0")
        a(f"ds_write_b32 v{m+3}, v{V_HP+4} offset:{hh*36 + 32}")
        a("s_mov_b32 exec_hi, -1")
    a("s_waitcnt lgkmcnt(0)")
    a("s_barrier")
    a(f"v_lshrrev_b32 v{m}, 4, v{v_l16}")
    a(f"v_mul_u32_u24 v{m}, {O2S}, v{m}")
    a(f"v_lshrrev_b32 v{m+1}, 5, v{v_lane}")
    a(f"v_lshlrev_b32 v{m+1}, 4, v{m+1}")
    a(f"v_add_u32 v{m}, v{m}, v{m+1}")
    a(f"s_mul_i32 s{s_tmp}, s{s_i}, {32*O2S}")
    a(f"s_add_u32 s{s_tmp}, s{s_tmp}, {LDS_O2}")
    a(f"v_add_u32 v{m}, s{s_tmp}, v{m}")
    for s in range(9):
        a(f"ds_read_b128 {vr(V_Y+4*s,4)}, v{m} offset:{32*s}")
    a(f"v_mov_b32 v{v_rd}, v{v_abase}")
    lq = Q()
    a("s_waitcnt vmcnt(0) lgkmcnt(0)")
    a("s_barrier")
    for s in range(4):
        g.frag_read(lq, s, s, 512, f"g{s}")
    for x in g.rd_salu() + g.rd_valu(): a(x)
    a(f"s_lshl_b32 s{s_tmp}, s{s_t}, 2")
    a(f"s_add_u32 s{s_tmp}, s{s_tmp}, s{s_i}")
    a(f"s_mul_i32 s{s_tmp}, s{s_tmp}, {18*16}")
    a(f"s_add_u32 s{s_tmp}, s{s_tmp}, s{s_g4}")
    a(f"s_add_u32 s{s_tmp}, s{s_tmp}, 12")
    a(f"s_lshl_b32 s{s_posbase}, s{s_tmp}, 11")
    a(f"s_mov_b32 s{s_pos}, {OOB}")
    a(f"s_mov_b32 s{s_n}, 0")
    a(".p2align 3")
    a("L_W:")
    st0 = f"buffer_store_dwordx4 {vr(V_HP,4)}, v{v_st}, {sr(SW,4)}, s{s_pos} offen"
    st1 = f"buffer_store_dwordx4 {vr(V_HP+4,4)}, v{v_st}, {sr(SW,4)}, s{s_pos} offen offset:1024"
    epi = [f"v_cvt_pk_bf16_f32 v{V_HP+r}, v{V_G+2*r}, v{V_G+2*r+1}" for r in range(8)]
    fillW = [[] for _ in range(12)]; miscW = [[] for _ in range(12)]
    fillW[4] = epi[:4]; fillW[5] = epi[4:]
    miscW[5].append(st0); miscW[6].append(st1)
    vq = Q(); lq = Q()
    for e in range(3):
        vq.issue(f"r{e+4}")
        if e == 1: vq.issue("st"); vq.issue("st")
    vq.q = ["r1", "r2", "r3"] + vq.q
    for s in range(4): lq.issue(f"g{s}"); lq.issue(f"g{s}")
    wo_base(54, 2); wo_base(55, 3)
    for e in range(3):
        fn = (lambda: wo_dma(54, 1)) if e == 0 else ((lambda: wo_dma(54, 2)) if e == 1 else (lambda: wo_dma(55, 0)))
        emit_epoch(g, e, 12, vq, lq, [f"r{e+1}"], 512, V_Y, fillW, miscW, [f"r{e+7}"], kvalid=9, dma_fn=fn)
    a(f"s_lshl_b32 s{s_tmp}, s{s_P}, 1")
    a(f"s_add_u32 s{s_tmp}, s{s_tmp}, s{s_jj}")
    a(f"s_lshl_b32 s{s_tmp}, s{s_tmp}, 15")
    a(f"s_add_u32 s{s_pos}, s{s_posbase}, s{s_tmp}")
    a(f"s_add_u32 s{s_P}, s{s_P}, 1")
    a(f"s_cmp_eq_u32 s{s_P}, 9")
    a(f"s_cselect_b32 s{s_P}, 0, s{s_P}")
    a(f"s_add_u32 s{s_n}, s{s_n}, 1")
    a(f"s_cmp_lt_u32 s{s_n}, 9")
    a("s_cbranch_scc1 L_W")
    a("s_nop 15")
    for ins in epi: a(ins)
    a(st0); a(st1)
    a("s_waitcnt vmcnt(0) lgkmcnt(0)")
```

```python
from asmlib import *
from mlp3 import WS_P, WS_G, vr, sr
def gen_k2(mode="full", nmlp=12, natt=4):
    a = Asm()
    SW, SO, SB2 = 4, 8, 12
    a(f"s_load_dwordx2 s[{SW}:{SW+1}], s[0:1], {KA['ws']}")
    a(f"s_load_dwordx2 s[{SO}:{SO+1}], s[0:1], {KA['out']}")
    a(f"s_load_dwordx2 s[{SB2}:{SB2+1}], s[0:1], {KA['B_b2']}")
    a("s_cmp_ge_u32 s2, 576")
    a("s_cbranch_scc1 L_end2")
    a("v_and_b32 v1, 63, v0")
    a("v_lshrrev_b32 v2, 6, v0")
    a("s_nop 0")
    a("v_readfirstlane_b32 s20, v2")
    a("s_nop 3")
    a("s_lshl_b32 s21, s2, 2")
    a("s_add_u32 s21, s21, s20")
    a("s_lshr_b32 s22, s21, 1")
    a("s_and_b32 s23, s21, 1")
    a("s_lshl_b32 s24, s22, 15")
    a("s_lshl_b32 s25, s23, 10")
    a("s_add_u32 s24, s24, s25")
    a("s_mul_i32 s26, s22, 3641")
    a("s_lshr_b32 s26, s26, 16")
    a("s_mul_i32 s27, s26, 18")
    a("s_sub_u32 s27, s22, s27")
    a("s_waitcnt lgkmcnt(0)")
    for (r, n) in ((SW, "ws"), (SO, "out"), (SB2, "B_b2")):
        finish_srd(a, r, n)
    a("v_lshlrev_b32 v3, 4, v1")
    nsl = nmlp + (natt if mode == "full" else 0)
    V = 16
    for sl in range(nsl):
        a(f"s_add_u32 s28, s24, {sl*2048}")
        a(f"buffer_load_dwordx4 {vr(V+4*sl,4)}, v3, {sr(SW,4)}, s28 offen")
    a("v_lshrrev_b32 v4, 5, v1")
    a("s_lshl_b32 s28, s27, 5")
    a("s_lshl_b32 s29, s23, 4")
    a("s_add_u32 s28, s28, s29")
    a("v_lshlrev_b32 v5, 2, v4")
    a("v_add_u32 v5, s28, v5")
    a("v_lshlrev_b32 v5, 1, v5")
    a(f"buffer_load_dwordx2 v[8:9], v5, {sr(SB2,4)}, 0 offen")
    a(f"buffer_load_dwordx2 v[10:11], v5, {sr(SB2,4)}, 0 offen offset:16")
    a("v_and_b32 v6, 31, v1")
    a("s_lshl_b32 s30, s26, 5")
    a("v_add_u32 v6, s30, v6")
    if mode == "full":
        a("v_lshlrev_b32 v7, 2, v6")
        a(f"s_mov_b32 s31, {WS_G}")
        a(f"buffer_load_dword v12, v7, {sr(SW,4)}, s31 offen")
    a("v_mul_u32_u24 v13, 1152, v6")
    a("v_lshlrev_b32 v14, 4, v4")
    a("v_add_u32 v13, v13, v14")
    a("s_lshl_b32 s28, s28, 1")
    A, B = 100, 108
    extra = 2 + (1 if mode == "full" else 0)
    for sl in range(nsl):
        remaining = nsl - 1 - sl + extra
        a(f"s_waitcnt vmcnt({remaining})")
        dst = A if sl < nmlp else B
        first = (sl == 0 or sl == nmlp)
        for r in range(4):
            src = V + 4*sl + r
            if first:
                a(f"v_lshlrev_b32 v{dst+2*r}, 16, v{src}")
                a(f"v_and_b32 v{dst+2*r+1}, 0xffff0000, v{src}")
            else:
                a(f"v_lshlrev_b32 v2, 16, v{src}")
                a(f"v_and_b32 v15, 0xffff0000, v{src}")
                a(f"v_add_f32 v{dst+2*r}, v{dst+2*r}, v2")
                a(f"v_add_f32 v{dst+2*r+1}, v{dst+2*r+1}, v15")
    a("s_waitcnt vmcnt(0)")
    for r in range(4):
        a(f"v_lshlrev_b32 v2, 16, v{8+r}")
        a(f"v_and_b32 v15, 0xffff0000, v{8+r}")
        a(f"v_add_f32 v{A+2*r}, v{A+2*r}, v2")
        a(f"v_add_f32 v{A+2*r+1}, v{A+2*r+1}, v15")
    if mode == "full":
        for e in range(8):
            a(f"v_sub_f32 v{B+e}, v{B+e}, v{A+e}")
            a(f"v_fma_f32 v{A+e}, v12, v{B+e}, v{A+e}")
    for r in range(4):
        a(f"v_cvt_pk_bf16_f32 v{116+r}, v{A+2*r}, v{A+2*r+1}")
    a("s_nop 1")
    a("v_permlane32_swap_b32 v116, v118")
    a("v_permlane32_swap_b32 v117, v119")
    a("s_nop 1")
    a(f"buffer_store_dwordx4 v[116:119], v13, {sr(SO,4)}, s28 offen")
    a("s_waitcnt vmcnt(0)")
    a("L_end2:")
    return kernel_wrap("k2_kernel", a.text(), vgpr=120, sgpr=40, accum=120)
```

```python
from asmlib import *
import struct

NS = 8
SLOT = 8192
RINGSZ = NS * SLOT
LDS_RING = 0
LDS_H = 65536
LDS_TOTAL = 163840
LDS_SCR = 6 * SLOT
LDS_STAT = LDS_H
WS_P = 0
WS_CSP = 37748736
WS_G = WS_CSP + 12*16*384*4
WS_STAMP = 0x3000000
W1_RS = 9216
W2_RS = 1152
X_RS = 1152
LOG2E = 1.4426950408889634
K1C = -2.0 * 0.7978845608028654 * LOG2E
K2C = -2.0 * 0.7978845608028654 * 0.044715 * LOG2E
def f2u(x): return struct.unpack("<I", struct.pack("<f", x))[0]
OOB = 0x40000000

SX, SD, SW, SG, SB = 4, 8, 12, 16, 20
S_W2 = 24
s_t, s_js, s_w, s_i, s_jj, s_F0 = 28, 29, 30, 31, 32, 33
s_n = 34
s_ro, s_wo, s_wbase = 35, 36, 37
s_dso, s_dstep = 38, 39
s_P, s_Pn = 40, 41
s_tmp, s_tmp2, s_tmp3 = 42, 43, 44
s_pos, s_posbase, s_xso, s_xw, s_Pd0 = 45, 46, 47, 48, 49
s_hwn = 50
S_ST = 60
v_tid, v_lane, v_doff, v_doffB, v_abaseA, v_abase, v_rd = 0, 1, 2, 3, 4, 5, 6
v_abaseB = 7
v_hw, v_l16 = 8, 9
v_k1r, v_k2r, v_rstd = 10, 11, 12
v_S, v_xrd, v_st = 13, 14, 15
V_T, V_HP, V_FR, V_M = 16, 24, 32, 56
V_ACC, V_G, V_CS, V_Y = 64, 80, 96, 112
V_AUGA, V_AUGB = 96, 100
NB, PD = 6, 4
MFMA = "v_mfma_f32_32x32x16_bf16"
def vr(a, n): return f"v[{a}:{a+n-1}]"
def sr(a, n): return f"s[{a}:{a+n-1}]"

class Q:
    def __init__(self): self.q = []
    def issue(self, tag): self.q.append(tag)
    def need(self, *tags):
        last = -1
        for idx, tg in enumerate(self.q):
            if tg in tags: last = idx
        assert last >= 0, f"{tags} not in queue"
        return len(self.q) - 1 - last

class Gen:
    def __init__(self, stamps=False, flags=()):
        self.flags = set(flags)
        self.a = Asm()
        self.stamps = stamps
        self.nst = 0
        self.inloop = False
    def stamp(self):
        if self.stamps:
            i = self.nst; self.nst += 1
            self.a(f"s_memtime s[{S_ST+2*i}:{S_ST+2*i+1}]")
    def flagval(self, pre, default):
        for f in self.flags:
            if f.startswith(pre) and f[len(pre):].isdigit(): return int(f[len(pre):])
        return default
    def dma_a(self):
        L = [f"s_add_u32 m0, s{s_wo}, s{s_wbase}", f"s_add_u32 s{s_wo}, s{s_wo}, {SLOT}"]
        if not ("nodma" in self.flags and self.inloop):
            L.append(f"buffer_load_dwordx4 v{v_doff}, {sr(SD,4)}, s{s_dso} offen lds")
        return L
    def dma_b(self):
        return [f"s_and_b32 s{s_wo}, s{s_wo}, {RINGSZ-1}", f"s_add_u32 s{s_dso}, s{s_dso}, s{s_dstep}"]
    def rd_salu(self):
        return [f"s_add_u32 s{s_ro}, s{s_ro}, {SLOT}", f"s_and_b32 s{s_ro}, s{s_ro}, {RINGSZ-1}"]
    def rd_valu(self):
        return [f"v_add_u32 v{v_rd}, s{s_ro}, v{v_abase}"]
    def dma_full(self, vq, tag):
        for x in self.dma_a(): self.a(x)
        vq.issue(tag)
        for x in self.dma_b(): self.a(x)
    def frag_read(self, lq, kslot, buf, second, tag):
        a = self.a
        r = V_FR + 4 * buf
        a(f"ds_read_b64_tr_b16 {vr(r,2)}, v{v_rd} offset:{kslot*2048}")
        a(f"ds_read_b64_tr_b16 {vr(r+2,2)}, v{v_rd} offset:{kslot*2048+second}")
        lq.issue(tag); lq.issue(tag)

def gelu_chain(e, T):
    G = V_G + e
    return [(f"v_mul_f32 v{T}, v{G}, v{G}", 4), (f"v_mul_f32 v{T}, v{T}, v{v_k2r}", 4), (f"v_add_f32 v{T}, v{T}, v{v_k1r}", 4),
            (f"v_mul_f32 v{T}, v{G}, v{T}", 4), (f"v_exp_f32 v{T}, v{T}", 8), (f"v_add_f32 v{T}, 1.0, v{T}", 4),
            (f"v_rcp_f32 v{T}, v{T}", 8), (f"v_mul_f32 v{T}, v{G}, v{T}", 4)]

TSH = 0
def gelu_sched(slots, nslots, caps, maxT=2, GS=4, gapP=2, gapT=3):
    NT = 8
    chains = [gelu_chain(e, V_T + ((e + TSH) % NT)) for e in range(16)]
    NOPS = len(chains[0])
    pos = [0] * 16; done_cvt = [False] * 8; last = [-10] * 16
    fill = [[] for _ in range(nslots)]; dsw = [[] for _ in range(nslots)]
    gi = 0; wrote = [False, False]
    for s in slots:
        budget = caps[s]; nT = 0; progress = True
        while budget > 0 and progress:
            progress = False
            for p in range(8):
                if not done_cvt[p] and pos[2*p] == NOPS and pos[2*p+1] == NOPS and budget >= 4 and gi - max(last[2*p], last[2*p+1]) >= 1:
                    fill[s].append(f"v_cvt_pk_bf16_f32 v{V_HP+p}, v{V_T+(2*p+TSH)%NT}, v{V_T+(2*p+1+TSH)%NT}")
                    done_cvt[p] = True; budget -= 4; gi += 1; progress = True
                    break
            if progress: continue
            best = None
            for e in range(16):
                if pos[e] >= NOPS: continue
                if e >= NT and pos[e] == 0 and not done_cvt[(e - NT) // 2]: continue
                ins, c = chains[e][pos[e]]
                if c > budget: continue
                if c == 8 and nT >= maxT: continue
                gap = gi - last[e]
                if pos[e] > 0:
                    prev_trans = chains[e][pos[e]-1][1] == 8
                    if gap < (gapT if prev_trans else gapP): continue
                key = ((e // GS) * NOPS + pos[e]) * GS + (e % GS)
                if best is None or key < best[0]: best = (key, e)
            if best is not None:
                e = best[1]
                ins, c = chains[e][pos[e]]
                fill[s].append(ins); pos[e] += 1; last[e] = gi; gi += 1; budget -= c
                if c == 8: nT += 1
                progress = True
        gi += 3
        for ks in range(2):
            if not wrote[ks] and all(done_cvt[4*ks:4*ks+4]):
                dsw[s].append(f"ds_write_b128 v{v_hw}, {vr(V_HP+4*ks,4)} offset:{ks*1024}")
                wrote[ks] = True
    ok = all(done_cvt) and all(wrote)
    return ok, fill, dsw

def gelu_plain():
    L = []
    for q in range(4):
        T = [V_T + (q % 2) * 4 + e for e in range(4)]
        ch = [gelu_chain(4*q+e, T[e]) for e in range(4)]
        for o in range(len(ch[0])):
            for e in range(4): L.append(ch[e][o][0])
        L.append(f"v_cvt_pk_bf16_f32 v{V_HP+2*q}, v{T[0]}, v{T[1]}")
        L.append(f"v_cvt_pk_bf16_f32 v{V_HP+2*q+1}, v{T[2]}, v{T[3]}")
        if q % 2 == 1:
            L.append(f"ds_write_b128 v{v_hw}, {vr(V_HP+4*(q//2),4)} offset:{(q//2)*1024}")
    return L

def emit_epoch(g, e, nk_total, vq, lq, vm_tags, second, bregs, fill, misc, dma_tag, tagp="g", force_lgkm=None, ndma=1, end_extra=None, variant="both", slack=None, swap=False, kvalid=None, lastD=None, dma_fn=None):
    a = g.a
    def put(lst):
        for ins in lst:
            if callable(ins): ins(); continue
            a(ins)
            if ins.startswith(("ds_write", "ds_read")): lq.issue("x")
            if ins.startswith(("buffer_store",)): vq.issue("st")
    def dma_all():
        for d in range(ndma):
            for x in g.dma_a(): a(x)
            vq.issue(dma_tag[d])
            for x in g.dma_b(): a(x)
        for x in g.rd_salu(): a(x)
        if slack: put(slack)
    fine = (g.flagval("fine", -1) == e and nk_total == g.flagval("fnk", 36) and g.inloop)
    def fs(i):
        if fine: a(f"s_memtime s[{80+2*i}:{81+2*i}]")
    for k in range(4):
        s = 4 * e + k
        if k == 0: fs(0)
        def rvalid(x): return kvalid is None or (x % nk_total) < kvalid
        if k == 3:
            if rvalid(s + PD): g.frag_read(lq, 3, (s + PD) % NB, second, f"{tagp}{s+PD}")
            if variant != "lead":
                for x in g.rd_valu(): a(x)
        nl = min(15, lq.need(f"{tagp}{s}")) if rvalid(s) else 15
        if k == 0:
            if force_lgkm is not None: nl = min(nl, force_lgkm)
            nv = vq.need(*vm_tags)
            nv = max(0, nv - (g.flagval("vmx", 0) if g.inloop else 0))
            if "novm" in g.flags and g.inloop: a(f"s_waitcnt lgkmcnt({nl})")
            else: a(f"s_waitcnt vmcnt({nv}) lgkmcnt({nl})")
            if not ("nobar" in g.flags and g.inloop): a("s_barrier")
            fs(1)
            if variant == "lag": dma_all()
        elif rvalid(s):
            a(f"s_waitcnt lgkmcnt({nl})")
        lastk = (nk_total if kvalid is None else kvalid) - 1
        D = (V_G if lastD is None else lastD) if s == lastk else V_ACC
        C = "0" if s == 0 else vr(V_ACC, 16)
        fs(2 + k)
        if rvalid(s):
            opA, opB = vr(V_FR+4*(s%NB),4), vr(bregs+4*s,4)
            if swap: opA, opB = opB, opA
            a(f"{MFMA} {vr(D,16)}, {opA}, {opB}, {C}")
        if k == 3: fs(6)
        if k < 3:
            put(fill[s])
            if rvalid(s + PD): g.frag_read(lq, k, (s + PD) % NB, second, f"{tagp}{s+PD}")
            if variant == "both" and dma_fn is not None:
                if k == 0:
                    dma_fn(); vq.issue(dma_tag[0])
                if k == 1:
                    for x in g.rd_salu(): a(x)
            elif variant == "both":
                if k == 0:
                    for d in range(ndma):
                        for x in g.dma_a(): a(x)
                        vq.issue(dma_tag[d])
                        if d < ndma - 1:
                            for x in g.dma_b(): a(x)
                if k == 1:
                    for x in g.dma_b(): a(x)
                    for x in g.rd_salu(): a(x)
            put(misc[s])
        else:
            if end_extra: end_extra(s)
            if variant == "lead":
                put(fill[s])
                put(misc[s])
                dma_all()
                for x in g.rd_valu(): a(x)
    fs(7)

def gen_mlp(g):
    global TSH
    a = g.a
    a.c("MLP role v2")
    a(f"v_and_b32 v{v_lane}, 63, v{v_tid}")
    a(f"v_lshrrev_b32 v{V_M}, 6, v{v_tid}")
    a("s_nop 0")
    a(f"v_readfirstlane_b32 s{s_w}, v{V_M}")
    t0, t1, t2, xo = V_T, V_T+1, V_T+2, V_T+3
    a(f"v_lshrrev_b32 v{t0}, 3, v{v_lane}")
    a(f"v_and_b32 v{t2}, 7, v{v_lane}")
    a(f"s_lshl_b32 s{s_tmp}, s{s_w}, 3")
    a(f"v_add_u32 v{t0}, s{s_tmp}, v{t0}")
    a(f"v_lshrrev_b32 v{t1}, 1, v{t0}")
    a(f"v_and_b32 v{t1}, 7, v{t1}")
    a(f"v_xor_b32 v{t1}, v{t1}, v{t2}")
    a(f"v_lshlrev_b32 v{t1}, 4, v{t1}")
    a(f"v_mul_u32_u24 v{xo}, {X_RS}, v{t0}")
    a(f"v_add_u32 v{xo}, v{xo}, v{t1}")
    a(f"s_mul_i32 s{s_xso}, s{s_t}, {128*X_RS}")
    a(f"s_lshl_b32 s{s_xw}, s{s_w}, 10")
    vq = Q()
    def x_dma(c):
        slot = c % 6
        a(f"s_add_u32 m0, s{s_xw}, {LDS_H+slot*16384}")
        a(f"s_add_u32 s{s_tmp}, s{s_xso}, {c*128}")
        a(f"buffer_load_dwordx4 v{xo}, {sr(SX,4)}, s{s_tmp} offen lds")
        vq.issue(f"x{c}")
        a(f"s_add_u32 m0, s{s_xw}, {LDS_H+slot*16384+8192}")
        a(f"s_add_u32 s{s_tmp}, s{s_xso}, {c*128+64*X_RS}")
        a(f"buffer_load_dwordx4 v{xo}, {sr(SX,4)}, s{s_tmp} offen lds")
        vq.issue(f"x{c}")
    x_dma(0)
    a(f"v_lshrrev_b32 v{t1}, 4, v{v_lane}")
    a(f"v_and_b32 v{t1}, 1, v{t1}")
    a(f"v_lshlrev_b32 v{t1}, 2, v{t1}")
    a(f"v_xor_b32 v{t1}, v{t1}, v{t2}")
    a(f"v_lshlrev_b32 v{t1}, 4, v{t1}")
    a(f"v_mul_u32_u24 v{v_doff}, {W1_RS}, v{t0}")
    a(f"v_add_u32 v{v_doff}, v{v_doff}, v{t1}")
    a(f"v_mul_u32_u24 v{v_doffB}, {W2_RS}, v{t0}")
    a(f"v_add_u32 v{v_doffB}, v{v_doffB}, v{t1}")
    a(f"s_mul_i32 s{s_F0}, s{s_js}, 384")
    a(f"s_add_u32 s{s_wbase}, s{s_xw}, {LDS_RING}")
    a(f"s_mov_b32 s{s_wo}, 0")
    a(f"s_mov_b32 s{s_dstep}, {64*W1_RS}")
    a(f"s_lshl_b32 s{s_tmp}, s{s_P}, 6")
    a(f"s_add_u32 s{s_tmp}, s{s_tmp}, s{s_F0}")
    a(f"s_lshl_b32 s{s_dso}, s{s_tmp}, 1")
    g.dma_full(vq, "r0")
    m0_, m1_, m2_ = V_M, V_M+1, V_M+2
    a(f"v_mul_u32_u24 v{m0_}, 1366, v{v_tid}")
    a(f"v_lshrrev_b32 v{m0_}, 16, v{m0_}")
    a(f"v_mul_u32_u24 v{m1_}, 48, v{m0_}")
    a(f"v_sub_u32 v{m1_}, v{v_tid}, v{m1_}")
    a(f"v_mul_u32_u24 v{V_M+3}, 1536, v{m0_}")
    a(f"v_lshlrev_b32 v{m2_}, 5, v{m1_}")
    a(f"v_add_u32 v{V_M+3}, v{V_M+3}, v{m2_}")
    a(f"v_mul_u32_u24 v{m2_}, {4*W1_RS}, v{m0_}")
    a(f"v_lshlrev_b32 v{m1_}, 4, v{m1_}")
    a(f"v_add_u32 v{m2_}, v{m2_}, v{m1_}")
    a(f"v_cmp_lt_u32 vcc, 8, v{m0_}")
    a(f"v_mov_b32 v{m1_}, {OOB}")
    a(f"s_mul_i32 s{s_tmp}, s{s_t}, {36*W1_RS}")
    a(f"v_cndmask_b32 v{m2_}, v{m2_}, v{m1_}, vcc")
    a(f"s_lshl_b32 s{s_tmp2}, s{s_F0}, 1")
    a(f"s_add_u32 s{s_tmp}, s{s_tmp}, s{s_tmp2}")
    for q in range(4):
        a(f"buffer_load_dwordx4 {vr(V_CS+4*q,4)}, v{m2_}, {sr(SD,4)}, s{s_tmp} offen")
        vq.issue("cs")
        if q < 3: a(f"s_add_u32 s{s_tmp}, s{s_tmp}, {W1_RS}")
    a(f"v_min_u32 v{V_M+3}, {9*1536+47*32}, v{V_M+3}")
    x_dma(1); g.dma_full(vq, "r1")
    a(f"s_and_b32 s{s_i}, s{s_w}, 3")
    a(f"s_lshr_b32 s{s_jj}, s{s_w}, 2")
    a(f"v_and_b32 v{t0}, 15, v{v_lane}")
    a(f"v_lshrrev_b32 v{t0}, 2, v{t0}")
    a(f"v_lshrrev_b32 v{t1}, 1, v{t0}")
    a(f"v_xor_b32 v{t1}, s{s_jj}, v{t1}")
    a(f"v_lshlrev_b32 v{t1}, 6, v{t1}")
    a(f"v_lshlrev_b32 v{t0}, 7, v{t0}")
    a(f"v_add_u32 v{t0}, v{t0}, v{t1}")
    a(f"v_lshrrev_b32 v{t1}, 4, v{v_lane}")
    a(f"v_and_b32 v{t1}, 1, v{t1}")
    a(f"v_lshlrev_b32 v{t1}, 5, v{t1}")
    a(f"v_add_u32 v{t0}, v{t0}, v{t1}")
    a(f"v_and_b32 v{t1}, 3, v{v_lane}")
    a(f"v_lshlrev_b32 v{t1}, 3, v{t1}")
    a(f"v_add_u32 v{t0}, v{t0}, v{t1}")
    a(f"v_lshrrev_b32 v{t1}, 5, v{v_lane}")
    a(f"v_lshlrev_b32 v{t2}, 10, v{t1}")
    a(f"v_add_u32 v{v_abaseA}, v{t0}, v{t2}")
    a(f"v_lshlrev_b32 v{t2}, 9, v{t1}")
    a(f"v_add_u32 v{v_abaseB}, v{t0}, v{t2}")
    a(f"v_mov_b32 v{v_abase}, v{v_abaseA}")
    a(f"v_mov_b32 v{v_rd}, v{v_abaseA}")
    a(f"s_mov_b32 s{s_ro}, 0")
    a(f"v_and_b32 v{t0}, 31, v{v_lane}")
    a(f"v_lshlrev_b32 v{v_l16}, 4, v{t0}")
    a(f"s_lshl_b32 s{s_tmp}, s{s_i}, 5")
    a(f"v_add_u32 v{t0}, s{s_tmp}, v{t0}")
    a(f"v_lshrrev_b32 v{t2}, 1, v{t0}")
    a(f"v_and_b32 v{t2}, 7, v{t2}")
    a(f"v_xor_b32 v{t2}, v{t2}, v{t1}")
    a(f"v_lshlrev_b32 v{t2}, 4, v{t2}")
    a(f"v_lshlrev_b32 v{t0}, 7, v{t0}")
    a(f"v_add_u32 v{v_xrd}, v{t0}, v{t2}")
    a(f"v_add_u32 v{v_xrd}, {LDS_H}, v{v_xrd}")
    a(f"v_lshlrev_b32 v{v_st}, 4, v{v_lane}")
    a(f"v_mov_b32 v{v_S}, 0")
    g.stamp()
    a(f"s_waitcnt vmcnt({vq.need('cs')})")
    acc = V_FR
    for r in range(4):
        a(f"v_lshlrev_b32 v{acc+2*r}, 16, v{V_CS+r}")
        a(f"v_and_b32 v{acc+2*r+1}, 0xffff0000, v{V_CS+r}")
    for q in range(1, 4):
        for r in range(4):
            a(f"v_lshlrev_b32 v{V_FR+8}, 16, v{V_CS+4*q+r}")
            a(f"v_and_b32 v{V_FR+9}, 0xffff0000, v{V_CS+4*q+r}")
            a(f"v_add_f32 v{acc+2*r}, v{acc+2*r}, v{V_FR+8}")
            a(f"v_add_f32 v{acc+2*r+1}, v{acc+2*r+1}, v{V_FR+9}")
    a(f"ds_write_b128 v{V_M+3}, {vr(acc,4)} offset:{LDS_SCR}")
    a(f"ds_write_b128 v{V_M+3}, {vr(acc+4,4)} offset:{LDS_SCR+16}")
    x_dma(2); g.dma_full(vq, "r2")
    x_dma(3); g.dma_full(vq, "r3")
    a("s_waitcnt lgkmcnt(0)")
    a("s_barrier")
    g.stamp()
    a(f"v_lshlrev_b32 v{V_M+4}, 2, v{v_tid}")
    a(f"v_min_u32 v{V_M+5}, {383*4}, v{V_M+4}")
    for q in range(9):
        a(f"ds_read_b32 v{V_CS+q}, v{V_M+5} offset:{LDS_SCR+q*1536}")
    a(f"v_cmp_gt_u32 vcc, 384, v{v_tid}")
    a(f"v_mov_b32 v{V_M+5}, {OOB}")
    a(f"s_mul_i32 s{s_tmp}, s{s_js}, 16")
    a(f"v_cndmask_b32 v{V_M+4}, v{V_M+5}, v{V_M+4}, vcc")
    a(f"s_add_u32 s{s_tmp}, s{s_tmp}, s{s_t}")
    a(f"s_mul_i32 s{s_tmp}, s{s_tmp}, 1536")
    a(f"s_add_u32 s{s_tmp2}, s{s_tmp}, {WS_CSP}")
    a("s_waitcnt lgkmcnt(0)")
    for q in range(1, 9):
        a(f"v_add_f32 v{V_CS}, v{V_CS}, v{V_CS+q}")
    a(f"buffer_store_dword v{V_CS}, v{V_M+4}, {sr(SW,4)}, s{s_tmp2} offen sc0 sc1")
    vq.issue("cst")
    x_dma(4); g.dma_full(vq, "r4")
    x_dma(5); g.dma_full(vq, "r5")
    a(f"s_waitcnt vmcnt({vq.need('x0','r0')})")
    a("s_barrier")
    g.stamp()
    lq = Q()
    def y_read(c):
        slot = c % 6
        for s in range(4):
            reg = V_Y + (4*c + s) * 4
            tmp = V_M + 4 + (s % 2)
            off = slot * 16384
            a(f"v_xor_b32 v{tmp}, {s*32}, v{v_xrd}")
            if off >= 65536:
                a(f"v_add_u32 v{tmp}, {off}, v{tmp}")
                a(f"ds_read_b128 {vr(reg,4)}, v{tmp}")
            else:
                a(f"ds_read_b128 {vr(reg,4)}, v{tmp} offset:{off}")
            lq.issue(f"y{c}")
    def stats(c):
        lab = a.label("Lst"); lab2 = a.label("Lst2")
        a(f"s_cmp_eq_u32 s{s_jj}, 0")
        a(f"s_cbranch_scc0 {lab}")
        for r in range(16):
            a(f"v_dot2c_f32_bf16 v{v_S}, 0x3f803f80, v{V_Y+16*c+r}")
        a(f"s_branch {lab2}")
        a(f"{lab}:")
        for r in range(16):
            a(f"v_dot2c_f32_bf16 v{v_S}, v{V_Y+16*c+r}, v{V_Y+16*c+r}")
        a(f"{lab2}:")
    y_read(0)
    for s in range(4):
        g.frag_read(lq, s, s, 512, f"f{s}")
    for x in g.rd_salu() + g.rd_valu(): a(x)
    nofill = [[] for _ in range(36)]
    for e in range(9):
        misc = [[] for _ in range(36)]
        need = [f"r{e+1}"] + ([f"x{e+1}"] if e + 1 <= 8 else [])
        if e == 2:
            need = need + ["cst"]
            def sig():
                lab = a.label("Lsig")
                a(f"s_cmp_eq_u32 s{s_w}, 0")
                a(f"s_cbranch_scc0 {lab}")
                a(f"v_mov_b32 v{V_M}, 1")
                a(f"s_lshl_b32 s{s_tmp}, s{s_js}, 2")
                a(f"v_mov_b32 v{V_M+1}, s{s_tmp}")
                a("s_mov_b64 exec, 1")
                a(f"buffer_atomic_add v{V_M}, v{V_M+1}, {sr(SG,4)}, 0 offen sc1")
                a("s_mov_b64 exec, -1")
                a(f"{lab}:")
            misc[4*e].append(sig)
        if e + 1 <= 8: misc[4*e].append(lambda e=e: y_read(e + 1))
        if e < 3: misc[4*e+2].append(lambda e=e: x_dma(6 + e))
        misc[4*e+1].append(lambda e=e: stats(e))
        if e == 1:
            def sw():
                a(f"s_add_u32 s{s_Pn}, s{s_P}, 1")
                a(f"s_cmp_eq_u32 s{s_Pn}, 6")
                a(f"s_cselect_b32 s{s_Pn}, 0, s{s_Pn}")
                a(f"s_lshl_b32 s{s_tmp}, s{s_Pn}, 6")
                a(f"s_add_u32 s{s_tmp}, s{s_tmp}, s{s_F0}")
                a(f"s_lshl_b32 s{s_dso}, s{s_tmp}, 1")
            misc[4*e+2].append(sw)
        if e == 0:
            emit_epoch(g, e, 36, vq, lq, need, 512, V_Y, nofill, misc, ["r6", "r7"], tagp="f", force_lgkm=lq.need(f"y{e}"), ndma=2)
        else:
            emit_epoch(g, e, 36, vq, lq, need, 512, V_Y, nofill, misc, [f"r{e+7}"], tagp="f", force_lgkm=lq.need(f"y{e}"))
    g.stamp()
    a(f"v_mov_b32 v{V_M}, v{v_S}")
    a("s_nop 1")
    a(f"v_permlane32_swap_b32 v{v_S}, v{V_M}")
    a("s_nop 1")
    a(f"v_add_f32 v{v_S}, v{v_S}, v{V_M}")
    STAT = LDS_H + 1024
    a(f"s_lshl_b32 s{s_tmp}, s{s_i}, 8")
    a(f"s_lshl_b32 s{s_tmp2}, s{s_jj}, 7")
    a(f"s_add_u32 s{s_tmp}, s{s_tmp}, s{s_tmp2}")
    a(f"s_add_u32 s{s_tmp}, s{s_tmp}, {STAT}")
    a(f"v_lshrrev_b32 v{V_M+1}, 2, v{v_l16}")
    a(f"v_add_u32 v{V_M+2}, s{s_tmp}, v{V_M+1}")
    a(f"ds_write_b32 v{V_M+2}, v{v_S}")
    a(f"s_cmp_eq_u32 s{s_w}, 0")
    a("s_cbranch_scc0 L_nopoll")
    a(f"s_lshl_b32 s{s_tmp}, s{s_js}, 2")
    a(f"v_mov_b32 v{V_M+3}, s{s_tmp}")
    a("L_poll:")
    a(f"buffer_load_dword v{V_M+4}, v{V_M+3}, {sr(SG,4)}, 0 offen sc1")
    a("s_waitcnt vmcnt(0)")
    a(f"v_readfirstlane_b32 s{s_tmp}, v{V_M+4}")
    a("s_nop 3")
    a(f"s_cmp_ge_u32 s{s_tmp}, 16")
    a("s_cbranch_scc1 L_nopoll")
    a("s_sleep 1")
    a("s_branch L_poll")
    a("L_nopoll:")
    a("s_waitcnt lgkmcnt(0)")
    a("s_barrier")
    g.stamp()
    a(f"v_lshlrev_b32 v{V_M+3}, 2, v{v_tid}")
    a(f"v_cmp_gt_u32 vcc, 384, v{v_tid}")
    a(f"v_mov_b32 v{V_M+4}, {OOB}")
    a(f"s_mul_i32 s{s_tmp}, s{s_js}, {16*1536}")
    a(f"v_cndmask_b32 v{V_M+3}, v{V_M+4}, v{V_M+3}, vcc")
    a(f"s_add_u32 s{s_tmp}, s{s_tmp}, {WS_CSP}")
    for q in range(16):
        a(f"buffer_load_dword v{V_CS+q}, v{V_M+3}, {sr(SW,4)}, s{s_tmp} offen sc0 sc1")
        if q < 15: a(f"s_add_u32 s{s_tmp}, s{s_tmp}, 1536")
    a(f"v_lshrrev_b32 v{V_M+4}, 1, v{V_M+3}")
    a(f"s_lshl_b32 s{s_tmp}, s{s_F0}, 1")
    a(f"buffer_load_ushort v{V_M+5}, v{V_M+4}, {sr(SB,4)}, s{s_tmp} offen")
    a(f"s_lshl_b32 s{s_tmp}, s{s_i}, 8")
    a(f"s_add_u32 s{s_tmp}, s{s_tmp}, {STAT}")
    a(f"v_add_u32 v{V_M+2}, s{s_tmp}, v{V_M+1}")
    a(f"ds_read_b32 v{V_T}, v{V_M+2}")
    a(f"ds_read_b32 v{V_T+1}, v{V_M+2} offset:128")
    a("s_waitcnt lgkmcnt(0)")
    mu, var, sd, tt = V_T, V_T+1, V_T+2, V_T+3
    a(f"v_mul_f32 v{mu}, {f2u(1.0/576):#x}, v{mu}")
    a(f"v_mul_f32 v{var}, {f2u(1.0/576):#x}, v{var}")
    a(f"v_fma_f32 v{var}, -v{mu}, v{mu}, v{var}")
    a(f"v_max_f32 v{var}, 0, v{var}")
    a(f"v_add_f32 v{var}, {f2u(1e-5):#x}, v{var}")
    a(f"v_sqrt_f32 v{sd}, v{var}")
    a("s_nop 0")
    a(f"v_rcp_f32 v{v_rstd}, v{sd}")
    a("s_nop 0")
    a(f"v_mul_f32 v{v_k1r}, {f2u(K1C):#x}, v{v_rstd}")
    a(f"v_mul_f32 v{v_k2r}, v{v_rstd}, v{v_rstd}")
    a(f"v_mul_f32 v{v_k2r}, v{v_k2r}, v{v_rstd}")
    a(f"v_mul_f32 v{v_k2r}, {f2u(K2C):#x}, v{v_k2r}")
    a("s_waitcnt vmcnt(0)")
    for q in range(1, 16):
        a(f"v_add_f32 v{V_CS}, v{V_CS}, v{V_CS+q}")
    a(f"v_cvt_pk_bf16_f32 v{V_HP}, v{V_CS}, v{V_CS}")
    a(f"v_lshlrev_b32 v{V_CS+1}, 16, v{V_HP}")
    a(f"v_sub_f32 v{V_CS+1}, v{V_CS}, v{V_CS+1}")
    a(f"v_cvt_pk_bf16_f32 v{V_CS+1}, v{V_CS+1}, v{V_CS+1}")
    a(f"v_and_b32 v{V_CS+1}, 0xffff, v{V_CS+1}")
    a(f"v_lshlrev_b32 v{V_CS+2}, 16, v{V_M+5}")
    a(f"v_or_b32 v{V_HP+1}, v{V_CS+1}, v{V_CS+2}")
    a(f"v_mov_b32 v{V_HP+2}, v{V_M+5}")
    a(f"v_mov_b32 v{V_HP+3}, 0")
    a(f"v_lshrrev_b32 v{V_M+3}, 5, v{v_tid}")
    a(f"v_lshlrev_b32 v{V_M+3}, 11, v{V_M+3}")
    a(f"v_add_u32 v{V_M+3}, v{V_M+3}, v{v_l16}")
    a(f"v_add_u32 v{V_M+3}, {LDS_H}, v{V_M+3}")
    a(f"v_cmp_gt_u32 vcc, 384, v{v_tid}")
    a("s_and_saveexec_b64 s[52:53], vcc")
    a("s_cbranch_execz L_notab")
    for i in range(4):
        if i*24576 < 65536:
            a(f"ds_write_b128 v{V_M+3}, {vr(V_HP,4)} offset:{i*24576}")
        else:
            a(f"v_add_u32 v{V_M+3}, {i*24576}, v{V_M+3}")
            a(f"ds_write_b128 v{V_M+3}, {vr(V_HP,4)}")
    a("L_notab:")
    a("s_mov_b64 exec, s[52:53]")
    nm, mh, ml, sh, sl = V_T+4, V_T+5, V_T+6, V_T+7, V_M+6
    a(f"v_sub_f32 v{nm}, 0, v{mu}")
    a(f"v_cvt_pk_bf16_f32 v{mh}, v{nm}, v{sd}")
    a(f"v_lshlrev_b32 v{ml}, 16, v{mh}")
    a(f"v_and_b32 v{sh}, 0xffff0000, v{mh}")
    a(f"v_sub_f32 v{ml}, v{nm}, v{ml}")
    a(f"v_sub_f32 v{sl}, v{sd}, v{sh}")
    a(f"v_cvt_pk_bf16_f32 v{ml}, v{ml}, v{sl}")
    a(f"v_mov_b32 v{V_AUGB+1}, v{mh}")
    a(f"v_and_b32 v{V_AUGB}, 0xffff, v{mh}")
    a(f"v_lshlrev_b32 v{tt}, 16, v{ml}")
    a(f"v_or_b32 v{V_AUGB}, v{V_AUGB}, v{tt}")
    a(f"v_lshrrev_b32 v{V_AUGB+2}, 16, v{ml}")
    a(f"v_mov_b32 v{V_AUGB+3}, 0")
    a(f"v_cmp_gt_u32 vcc, 32, v{v_lane}")
    a("s_nop 1")
    for r in range(3):
        a(f"v_cndmask_b32 v{V_AUGB+r}, 0, v{V_AUGB+r}, vcc")
    a("s_waitcnt lgkmcnt(0)")
    a("s_barrier")
    g.stamp()
    def tile_salu():
        return [f"s_lshl_b32 s{s_tmp}, s{s_P}, 1", f"s_add_u32 s{s_tmp}, s{s_tmp}, s{s_jj}", f"s_mul_i32 s{s_tmp2}, s{s_i}, 12",
                f"s_add_u32 s{s_tmp2}, s{s_tmp2}, s{s_tmp}", f"s_lshl_b32 s{s_tmp2}, s{s_tmp2}, 11", f"s_add_u32 s{s_hwn}, s{s_tmp2}, {LDS_H}"]
    for x in tile_salu(): a(x)
    a(f"v_add_u32 v{V_M}, s{s_hwn}, v{v_l16}")
    a(f"ds_read_b128 {vr(V_AUGA,4)}, v{V_M}")
    a(f"v_add_u32 v{v_hw}, s{s_hwn}, v{v_st}")
    a("s_waitcnt lgkmcnt(0)")
    a(f"{MFMA} {vr(V_G,16)}, {vr(V_AUGA,4)}, {vr(V_AUGB,4)}, {vr(V_G,16)}")
    a(f"s_mov_b32 s{s_P}, s{s_Pn}")
    a(f"s_mov_b32 s{s_n}, 1")
    a(f"s_mov_b32 s54, s{s_Pd0}")
    def tile_salu2(): return tile_salu()
    def phaseA(variant):
        L = "L_A_" + variant
        a(".p2align 3")
        a(f"{L}:")
        g.inloop = True
        vq = Q(); lq = Q()
        for e in range(-9, 0): vq.issue(f"r{e+7}")
        for s in range(0, 4): lq.issue(f"g{s}"); lq.issue(f"g{s}")
        if variant == "lead": slots = [sl for sl in range(1, 35)]
        else: slots = [sl for sl in range(1, 35) if sl % 4 != 3]
        base = g.flagval("cap", 24) if variant == "lag" else g.flagval("capl", 20)
        ok = False; extra = 0
        while not ok:
            caps = {sl: base for sl in slots}
            for j in range(extra):
                caps[slots[(j * len(slots)) // max(extra, 1)]] = base + 4
            ok, fill, dsw = gelu_sched(slots, 36, caps, maxT=g.flagval("maxT", 2), GS=g.flagval("gs", 4), gapP=g.flagval("gp", 2), gapT=g.flagval("gt", 3))
            if not ok: extra += 1
            assert extra <= len(slots)
        if "nogelu" in g.flags:
            fill = [[] for _ in range(36)]; dsw = [[] for _ in range(36)]
        g.info = getattr(g, "info", "") + f" [{variant}: gelu extra slots {extra}]"
        misc = [list(dsw[s]) for s in range(36)]
        slack = [[] for _ in range(9)]
        def sw():
            a(f"s_add_u32 s{s_Pn}, s{s_P}, 1")
            a(f"s_cmp_eq_u32 s{s_Pn}, 6")
            a(f"s_cselect_b32 s{s_Pn}, 0, s{s_Pn}")
            a(f"s_lshl_b32 s{s_tmp}, s{s_Pn}, 6")
            a(f"s_add_u32 s{s_tmp}, s{s_tmp}, s{s_F0}")
            a(f"s_lshl_b32 s{s_dso}, s{s_tmp}, 1")
            a(f"s_cmp_eq_u32 s{s_n}, 5")
            a(f"s_cbranch_scc1 {L}_sw")
            a(f"{L}_swret:")
        slack[1].append(sw)
        def sw2a():
            a(f"s_add_u32 s55, s54, 1")
            a(f"s_cmp_eq_u32 s55, 9")
            a(f"s_cselect_b32 s55, 0, s55")
            a(f"s_mul_i32 s56, s{s_F0}, {W2_RS}")
            a(f"s_lshl_b32 s{s_tmp3}, s55, 7")
            a(f"s_add_u32 s56, s56, s{s_tmp3}")
        def sw2b():
            a(f"s_cmp_eq_u32 s{s_n}, 5")
            a(f"s_cselect_b32 s{s_dso}, s56, s{s_dso}")
            a(f"s_cselect_b32 s54, s55, s54")
        slack[6].append(sw2a)
        slack[7].append(sw2b)
        ts = tile_salu()
        slack[3] += ts[:3]; slack[4] += ts[3:]
        def augrd():
            a(f"v_add_u32 v{V_M}, s{s_hwn}, v{v_l16}")
            a(f"ds_read_b128 {vr(V_AUGA,4)}, v{V_M}")
            lq.issue("aug")
        misc[4*8+0].append(augrd)
        slack[8] += [f"s_mov_b32 s{s_P}, s{s_Pn}", f"s_add_u32 s{s_n}, s{s_n}, 1"]
        def endx(s):
            if s == 35:
                a(f"s_waitcnt lgkmcnt({min(15, lq.need('aug'))})")
                a(f"{MFMA} {vr(V_G,16)}, {vr(V_AUGA,4)}, {vr(V_AUGB,4)}, {vr(V_G,16)}")
                a(f"v_add_u32 v{v_hw}, s{s_hwn}, v{v_st}")
        for e in range(9):
            if "profA" in g.flags: a(f"s_memtime s[{80+2*e}:{81+2*e}]")
            emit_epoch(g, e, 36, vq, lq, [f"r{e+1}"], 512, V_Y, fill, misc, [f"r{e+7}"], end_extra=endx, variant=variant, slack=slack[e])
        if "profA" in g.flags: a(f"s_memtime s[98:99]")
        a(f"s_cmp_le_u32 s{s_n}, 5")
        a(f"s_cbranch_scc1 {L}")
        a("s_branch L_A_done")
        a(f"{L}_sw:")
        a(f"s_mov_b32 s{SD}, s{S_W2}")
        a(f"s_mov_b32 s{SD+1}, s{S_W2+1}")
        a(f"s_mov_b32 s{SD+2}, {SIZES['B_w2']}")
        a(f"s_mov_b32 s{s_dstep}, {64*W2_RS}")
        a(f"s_mul_i32 s{s_dso}, s{s_F0}, {W2_RS}")
        a(f"s_lshl_b32 s{s_tmp}, s54, 7")
        a(f"s_add_u32 s{s_dso}, s{s_dso}, s{s_tmp}")
        a(f"v_mov_b32 v{v_doff}, v{v_doffB}")
        a(f"s_branch {L}_swret")
    a(f"s_cmp_eq_u32 s{s_jj}, 1")
    a("s_cbranch_scc1 L_A_lag")
    phaseA("lead")
    phaseA("lag")
    a("L_A_done:")
    g.stamp()
    a("s_nop 15")
    for ins in gelu_plain(): a(ins)
    a("s_waitcnt vmcnt(0) lgkmcnt(0)")
    a("s_barrier")
    a(f"s_mul_i32 s{s_tmp}, s{s_i}, {12*2048}")
    a(f"s_add_u32 s{s_tmp}, s{s_tmp}, {LDS_H}")
    a(f"v_add_u32 v{V_M}, s{s_tmp}, v{v_st}")
    for s in range(24):
        a(f"ds_read_b128 {vr(V_Y+4*s,4)}, v{V_M} offset:{s*1024}")
    a(f"v_mov_b32 v{v_abase}, v{v_abaseB}")
    a(f"s_sub_u32 s{s_tmp}, s{s_ro}, {SLOT}")
    a(f"s_and_b32 s{s_tmp}, s{s_tmp}, {RINGSZ-1}")
    a(f"v_add_u32 v{v_rd}, s{s_tmp}, v{v_abase}")
    lq = Q()
    a("s_waitcnt lgkmcnt(0)")
    for s in range(4):
        g.frag_read(lq, s, s, 1024, f"g{s}")
    a(f"v_add_u32 v{v_rd}, s{s_ro}, v{v_abase}")
    g.stamp()
    a(f"s_lshl_b32 s{s_tmp}, s{s_t}, 2")
    a(f"s_add_u32 s{s_tmp}, s{s_tmp}, s{s_i}")
    a(f"s_mul_i32 s{s_tmp}, s{s_tmp}, {18*16}")
    a(f"s_add_u32 s{s_tmp}, s{s_tmp}, s{s_js}")
    a(f"s_lshl_b32 s{s_posbase}, s{s_tmp}, 11")
    a(f"s_mov_b32 s{s_pos}, {OOB}")
    a(f"s_mov_b32 s{s_P}, s{s_Pd0}")
    a(f"s_mov_b32 s{s_n}, 0")
    def epi_list():
        L = []
        for r in range(16): L.append(f"v_mul_f32 v{V_G+r}, v{V_G+r}, v{v_rstd}")
        for r in range(8): L.append(f"v_cvt_pk_bf16_f32 v{V_HP+r}, v{V_G+2*r}, v{V_G+2*r+1}")
        return L
    st0 = f"buffer_store_dwordx4 {vr(V_HP,4)}, v{v_st}, {sr(SW,4)}, s{s_pos} offen"
    st1 = f"buffer_store_dwordx4 {vr(V_HP+4,4)}, v{v_st}, {sr(SW,4)}, s{s_pos} offen offset:1024"
    def phaseB(variant):
        L = "L_B_" + variant
        a(".p2align 3")
        a(f"{L}:")
        fillB = [[] for _ in range(24)]
        miscB = [[] for _ in range(24)]
        slack = [[] for _ in range(6)]
        el = epi_list()
        sl = [2, 4, 5, 6, 8, 9]
        for idx, ins in enumerate(el): fillB[sl[idx * len(sl) // len(el)]].append(ins)
        if "noepi" in g.flags: fillB = [[] for _ in range(24)]
        e0, e1 = (2, 3) if variant == "lead" else (3, 4)
        slack[e0].append(st0); slack[e1].append(st1)
        def swB():
            a(f"s_add_u32 s54, s54, 1")
            a(f"s_cmp_eq_u32 s54, 9")
            a(f"s_cselect_b32 s54, 0, s54")
            a(f"s_mul_i32 s{s_dso}, s{s_F0}, {W2_RS}")
            a(f"s_lshl_b32 s{s_tmp}, s54, 7")
            a(f"s_add_u32 s{s_dso}, s{s_dso}, s{s_tmp}")
        slack[4].insert(0, swB)
        slack[5] += [f"s_lshl_b32 s{s_tmp}, s{s_P}, 1", f"s_add_u32 s{s_tmp}, s{s_tmp}, s{s_jj}", f"s_lshl_b32 s{s_tmp}, s{s_tmp}, 15",
                     f"s_add_u32 s{s_pos}, s{s_posbase}, s{s_tmp}"]
        slack[0] += [f"s_add_u32 s{s_n}, s{s_n}, 1"]
        slack[1] += []
        miscB[21] += [f"s_add_u32 s57, s{s_P}, 1", f"s_cmp_eq_u32 s57, 9", f"s_cselect_b32 s57, 0, s57"]
        vq = Q(); lq = Q()
        for e in range(6):
            vq.issue(f"r{e+1}")
            for ins in slack[e]:
                if isinstance(ins, str) and ins.startswith("buffer_store"): vq.issue("st")
        for s in range(4): lq.issue(f"g{s}"); lq.issue(f"g{s}")
        for e in range(6):
            if "prof" in g.flags: a(f"s_memtime s[{80+2*e}:{81+2*e}]")
            emit_epoch(g, e, 24, vq, lq, [f"r{e+1}"], 1024, V_Y, fillB, miscB, [f"r{e+7}"], variant=variant, slack=slack[e])
        if "prof" in g.flags: a(f"s_memtime s[92:93]")
        a(f"s_mov_b32 s{s_P}, s57")
        a(f"s_cmp_lt_u32 s{s_n}, 9")
        a(f"s_cbranch_scc1 {L}")
        if variant == "lead": a("s_branch L_B_done")
    a(f"s_cmp_eq_u32 s{s_jj}, 1")
    a("s_cbranch_scc1 L_B_lag")
    phaseB("lead")
    phaseB("lag")
    a("L_B_done:")
    g.stamp()
    a("s_nop 15")
    for ins in epi_list(): a(ins)
    a(st0); a(st1)
    a("s_waitcnt vmcnt(0) lgkmcnt(0)")
    g.stamp()
    if g.stamps:
        a("s_waitcnt lgkmcnt(0)")
        a(f"s_lshl_b32 s{s_tmp}, s2, 3")
        a(f"s_add_u32 s{s_tmp}, s{s_tmp}, s{s_w}")
        a(f"s_lshl_b32 s{s_tmp}, s{s_tmp}, 6")
        a(f"s_add_u32 s{s_tmp}, s{s_tmp}, {WS_STAMP}")
        a("s_mov_b64 exec, 1")
        a(f"v_mov_b32 v{V_M+1}, 0")
        lst = [S_ST+2*i for i in range(g.nst)]
        if "prof" in g.flags: lst = [80, 82, 84, 86, 88, 90, 92]
        if "profA" in g.flags: lst = [80, 82, 84, 86, 88, 90, 92, 94, 96, 98]
        if g.flagval("fine", -1) >= 0: lst = [80, 82, 84, 86, 88, 90, 92, 94]
        for i in range(len(lst)):
            a(f"v_mov_b32 v{V_M}, s{lst[i]}")
            a(f"buffer_store_dword v{V_M}, v{V_M+1}, {sr(SW,4)}, s{s_tmp} offen offset:{4*i}")
        a("s_waitcnt vmcnt(0)")
```

```python
import sys
from asmlib import *
from mlp3 import *
import k2_red
from attn2 import gen_attn
from k2_red import gen_k2

def gen_k1(stamps=False, flags=()):
    g = Gen(stamps, flags)
    a = g.a
    a("s_cmp_ge_u32 s2, 256")
    a("s_cbranch_scc1 L_end1")
    a(f"s_load_dwordx2 s[{SW}:{SW+1}], s[0:1], {KA['ws']}")
    a(f"s_load_dwordx2 s[{SG}:{SG+1}], s[0:1], {KA['dbg']}")
    g.stamp()
    a(f"s_and_b32 s{s_tmp}, s2, 7")
    a(f"s_lshr_b32 s{s_tmp2}, s2, 3")
    a(f"s_cmp_ge_u32 s{s_tmp2}, 24")
    a("s_cbranch_scc1 L_attn")
    a(f"s_load_dwordx2 s[{SX}:{SX+1}], s[0:1], {KA['A_x']}")
    a(f"s_load_dwordx2 s[{SD}:{SD+1}], s[0:1], {KA['B_w1']}")
    a(f"s_load_dwordx2 s[{SB}:{SB+1}], s[0:1], {KA['B_b1']}")
    a(f"s_load_dwordx2 s[{S_W2}:{S_W2+1}], s[0:1], {KA['B_w2']}")
    a(f"s_mul_i32 s{s_tmp3}, s{s_tmp2}, 43")
    a(f"s_lshr_b32 s{s_tmp3}, s{s_tmp3}, 8")
    a(f"s_mul_i32 s{s_js}, s{s_tmp3}, 6")
    a(f"s_sub_u32 s{s_js}, s{s_tmp2}, s{s_js}")
    a(f"s_and_b32 s{s_t}, s{s_tmp}, 1")
    a(f"s_mul_i32 s{s_t}, s{s_t}, 6")
    a(f"s_add_u32 s{s_js}, s{s_js}, s{s_t}")
    a(f"s_lshr_b32 s{s_t}, s{s_tmp}, 1")
    a(f"s_lshl_b32 s{s_t}, s{s_t}, 2")
    a(f"s_add_u32 s{s_t}, s{s_t}, s{s_tmp3}")
    if "norot" in flags:
        a(f"s_mov_b32 s{s_P}, 0"); a(f"s_mov_b32 s{s_Pd0}, 0")
    else:
        a(f"s_mov_b32 s{s_P}, s{s_tmp3}")
        a(f"s_lshl_b32 s{s_Pd0}, s{s_tmp3}, 1")
    a("s_waitcnt lgkmcnt(0)")
    for (r, n) in ((SX, "A_x"), (SD, "B_w1"), (SW, "ws"), (SG, "dbg"), (SB, "B_b1")):
        finish_srd(a, r, n)
    gen_mlp(g)
    a("s_branch L_end1")
    a("L_attn:")
    if "noattn" not in flags:
        a(f"s_load_dwordx2 s[{SX}:{SX+1}], s[0:1], {KA['A_x']}")
        a(f"s_load_dwordx2 s[{SD}:{SD+1}], s[0:1], {KA['A_wqkv']}")
        a(f"s_load_dwordx2 s[{S_W2}:{S_W2+1}], s[0:1], {KA['A_wo']}")
        a(f"s_load_dwordx2 s[58:59], s[0:1], {KA['gate_w']}")
        a(f"s_sub_u32 s{s_tmp2}, s{s_tmp2}, 24")
        a(f"s_and_b32 s{s_js}, s{s_tmp}, 1")
        a(f"s_lshl_b32 s{s_js}, s{s_js}, 1")
        a(f"s_and_b32 s{s_tmp3}, s{s_tmp2}, 1")
        a(f"s_add_u32 s{s_js}, s{s_js}, s{s_tmp3}")
        a(f"s_lshr_b32 s{s_t}, s{s_tmp}, 1")
        a(f"s_lshl_b32 s{s_t}, s{s_t}, 2")
        a(f"s_lshr_b32 s{s_tmp3}, s{s_tmp2}, 1")
        a(f"s_add_u32 s{s_t}, s{s_t}, s{s_tmp3}")
        a(f"s_lshl_b32 s{s_Pd0}, s{s_tmp3}, 1")
        a("s_waitcnt lgkmcnt(0)")
        for (r, n) in ((SX, "A_x"), (SD, "A_wqkv"), (SW, "ws"), (SG, "dbg")):
            finish_srd(a, r, n)
        g.inloop = False
        gen_attn(g)
    a("L_end1:")
    print(g.info, file=sys.stderr)
    return kernel_wrap("k1_kernel", a.text(), vgpr=256, sgpr=102, accum=256)

if __name__ == "__main__":
    out = sys.argv[1]
    stamps = "stamps" in sys.argv
    mode = "b" if "bonly" in sys.argv else "full"
    k1 = gen_k1(stamps, flags=sys.argv[2:])
    k2 = gen_k2(mode)
    launches = [("k1_kernel", (256,1,1), (512,1,1), LDS_TOTAL), ("k2_kernel", (576,1,1), (256,1,1), 0)]
    open(out, "w").write(file_wrap(launches, [k1, k2]))
```

```python
from asmlib import *
from mlp3 import *

WQ_RS = 3456
TS = 272
LDS_T = LDS_H
LDS_KVA = LDS_T + 158 * TS
LDS_O2 = LDS_KVA + 16384
LDS_GW = LDS_T + 320 * TS
O2S = 304
assert LDS_O2 + 128 * O2S <= LDS_TOTAL and LDS_GW + 1152 <= LDS_TOTAL
WS_KV = WS_G + 2048 * 4
KVH = 18 * 80
DBG_Z = 16 * 4
DBG_KV = 20 * 4
s_g4 = s_js
s_mask = 56
v_row, v_cp, v_zf = 96, 97, 98
WPAIR = 144 * 128

def phi_chain(e, T, U):
    G = V_G + e
    return [(f"v_min_f32 v{T}, 0, v{G}", 4), (f"v_mul_f32 v{T}, {f2u(LOG2E):#x}, v{T}", 4), (f"v_exp_f32 v{T}, v{T}", 8),
            (f"v_max_f32 v{U}, 0, v{G}", 4), (f"v_add_f32 v{U}, {f2u(1e-6):#x}, v{U}", 4), (f"v_add_f32 v{T}, v{T}, v{U}", 4),
            (f"v_cndmask_b32 v{T}, v{G}, v{T}, s[{s_mask}:{s_mask+1}]", 4)]

def phi_groups():
    L = []
    for q in range(4):
        T = [V_T + e for e in range(4)]; U = [V_T + 4 + e for e in range(4)]
        ch = [phi_chain(4*q+e, T[e], U[e]) for e in range(4)]
        order = [0, 1, 3, 2, 4, 5, 6]
        for o in order:
            for e in range(4): L.append(ch[e][o][0])
        L.append(f"v_cvt_pk_bf16_f32 v{V_HP+2*q}, v{T[0]}, v{T[1]}")
        L.append(f"v_cvt_pk_bf16_f32 v{V_HP+2*q+1}, v{T[2]}, v{T[3]}")
        L.append(f"ds_write_b64 v{V_M+7}, {vr(V_HP+2*q,2)} offset:{16*q}")
    return L

def gen_attn(g):
    a = g.a
    stl = [60]
    def stp(reg=None):
        if g.stamps:
            r = reg if reg is not None else 64 + 2 * (len(stl) - 2)
            stl.append(r)
            a(f"s_memtime s[{r}:{r+1}]")
    a.c("attention role v2")
    a(f"v_and_b32 v{v_lane}, 63, v{v_tid}")
    a(f"v_lshrrev_b32 v{V_M}, 6, v{v_tid}")
    a("s_nop 0")
    a(f"v_readfirstlane_b32 s{s_w}, v{V_M}")
    t0, t1, t2, xo = V_T, V_T+1, V_T+2, 99
    a(f"v_lshrrev_b32 v{t0}, 3, v{v_lane}")
    a(f"v_and_b32 v{t2}, 7, v{v_lane}")
    a(f"s_lshl_b32 s{s_tmp}, s{s_w}, 3")
    a(f"v_add_u32 v{t0}, s{s_tmp}, v{t0}")
    a(f"v_lshrrev_b32 v{t1}, 1, v{t0}")
    a(f"v_and_b32 v{t1}, 7, v{t1}")
    a(f"v_xor_b32 v{t1}, v{t1}, v{t2}")
    a(f"v_lshlrev_b32 v{t1}, 4, v{t1}")
    a(f"v_mul_u32_u24 v{xo}, {X_RS}, v{t0}")
    a(f"v_add_u32 v{xo}, v{xo}, v{t1}")
    a(f"s_mul_i32 s{s_xso}, s{s_t}, {128*X_RS}")
    a(f"s_lshl_b32 s{s_xw}, s{s_w}, 10")
    vq = Q()
    def x_dma(c):
        slot = c % 6
        a(f"s_add_u32 m0, s{s_xw}, {LDS_H+slot*16384}")
        a(f"s_add_u32 s{s_tmp}, s{s_xso}, {c*128}")
        a(f"buffer_load_dwordx4 v{xo}, {sr(SX,4)}, s{s_tmp} offen lds")
        vq.issue(f"x{c}")
        a(f"s_add_u32 m0, s{s_xw}, {LDS_H+slot*16384+8192}")
        a(f"s_add_u32 s{s_tmp}, s{s_xso}, {c*128+64*X_RS}")
        a(f"buffer_load_dwordx4 v{xo}, {sr(SX,4)}, s{s_tmp} offen lds")
        vq.issue(f"x{c}")
    x_dma(0)
    a(f"v_lshrrev_b32 v{t1}, 4, v{v_lane}")
    a(f"v_and_b32 v{t1}, 1, v{t1}")
    a(f"v_lshlrev_b32 v{t1}, 2, v{t1}")
    a(f"v_xor_b32 v{v_cp}, v{t1}, v{t2}")
    a(f"v_mul_u32_u24 v{v_row}, {WQ_RS}, v{t0}")
    a(f"v_lshlrev_b32 v{t1}, 4, v{v_cp}")
    a(f"v_mul_u32_u24 v{v_doffB}, {W2_RS}, v{t0}")
    a(f"v_add_u32 v{v_doffB}, v{v_doffB}, v{t1}")
    a(f"s_mul_i32 s55, s{s_g4}, 144")
    def set_doff_list(sP):
        m = V_M
        return [f"s_lshl_b32 s{s_tmp}, s{sP}, 6",
                f"v_lshlrev_b32 v{m}, 3, v{v_cp}",
                f"v_add_u32 v{m}, s{s_tmp}, v{m}",
                f"v_mov_b32 v{m+1}, 576",
                f"v_mov_b32 v{m+2}, 1008",
                f"v_cmp_le_u32 vcc, 144, v{m}",
                f"v_mov_b32 v{m+3}, -288",
                "s_nop 0",
                f"v_cndmask_b32 v{m+1}, v{m+1}, v{m+2}, vcc",
                f"v_cmp_le_u32 vcc, 288, v{m}",
                f"v_add_u32 v{m}, s55, v{m}",
                "s_nop 0",
                f"v_cndmask_b32 v{m+1}, v{m+1}, v{m+3}, vcc",
                f"v_add_u32 v{m}, v{m}, v{m+1}",
                f"v_lshlrev_b32 v{m}, 1, v{m}",
                f"v_add_u32 v{v_doff}, v{v_row}, v{m}"]
    a(f"s_mov_b32 s{s_P}, 0")
    for x in set_doff_list(s_P): a(x)
    a(f"s_mov_b32 s{s_wo}, s{s_xw}")
    a(f"s_mov_b32 s{s_dstep}, {64*WQ_RS}")
    a(f"s_mov_b32 s{s_dso}, 0")
    g.dma_full(vq, "r0")
    x_dma(1); g.dma_full(vq, "r1")
    a(f"s_cmp_eq_u32 s{s_t}, 0")
    a("s_cbranch_scc0 L_nozero")
    for r in range(4): a(f"v_mov_b32 v{V_HP+r}, 0")
    a(f"v_lshlrev_b32 v{V_M}, 4, v{v_tid}")
    a(f"s_mul_i32 s{s_tmp}, s{s_g4}, {8*KVH}")
    a(f"s_add_u32 s{s_tmp}, s{s_tmp}, {WS_KV}")
    a(f"buffer_store_dwordx4 {vr(V_HP,4)}, v{V_M}, {sr(SW,4)}, s{s_tmp} offen sc0 sc1")
    a(f"v_add_u32 v{V_M}, 8192, v{V_M}")
    a(f"v_cmp_gt_u32 vcc, 11520, v{V_M}")
    a(f"v_mov_b32 v{V_M+1}, {OOB}")
    a("s_nop 0")
    a(f"v_cndmask_b32 v{V_M}, v{V_M+1}, v{V_M}, vcc")
    a(f"buffer_store_dwordx4 {vr(V_HP,4)}, v{V_M}, {sr(SW,4)}, s{s_tmp} offen sc0 sc1")
    a("s_waitcnt vmcnt(0)")
    a("s_barrier")
    a(f"s_cmp_eq_u32 s{s_w}, 0")
    a("s_cbranch_scc0 L_nozero")
    a(f"v_mov_b32 v{V_M}, 1")
    a(f"s_lshl_b32 s{s_tmp}, s{s_g4}, 2")
    a(f"s_add_u32 s{s_tmp}, s{s_tmp}, {DBG_Z}")
    a(f"v_mov_b32 v{V_M+1}, s{s_tmp}")
    a("s_mov_b64 exec, 1")
    a(f"buffer_atomic_add v{V_M}, v{V_M+1}, {sr(SG,4)}, 0 offen sc1")
    a("s_mov_b64 exec, -1")
    a("L_nozero:")
    for c in range(2, 6):
        x_dma(c); g.dma_full(vq, f"r{c}")
    a(f"s_and_b32 s{s_i}, s{s_w}, 3")
    a(f"s_lshr_b32 s{s_jj}, s{s_w}, 2")
    a(f"v_and_b32 v{t0}, 15, v{v_lane}")
    a(f"v_lshrrev_b32 v{t0}, 2, v{t0}")
    a(f"v_lshrrev_b32 v{t1}, 1, v{t0}")
    a(f"v_xor_b32 v{t1}, s{s_jj}, v{t1}")
    a(f"v_lshlrev_b32 v{t1}, 6, v{t1}")
    a(f"v_lshlrev_b32 v{t0}, 7, v{t0}")
    a(f"v_add_u32 v{t0}, v{t0}, v{t1}")
    a(f"v_lshrrev_b32 v{t1}, 4, v{v_lane}")
    a(f"v_and_b32 v{t1}, 1, v{t1}")
    a(f"v_lshlrev_b32 v{t1}, 5, v{t1}")
    a(f"v_add_u32 v{t0}, v{t0}, v{t1}")
    a(f"v_and_b32 v{t1}, 3, v{v_lane}")
    a(f"v_lshlrev_b32 v{t1}, 3, v{t1}")
    a(f"v_add_u32 v{t0}, v{t0}, v{t1}")
    a(f"v_lshrrev_b32 v{t1}, 5, v{v_lane}")
    a(f"v_lshlrev_b32 v{t2}, 10, v{t1}")
    a(f"v_add_u32 v{v_abase}, v{t0}, v{t2}")
    a(f"v_mov_b32 v{v_rd}, v{v_abase}")
    a(f"v_and_b32 v{t0}, 31, v{v_lane}")
    a(f"v_lshlrev_b32 v{v_l16}, 4, v{t0}")
    a(f"s_lshl_b32 s{s_tmp}, s{s_i}, 5")
    a(f"v_add_u32 v{t0}, s{s_tmp}, v{t0}")
    a(f"v_lshrrev_b32 v{t2}, 1, v{t0}")
    a(f"v_and_b32 v{t2}, 7, v{t2}")
    a(f"v_xor_b32 v{t2}, v{t2}, v{t1}")
    a(f"v_lshlrev_b32 v{t2}, 4, v{t2}")
    a(f"v_lshlrev_b32 v{t0}, 7, v{t0}")
    a(f"v_add_u32 v{v_xrd}, v{t0}, v{t2}")
    a(f"v_add_u32 v{v_xrd}, {LDS_H}, v{v_xrd}")
    a(f"v_lshlrev_b32 v{v_st}, 4, v{v_lane}")
    a(f"v_and_b32 v{t0}, 31, v{v_lane}")
    a(f"v_mul_u32_u24 v{v_hw}, {TS}, v{t0}")
    a(f"v_lshlrev_b32 v{t1}, 3, v{t1}")
    a(f"v_add_u32 v{v_hw}, v{v_hw}, v{t1}")
    a(f"s_lshl_b32 s{s_tmp}, s{s_i}, 6")
    a(f"s_add_u32 s{s_tmp}, s{s_tmp}, {LDS_T}")
    a(f"v_add_u32 v{v_hw}, s{s_tmp}, v{v_hw}")
    a(f"s_waitcnt vmcnt({vq.need('x0','r0')})")
    a("s_barrier")
    stp(62)
    lq = Q()
    def y_read(c):
        slot = c % 6
        for s in range(4):
            reg = V_Y + (4*c + s) * 4
            tmp = V_M + 4 + (s % 2)
            off = slot * 16384
            a(f"v_xor_b32 v{tmp}, {s*32}, v{v_xrd}")
            if off >= 65536:
                a(f"v_add_u32 v{tmp}, {off}, v{tmp}")
                a(f"ds_read_b128 {vr(reg,4)}, v{tmp}")
            else:
                a(f"ds_read_b128 {vr(reg,4)}, v{tmp} offset:{off}")
            lq.issue(f"y{c}")
    def mask_row_list(sP):
        return [f"s_lshl_b32 s{s_tmp}, s{sP}, 6",
                f"s_lshl_b32 s{s_tmp2}, s{s_jj}, 5",
                f"s_add_u32 s{s_tmp}, s{s_tmp}, s{s_tmp2}",
                f"v_lshrrev_b32 v{V_M}, 4, v{v_l16}",
                f"v_add_u32 v{V_M}, s{s_tmp}, v{V_M}",
                f"v_mov_b32 v{V_M+1}, 288",
                f"v_cmp_gt_u32 vcc, 144, v{V_M}",
                f"v_cmp_ge_u32 s[{s_mask}:{s_mask+1}], v{V_M}, v{V_M+1}",
                f"s_cmp_ge_u32 s{s_tmp}, 320",
                f"s_cselect_b32 s{s_tmp2}, 288, 0",
                f"s_sub_u32 s{s_tmp}, s{s_tmp}, s{s_tmp2}",
                f"s_mul_i32 s{s_hwn}, s{s_tmp}, {TS}",
                f"s_or_b64 s[{s_mask}:{s_mask+1}], s[{s_mask}:{s_mask+1}], vcc",
                f"v_add_u32 v{V_M+7}, s{s_hwn}, v{v_hw}"]
    y_read(0)
    for s in range(4):
        g.frag_read(lq, s, s, 512, f"f{s}")
    for x in g.rd_valu(): a(x)
    nofill = [[] for _ in range(36)]
    def next_pair_list():
        return [f"s_add_u32 s{s_Pn}, s{s_P}, 1", f"s_min_u32 s{s_Pn}, s{s_Pn}, 6"] + set_doff_list(s_Pn) + [f"s_mov_b32 s{s_dso}, 0"]
    for e in range(9):
        misc = [[] for _ in range(36)]
        need = [f"r{e+1}"] + ([f"x{e+1}"] if e + 1 <= 8 else [])
        if e + 1 <= 8: misc[4*e].append(lambda e=e: y_read(e + 1))
        if e < 3: misc[4*e+2].append(lambda e=e: x_dma(6 + e))
        if e == 2: misc[4*e+1] += next_pair_list()
        emit_epoch(g, e, 36, vq, lq, need, 512, V_Y, nofill, misc, [f"r{e+6}"], tagp="f", force_lgkm=lq.need(f"y{e}"), swap=True)
    stp()
    for x in mask_row_list(s_P): a(x)
    a(f"s_mov_b32 s{s_P}, 1")
    BARA = [0, 2, 4, 6, 8]
    a(".p2align 3")
    a("L_T:")
    g.inloop = True
    vq = Q(); lq = Q()
    for e in range(-9, 0): vq.issue(f"r{e+6}")
    for s in range(0, 4): lq.issue(f"g{s}"); lq.issue(f"g{s}")
    excl = [4*e - 1 for e in BARA if e > 0] + [35]
    slots = [sl for sl in range(3, 30) if sl not in excl]
    pl = phi_groups()
    fill = [[] for _ in range(36)]; misc = [[] for _ in range(36)]
    tot = sum(8 if x.startswith("v_exp") else (4 if x.startswith("v_") else 0) for x in pl)
    per = tot / len(slots); acc = 0.0; si = 0
    for ins in pl:
        c = 8 if ins.startswith("v_exp") else (4 if ins.startswith("v_") else 0)
        if ins.startswith("ds_write"):
            misc[slots[min(si, len(slots)-1)]].append(ins); continue
        while si < len(slots) - 1 and acc + c / 2 > per * (si + 1): si += 1
        fill[slots[si]].append(ins); acc += c
    npl = next_pair_list()
    misc[9] += npl[:9]; misc[10] += npl[9:]
    def kvsig():
        lab = a.label("Lkvs")
        a(f"s_cmp_eq_u32 s{s_P}, 6")
        a(f"s_cbranch_scc0 {lab}")
        a(f"s_cmp_eq_u32 s{s_w}, 0")
        a(f"s_cbranch_scc0 {lab}")
        a(f"v_mov_b32 v{V_M}, 1")
        a(f"s_lshl_b32 s{s_tmp}, s{s_g4}, 2")
        a(f"s_add_u32 s{s_tmp}, s{s_tmp}, {DBG_KV}")
        a(f"v_mov_b32 v{V_M+1}, s{s_tmp}")
        a("s_mov_b64 exec, 1")
        a(f"buffer_atomic_add v{V_M}, v{V_M+1}, {sr(SG,4)}, 0 offen sc1")
        a("s_mov_b64 exec, -1")
        a(f"{lab}:")
    misc[16].append(kvsig)
    def zload():
        a(f"s_lshl_b32 s{s_tmp}, s{s_g4}, 2")
        a(f"s_add_u32 s{s_tmp}, s{s_tmp}, {DBG_Z}")
        a(f"v_mov_b32 v{V_M+2}, s{s_tmp}")
        a(f"buffer_load_dword v{v_zf}, v{V_M+2}, {sr(SG,4)}, 0 offen sc1")
        vq.issue("zf")
    misc[13].append(zload)
    mrl = mask_row_list(s_P)
    misc[32] += mrl[:7]; misc[33] += mrl[7:]
    for e in range(9):
        bar = e in BARA
        nb = (e + 1) in BARA or e == 8
        tags = [f"r{e+1}", f"r{e+2}"] if e < 8 else [f"r{e+1}"]
        emit_epoch(g, e, 36, vq, lq, tags, 512, V_Y, fill, misc, [f"r{e+6}"], bar=bar, nextbar=nb, swap=True)
    a(f"s_cmp_eq_u32 s{s_P}, 5")
    a("s_cbranch_scc1 L_KV")
    a("L_KV_ret:")
    a(f"s_add_u32 s{s_P}, s{s_P}, 1")
    a(f"s_cmp_le_u32 s{s_P}, 6")
    a("s_cbranch_scc1 L_T")
    a("s_branch L_T_done")
    a("L_KV:")
    stp()
    a("s_waitcnt vmcnt(0) lgkmcnt(0)")
    a("s_barrier")
    m = V_M
    a(f"s_mul_i32 s{s_tmp}, s{s_w}, {18*TS}")
    a(f"s_add_u32 s{s_tmp}, s{s_tmp}, {LDS_T}")
    a(f"v_lshrrev_b32 v{m}, 4, v{v_l16}")
    a(f"v_mul_u32_u24 v{m+1}, {TS}, v{m}")
    a(f"v_lshrrev_b32 v{m+2}, 5, v{v_lane}")
    a(f"v_lshlrev_b32 v{m+2}, 4, v{m+2}")
    a(f"v_add_u32 v{m+1}, v{m+1}, v{m+2}")
    a(f"v_add_u32 v{m+1}, s{s_tmp}, v{m+1}")
    a(f"v_add_u32 v{m+2}, {144*TS}, v{m+1}")
    a(f"v_cmp_eq_u32 vcc, 18, v{m}")
    a(f"v_mov_b32 v{m+3}, 0x3f803f80")
    BUF = [V_T, V_HP]
    def kvrd(s):
        b = BUF[s % 2]
        a(f"ds_read_b128 {vr(b,4)}, v{m+1} offset:{32*s}")
        a(f"ds_read_b128 {vr(b+4,4)}, v{m+2} offset:{32*s}")
    kvrd(0)
    for s in range(8):
        if s + 1 < 8: kvrd(s + 1)
        a(f"s_waitcnt lgkmcnt({2 if s + 1 < 8 else 0})")
        b = BUF[s % 2]
        for j in range(4):
            a(f"v_cndmask_b32 v{b+4+j}, v{b+4+j}, v{m+3}, vcc")
        a("s_nop 1")
        C = "0" if s == 0 else vr(V_ACC, 16)
        a(f"{MFMA} {vr(V_ACC,16)}, {vr(b,4)}, {vr(b+4,4)}, {C}")
        a("s_nop 3")
    a(f"v_readfirstlane_b32 s{s_tmp}, v{v_zf}")
    a("s_nop 3")
    a(f"s_cmp_ge_u32 s{s_tmp}, 1")
    a("s_cbranch_scc1 L_zok")
    a(f"s_lshl_b32 s{s_tmp}, s{s_g4}, 2")
    a(f"s_add_u32 s{s_tmp}, s{s_tmp}, {DBG_Z}")
    a(f"v_mov_b32 v{m+4}, s{s_tmp}")
    a("L_zpoll:")
    a(f"buffer_load_dword v{m+5}, v{m+4}, {sr(SG,4)}, 0 offen sc1")
    a("s_waitcnt vmcnt(0)")
    a(f"v_readfirstlane_b32 s{s_tmp}, v{m+5}")
    a("s_nop 3")
    a(f"s_cmp_ge_u32 s{s_tmp}, 1")
    a("s_cbranch_scc1 L_zok")
    a("s_sleep 1")
    a("s_branch L_zpoll")
    a("L_zok:")
    a(f"s_lshl_b32 s{s_tmp}, s{s_g4}, 3")
    a(f"s_add_u32 s{s_tmp}, s{s_tmp}, s{s_w}")
    a(f"s_mul_i32 s{s_tmp}, s{s_tmp}, {KVH}")
    a(f"s_add_u32 s{s_tmp}, s{s_tmp}, {WS_KV}")
    a(f"v_lshrrev_b32 v{m+2}, 5, v{v_lane}")
    a(f"v_mul_u32_u24 v{m+2}, {4*80}, v{m+2}")
    a(f"v_lshlrev_b32 v{m+3}, 2, v{m}")
    a(f"v_add_u32 v{m+2}, v{m+2}, v{m+3}")
    a(f"v_cmp_gt_u32 vcc, 19, v{m}")
    a(f"v_mov_b32 v{m+3}, {OOB}")
    a("s_nop 0")
    a(f"v_cndmask_b32 v{m+2}, v{m+3}, v{m+2}, vcc")
    a(f"v_cmp_gt_u32 vcc, 32, v{v_lane}")
    a("s_nop 1")
    a(f"v_cndmask_b32 v{m+4}, v{m+3}, v{m+2}, vcc")
    a("s_nop 7")
    for r in range(10):
        d0 = 8 * (r // 4) + (r % 4)
        vo = m + 2 if r < 8 else m + 4
        a(f"buffer_atomic_add_f32 v{V_ACC+r}, v{vo}, {sr(SW,4)}, s{s_tmp} offen offset:{d0*80}")
    a("s_barrier")
    a(f"s_cmp_eq_u32 s{s_jj}, 1")
    a("s_cbranch_scc0 L_KV_nomv")
    a(f"v_add_u32 v{m+5}, {288*TS}, v{v_hw}")
    for q in range(4):
        a(f"ds_read_b64 {vr(V_T+2*q,2)}, v{m+5} offset:{16*q}")
    a("s_waitcnt lgkmcnt(0)")
    for q in range(4):
        a(f"ds_write_b64 v{v_hw}, {vr(V_T+2*q,2)} offset:{16*q}")
    a("L_KV_nomv:")
    stp()
    a("s_branch L_KV_ret")
    a("L_T_done:")
    g.inloop = False
    stp()
    a("s_waitcnt vmcnt(0) lgkmcnt(0)")
    a("s_barrier")
    a(f"s_mov_b32 s{SD}, s{S_W2}")
    a(f"s_mov_b32 s{SD+1}, s{S_W2+1}")
    a(f"s_mov_b32 s{SD+2}, {SIZES['A_wo']}")
    a(f"s_mul_i32 s{s_F0}, s{s_g4}, {144*W2_RS}")
    def wo_pair_dma(j, ldsbase):
        a(f"s_add_u32 s{s_tmp}, s{s_Pd0}, {j}")
        a(f"s_cmp_ge_u32 s{s_tmp}, 9")
        a(f"s_cselect_b32 s{s_tmp2}, 9, 0")
        a(f"s_sub_u32 s{s_tmp}, s{s_tmp}, s{s_tmp2}")
        a(f"s_lshl_b32 s{s_tmp}, s{s_tmp}, 7")
        a(f"s_add_u32 s{s_dso}, s{s_F0}, s{s_tmp}")
        for mm in range(2):
            a(f"s_add_u32 m0, s{s_xw}, {ldsbase + mm*8192}")
            a(f"s_add_u32 s{s_tmp}, s{s_dso}, {mm*64*W2_RS}")
            a(f"buffer_load_dwordx4 v{v_doffB}, {sr(SD,4)}, s{s_tmp} offen lds")
        lab = a.label("Lw3")
        a(f"s_cmp_lt_u32 s{s_w}, 2")
        a(f"s_cbranch_scc0 {lab}")
        a(f"s_add_u32 m0, s{s_xw}, {ldsbase + 2*8192}")
        a(f"s_add_u32 s{s_tmp}, s{s_dso}, {2*64*W2_RS}")
        a(f"buffer_load_dwordx4 v{v_doffB}, {sr(SD,4)}, s{s_tmp} offen lds")
        a(f"{lab}:")
    for j in range(3): wo_pair_dma(j, j * WPAIR)
    a(f"s_load_dwordx2 s[52:53], s[0:1], {KA['gate_w']}")
    a("s_nop 7")
    for ins in phi_groups(): a(ins)
    a("s_waitcnt lgkmcnt(0)")
    a(f"s_mov_b32 s{SB}, s52")
    a(f"s_mov_b32 s{SB+1}, s53")
    a(f"s_mov_b32 s{SB+2}, {SIZES['gate_w']}")
    a(f"s_mov_b32 s{SB+3}, 0x00020000")
    a(f"s_cmp_lt_u32 s{s_w}, 2")
    a("s_cbranch_scc0 L_nogw")
    a(f"s_add_u32 m0, s{s_xw}, {LDS_GW}")
    a(f"v_lshlrev_b32 v{m}, 4, v{v_tid}")
    a(f"buffer_load_dwordx4 v{m}, {sr(SB,4)}, 0 offen lds")
    a("L_nogw:")
    a(f"s_cmp_eq_u32 s{s_w}, 0")
    a("s_cbranch_scc0 L_kvnopoll")
    a(f"s_lshl_b32 s{s_tmp}, s{s_g4}, 2")
    a(f"s_add_u32 s{s_tmp}, s{s_tmp}, {DBG_KV}")
    a(f"v_mov_b32 v{m+4}, s{s_tmp}")
    a("L_kvpoll:")
    a(f"buffer_load_dword v{m+5}, v{m+4}, {sr(SG,4)}, 0 offen sc1")
    a("s_waitcnt vmcnt(0)")
    a(f"v_readfirstlane_b32 s{s_tmp}, v{m+5}")
    a("s_nop 3")
    a(f"s_cmp_ge_u32 s{s_tmp}, 16")
    a("s_cbranch_scc1 L_kvnopoll")
    a("s_sleep 1")
    a("s_branch L_kvpoll")
    a("L_kvnopoll:")
    a("s_waitcnt vmcnt(0) lgkmcnt(0)")
    a("s_barrier")
    stp()
    a(f"s_lshl_b32 s{s_tmp}, s{s_g4}, 3")
    a(f"s_add_u32 s{s_tmp}, s{s_tmp}, s{s_w}")
    a(f"s_mul_i32 s{s_tmp}, s{s_tmp}, {KVH}")
    a(f"s_add_u32 s{s_tmp}, s{s_tmp}, {WS_KV}")
    a(f"v_lshrrev_b32 v{m}, 4, v{v_l16}")
    a(f"v_lshlrev_b32 v{m+1}, 2, v{m}")
    a(f"v_mov_b32 v{m+3}, {OOB}")
    a(f"v_cmp_gt_u32 vcc, 19, v{m}")
    a("s_nop 1")
    a(f"v_cndmask_b32 v{m+1}, v{m+3}, v{m+1}, vcc")
    a(f"v_cmp_gt_u32 vcc, 32, v{v_lane}")
    a(f"v_add_u32 v{m+2}, {16*80}, v{m+1}")
    a("s_nop 0")
    a(f"v_cndmask_b32 v{m+2}, v{m+2}, v{m+1}, vcc")
    a(f"v_cndmask_b32 v{m+4}, v{m+3}, v{m+1}, vcc")
    KL = V_G
    for j in range(16):
        vo = m + 2 if j < 2 else m + 4
        a(f"buffer_load_dword v{KL+j}, v{vo}, {sr(SW,4)}, s{s_tmp} offen offset:{j*80} sc0 sc1")
    a(f"s_cmp_eq_u32 s{s_i}, s{s_g4}")
    a("s_cbranch_scc0 L_nogate")
    a(f"v_lshrrev_b32 v{m+5}, 5, v{v_lane}")
    a(f"v_lshlrev_b32 v{m+5}, 4, v{m+5}")
    a(f"v_add_u32 v{m+5}, {LDS_GW}, v{m+5}")
    a(f"v_mov_b32 v{v_S}, 0")
    a(f"s_cmp_eq_u32 s{s_jj}, 1")
    a("s_cbranch_scc1 L_gate1")
    for half in range(2):
        if half == 1: a("L_gate1:")
        GB = [V_FR, V_FR + 4, V_FR + 8, V_FR + 12]
        ks = list(range(18 * half, 18 * half + 18))
        for idx in range(3):
            a(f"ds_read_b128 {vr(GB[idx % 4],4)}, v{m+5} offset:{32*ks[idx]}")
        for idx, s in enumerate(ks):
            if idx + 3 < 18:
                a(f"ds_read_b128 {vr(GB[(idx+3) % 4],4)}, v{m+5} offset:{32*ks[idx+3]}")
            a(f"s_waitcnt lgkmcnt({min(3, 17 - idx)})")
            for j in range(4):
                a(f"v_dot2c_f32_bf16 v{v_S}, v{GB[idx % 4]+j}, v{V_Y+4*s+j}")
        if half == 0: a("s_branch L_gate2")
    a("L_gate2:")
    a("s_nop 4")
    a(f"v_mov_b32 v{m+6}, v{v_S}")
    a("s_nop 1")
    a(f"v_permlane32_swap_b32 v{v_S}, v{m+6}")
    a("s_nop 1")
    a(f"v_add_f32 v{v_S}, v{v_S}, v{m+6}")
    a(f"s_lshl_b32 s{s_tmp2}, s{s_jj}, 7")
    a(f"s_add_u32 s{s_tmp2}, s{s_tmp2}, {LDS_GW + 1152}")
    a(f"v_lshrrev_b32 v{m+6}, 2, v{v_l16}")
    a(f"v_add_u32 v{m+6}, s{s_tmp2}, v{m+6}")
    a(f"ds_write_b32 v{m+6}, v{v_S}")
    a("L_nogate:")
    a("s_waitcnt vmcnt(0)")
    for j in range(8):
        a(f"v_cvt_pk_bf16_f32 v{V_HP+j}, v{KL+2*j}, v{KL+2*j+1}")
    a(f"s_lshl_b32 s{s_tmp}, s{s_w}, 11")
    a(f"s_add_u32 s{s_tmp}, s{s_tmp}, {LDS_KVA}")
    a(f"v_lshlrev_b32 v{m}, 2, v{v_l16}")
    a(f"v_lshrrev_b32 v{m+1}, 5, v{v_lane}")
    a(f"v_lshlrev_b32 v{m+1}, 5, v{m+1}")
    a(f"v_add_u32 v{m}, v{m}, v{m+1}")
    a(f"v_add_u32 v{m}, s{s_tmp}, v{m}")
    a(f"ds_write_b128 v{m}, {vr(V_HP,4)}")
    a(f"ds_write_b128 v{m}, {vr(V_HP+4,4)} offset:16")
    a("s_waitcnt lgkmcnt(0)")
    a("s_barrier")
    a(f"s_cmp_eq_u32 s{s_w}, s{s_g4}")
    a("s_cbranch_scc0 L_nogate2")
    a(f"v_lshrrev_b32 v{m+6}, 2, v{v_l16}")
    a(f"v_add_u32 v{m+5}, {LDS_GW + 1152}, v{m+6}")
    a(f"ds_read_b32 v{v_S}, v{m+5}")
    a(f"ds_read_b32 v{m+4}, v{m+5} offset:128")
    a("s_waitcnt lgkmcnt(0)")
    a(f"v_add_f32 v{v_S}, v{v_S}, v{m+4}")
    a(f"v_mul_f32 v{v_S}, {f2u(-LOG2E):#x}, v{v_S}")
    a(f"v_exp_f32 v{v_S}, v{v_S}")
    a("s_nop 0")
    a(f"v_add_f32 v{v_S}, 1.0, v{v_S}")
    a(f"v_rcp_f32 v{v_S}, v{v_S}")
    a(f"s_lshl_b32 s{s_tmp}, s{s_t}, 7")
    a(f"s_lshl_b32 s{s_tmp2}, s{s_g4}, 5")
    a(f"s_add_u32 s{s_tmp}, s{s_tmp}, s{s_tmp2}")
    a(f"s_lshl_b32 s{s_tmp}, s{s_tmp}, 2")
    a(f"s_add_u32 s{s_tmp}, s{s_tmp}, {WS_G}")
    a("s_mov_b32 exec_hi, 0")
    a(f"buffer_store_dword v{v_S}, v{m+6}, {sr(SW,4)}, s{s_tmp} offen")
    a("s_mov_b32 exec_hi, -1")
    a("L_nogate2:")
    stp()
    a(f"v_and_b32 v{m}, 15, v{v_lane}")
    a(f"v_lshrrev_b32 v{m}, 2, v{m}")
    a(f"v_lshrrev_b32 v{m+1}, 5, v{v_lane}")
    a(f"v_lshlrev_b32 v{m+2}, 3, v{m+1}")
    a(f"v_add_u32 v{m}, v{m}, v{m+2}")
    a(f"v_mul_u32_u24 v{m}, {TS}, v{m}")
    a(f"v_lshrrev_b32 v{m+2}, 4, v{v_lane}")
    a(f"v_and_b32 v{m+2}, 1, v{m+2}")
    a(f"v_lshlrev_b32 v{m+2}, 5, v{m+2}")
    a(f"v_add_u32 v{m}, v{m}, v{m+2}")
    a(f"v_and_b32 v{m+2}, 3, v{v_lane}")
    a(f"v_lshlrev_b32 v{m+2}, 3, v{m+2}")
    a(f"v_add_u32 v{m}, v{m}, v{m+2}")
    a(f"s_lshl_b32 s{s_tmp}, s{s_i}, 6")
    a(f"s_mul_i32 s{s_tmp2}, s{s_jj}, {4*18*TS}")
    a(f"s_add_u32 s{s_tmp}, s{s_tmp}, s{s_tmp2}")
    a(f"s_add_u32 s{s_tmp}, s{s_tmp}, {LDS_T}")
    a(f"v_add_u32 v{m}, s{s_tmp}, v{m}")
    a(f"v_lshlrev_b32 v{m+2}, 2, v{v_l16}")
    a(f"v_lshlrev_b32 v{m+3}, 4, v{m+1}")
    a(f"v_add_u32 v{m+2}, v{m+2}, v{m+3}")
    a(f"s_lshl_b32 s{s_tmp}, s{s_jj}, 13")
    a(f"s_add_u32 s{s_tmp}, s{s_tmp}, {LDS_KVA}")
    a(f"v_add_u32 v{m+2}, s{s_tmp}, v{m+2}")
    a(f"v_lshrrev_b32 v{m+3}, 4, v{v_l16}")
    a(f"v_mul_u32_u24 v{m+3}, {O2S}, v{m+3}")
    a(f"v_lshlrev_b32 v{m+4}, 3, v{m+1}")
    a(f"v_add_u32 v{m+3}, v{m+3}, v{m+4}")
    a(f"s_mul_i32 s{s_tmp}, s{s_i}, {32*O2S}")
    a(f"s_mul_i32 s{s_tmp2}, s{s_jj}, {4*36}")
    a(f"s_add_u32 s{s_tmp}, s{s_tmp}, s{s_tmp2}")
    a(f"s_add_u32 s{s_tmp}, s{s_tmp}, {LDS_O2}")
    a(f"v_add_u32 v{m+3}, s{s_tmp}, v{m+3}")
    for hh in range(4):
        FA, FB = V_Y + 16*hh, V_Y + 16*hh + 8
        for s in range(2):
            a(f"ds_read_b128 {vr(FA+4*s,4)}, v{m+2} offset:{hh*2048+32*s}")
            a(f"ds_read_b64_tr_b16 {vr(FB+4*s,2)}, v{m} offset:{(18*hh+16*s)*TS}")
            a(f"ds_read_b64_tr_b16 {vr(FB+4*s+2,2)}, v{m} offset:{(18*hh+16*s+4)*TS}")
        if hh == 1: a("s_waitcnt lgkmcnt(6)") if False else None
    a("s_waitcnt lgkmcnt(0)")
    for hh in range(4):
        FA, FB, R = V_Y + 16*hh, V_Y + 16*hh + 8, V_Y + 64 + 16*hh
        a(f"{MFMA} {vr(R,16)}, {vr(FA,4)}, {vr(FB,4)}, 0")
        a(f"{MFMA} {vr(R,16)}, {vr(FA+4,4)}, {vr(FB+4,4)}, {vr(R,16)}")
    a("s_nop 7")
    for hh in range(4):
        R = V_Y + 64 + 16*hh
        if hh == 3: a("s_nop 7")
        a(f"v_mov_b32 v{V_T}, v{R+10}")
        a(f"v_mov_b32 v{V_T+1}, v{R+10}")
        a("s_nop 1")
        a(f"v_permlane32_swap_b32 v{V_T+1}, v{V_T}")
        a("s_nop 1")
        a(f"v_add_f32 v{V_T+1}, {f2u(1e-6):#x}, v{V_T+1}")
        a(f"v_rcp_f32 v{V_T+1}, v{V_T+1}")
        a("s_nop 0")
        for r in range(10): a(f"v_mul_f32 v{R+r}, v{R+r}, v{V_T+1}")
        for p in range(5): a(f"v_cvt_pk_bf16_f32 v{V_HP+p}, v{R+2*p}, v{R+2*p+1}")
        for p in range(4):
            a(f"ds_write_b32 v{m+3}, v{V_HP+p} offset:{hh*36 + (p//2)*16 + (p%2)*4}")
        a("s_mov_b32 exec_hi, 0")
        a(f"ds_write_b32 v{m+3}, v{V_HP+4} offset:{hh*36 + 32}")
        a("s_mov_b32 exec_hi, -1")
    a("s_waitcnt lgkmcnt(0)")
    a("s_barrier")
    a(f"v_lshrrev_b32 v{m}, 4, v{v_l16}")
    a(f"v_mul_u32_u24 v{m}, {O2S}, v{m}")
    a(f"v_lshrrev_b32 v{m+1}, 5, v{v_lane}")
    a(f"v_lshlrev_b32 v{m+1}, 4, v{m+1}")
    a(f"v_add_u32 v{m}, v{m}, v{m+1}")
    a(f"s_mul_i32 s{s_tmp}, s{s_i}, {32*O2S}")
    a(f"s_add_u32 s{s_tmp}, s{s_tmp}, {LDS_O2}")
    a(f"v_add_u32 v{m}, s{s_tmp}, v{m}")
    for s in range(9):
        a(f"ds_read_b128 {vr(V_Y+4*s,4)}, v{m} offset:{32*s}")
    a("s_waitcnt lgkmcnt(0)")
    a("s_barrier")
    for j in range(3, 8): wo_pair_dma(j, LDS_H + (j - 3) * WPAIR)
    stp()
    a(f"s_lshl_b32 s{s_tmp}, s{s_t}, 2")
    a(f"s_add_u32 s{s_tmp}, s{s_tmp}, s{s_i}")
    a(f"s_mul_i32 s{s_tmp}, s{s_tmp}, {18*16}")
    a(f"s_add_u32 s{s_tmp}, s{s_tmp}, s{s_g4}")
    a(f"s_add_u32 s{s_tmp}, s{s_tmp}, 12")
    a(f"s_lshl_b32 s{s_posbase}, s{s_tmp}, 11")
    a(f"s_lshl_b32 s{s_tmp}, s{s_jj}, 15")
    a(f"s_add_u32 s{s_posbase}, s{s_posbase}, s{s_tmp}")
    a(f"s_mov_b32 s{s_P}, s{s_Pd0}")
    a(f"s_mov_b32 s{s_n}, 0")
    a(f"s_mov_b32 s{s_ro}, 0")
    st0 = f"buffer_store_dwordx4 {vr(V_HP,4)}, v{v_st}, {sr(SW,4)}, s{s_pos} offen"
    st1 = f"buffer_store_dwordx4 {vr(V_HP+4,4)}, v{v_st}, {sr(SW,4)}, s{s_pos} offen offset:1024"
    a(f"s_mov_b32 s{s_pos}, {OOB}")
    a(".p2align 3")
    a("L_W:")
    a(f"s_cmp_eq_u32 s{s_n}, 3")
    a("s_cbranch_scc1 L_W_sync3")
    a(f"s_cmp_eq_u32 s{s_n}, 8")
    a("s_cbranch_scc1 L_W_sync8")
    a("L_W_go:")
    a(f"v_add_u32 v{v_rd}, s{s_ro}, v{v_abase}")
    def wrd(s):
        r = V_FR + 4 * (s % 6)
        a(f"ds_read_b64_tr_b16 {vr(r,2)}, v{v_rd} offset:{s*2048}")
        a(f"ds_read_b64_tr_b16 {vr(r+2,2)}, v{v_rd} offset:{s*2048+512}")
    for s in range(5): wrd(s)
    for r in range(8): a(f"v_cvt_pk_bf16_f32 v{V_HP+r}, v{V_G+2*r}, v{V_G+2*r+1}")
    a(st0); a(st1)
    issued = 5
    for s in range(9):
        outstanding_after = 2 * (min(issued, 9) - (s + 1))
        a(f"s_waitcnt lgkmcnt({outstanding_after})")
        D = V_G if s == 8 else V_ACC
        C = "0" if s == 0 else vr(V_ACC, 16)
        a(f"{MFMA} {vr(D,16)}, {vr(V_FR+4*(s%6),4)}, {vr(V_Y+4*s,4)}, {C}")
        if issued < 9:
            wrd(issued); issued += 1
    a(f"s_lshl_b32 s{s_tmp}, s{s_P}, 16")
    a(f"s_add_u32 s{s_pos}, s{s_posbase}, s{s_tmp}")
    a(f"s_add_u32 s{s_P}, s{s_P}, 1")
    a(f"s_cmp_eq_u32 s{s_P}, 9")
    a(f"s_cselect_b32 s{s_P}, 0, s{s_P}")
    a(f"s_add_u32 s{s_n}, s{s_n}, 1")
    a(f"s_mul_i32 s{s_ro}, s{s_n}, {WPAIR}")
    a(f"s_cmp_ge_u32 s{s_n}, 3")
    a(f"s_cselect_b32 s{s_tmp}, {LDS_H - 3*WPAIR}, 0")
    a(f"s_add_u32 s{s_ro}, s{s_ro}, s{s_tmp}")
    a(f"s_cmp_eq_u32 s{s_n}, 8")
    a(f"s_cselect_b32 s{s_ro}, 0, s{s_ro}")
    a("s_nop 4")
    a(f"s_cmp_lt_u32 s{s_n}, 9")
    a("s_cbranch_scc1 L_W")
    a("s_branch L_W_done")
    a("L_W_sync3:")
    a("s_waitcnt vmcnt(0)")
    a("s_barrier")
    wo_pair_dma(8, 0)
    a("s_branch L_W_go")
    a("L_W_sync8:")
    a("s_waitcnt vmcnt(0)")
    a("s_barrier")
    a("s_branch L_W_go")
    a("L_W_done:")
    a("s_nop 15")
    for r in range(8): a(f"v_cvt_pk_bf16_f32 v{V_HP+r}, v{V_G+2*r}, v{V_G+2*r+1}")
    a(st0); a(st1)
    a("s_waitcnt vmcnt(0) lgkmcnt(0)")
    stp()
    if g.stamps:
        a("s_waitcnt lgkmcnt(0)")
        a(f"s_lshl_b32 s{s_tmp}, s2, 3")
        a(f"s_add_u32 s{s_tmp}, s{s_tmp}, s{s_w}")
        a(f"s_lshl_b32 s{s_tmp}, s{s_tmp}, 6")
        a(f"s_add_u32 s{s_tmp}, s{s_tmp}, {WS_STAMP}")
        a("s_mov_b64 exec, 1")
        a(f"v_mov_b32 v{V_M+1}, 0")
        for i, r in enumerate(stl):
            a(f"v_mov_b32 v{V_M}, s{r}")
            a(f"buffer_store_dword v{V_M}, v{V_M+1}, {sr(SW,4)}, s{s_tmp} offen offset:{4*i}")
        a("s_waitcnt vmcnt(0)")
```

```python
from asmlib import *
import struct

NS = 8
SLOT = 8192
RINGSZ = NS * SLOT
LDS_RING = 0
LDS_H = 65536
LDS_TOTAL = 163840
LDS_SCR = 6 * SLOT
LDS_STAT = LDS_H
WS_P = 0
WS_CSP = 37748736
WS_G = WS_CSP + 12*16*384*4
WS_STAMP = 0x3000000
W1_RS = 9216
W2_RS = 1152
X_RS = 1152
LOG2E = 1.4426950408889634
K1C = -2.0 * 0.7978845608028654 * LOG2E
K2C = -2.0 * 0.7978845608028654 * 0.044715 * LOG2E
def f2u(x): return struct.unpack("<I", struct.pack("<f", x))[0]
OOB = 0x40000000

SX, SD, SW, SG, SB = 4, 8, 12, 16, 20
S_W2 = 24
s_t, s_js, s_w, s_i, s_jj, s_F0 = 28, 29, 30, 31, 32, 33
s_n = 34
s_ro, s_wo, s_wbase = 35, 36, 37
s_dso, s_dstep = 38, 39
s_P, s_Pn = 40, 41
s_tmp, s_tmp2, s_tmp3 = 42, 43, 44
s_pos, s_posbase, s_xso, s_xw, s_Pd0 = 45, 46, 47, 48, 49
s_hwn = 50
S_ST = 60
v_tid, v_lane, v_doff, v_doffB, v_abaseA, v_abase, v_rd = 0, 1, 2, 3, 4, 5, 6
v_abaseB = 7
v_hw, v_l16 = 8, 9
v_k1r, v_k2r, v_rstd = 10, 11, 12
v_S, v_xrd, v_st = 13, 14, 15
V_T, V_HP, V_FR, V_M = 16, 24, 32, 56
V_ACC, V_G, V_CS, V_Y = 64, 80, 96, 112
V_AUGA, V_AUGB = 96, 100
NB, PD = 6, 4
MFMA = "v_mfma_f32_32x32x16_bf16"
def vr(a, n): return f"v[{a}:{a+n-1}]"
def sr(a, n): return f"s[{a}:{a+n-1}]"

class Q:
    def __init__(self): self.q = []
    def issue(self, tag): self.q.append(tag)
    def need(self, *tags):
        last = -1
        for idx, tg in enumerate(self.q):
            if tg in tags: last = idx
        assert last >= 0, f"{tags} not in queue"
        return len(self.q) - 1 - last

class Gen:
    def __init__(self, stamps=False, flags=()):
        self.flags = set(flags)
        self.a = Asm()
        self.stamps = stamps
        self.nst = 0
        self.inloop = False
    def stamp(self):
        if self.stamps:
            i = self.nst; self.nst += 1
            self.a(f"s_memtime s[{S_ST+2*i}:{S_ST+2*i+1}]")
    def flagval(self, pre, default):
        for f in self.flags:
            if f.startswith(pre) and f[len(pre):].isdigit(): return int(f[len(pre):])
        return default
    def dma_a(self):
        L = [f"s_and_b32 m0, s{s_wo}, {RINGSZ-1}", f"s_add_u32 s{s_wo}, s{s_wo}, {SLOT}"]
        if not ("nodma" in self.flags and self.inloop):
            L.append(f"buffer_load_dwordx4 v{v_doff}, {sr(SD,4)}, s{s_dso} offen lds")
        return L
    def dma_b(self):
        return [f"s_add_u32 s{s_dso}, s{s_dso}, s{s_dstep}"]
    def rd_salu(self):
        return []
    def rd_valu(self):
        return [f"v_add_u16 v{v_rd}, {SLOT}, v{v_rd}"]
    def dma_full(self, vq, tag):
        for x in self.dma_a(): self.a(x)
        vq.issue(tag)
        for x in self.dma_b(): self.a(x)
    def frag_read(self, lq, kslot, buf, second, tag):
        a = self.a
        r = V_FR + 4 * buf
        a(f"ds_read_b64_tr_b16 {vr(r,2)}, v{v_rd} offset:{kslot*2048}")
        a(f"ds_read_b64_tr_b16 {vr(r+2,2)}, v{v_rd} offset:{kslot*2048+second}")
        lq.issue(tag); lq.issue(tag)

USE_FMA = True
def gelu_chain(e, T):
    G = V_G + e
    if USE_FMA:
        return [(f"v_mul_f32 v{T}, v{G}, v{G}", 4), (f"v_fma_f32 v{T}, v{T}, v{v_k2r}, v{v_k1r}", 4),
                (f"v_mul_f32 v{T}, v{G}, v{T}", 4), (f"v_exp_f32 v{T}, v{T}", 8), (f"v_add_f32 v{T}, 1.0, v{T}", 4),
                (f"v_rcp_f32 v{T}, v{T}", 8), (f"v_mul_f32 v{T}, v{G}, v{T}", 4)]
    return [(f"v_mul_f32 v{T}, v{G}, v{G}", 4), (f"v_mul_f32 v{T}, v{T}, v{v_k2r}", 4), (f"v_add_f32 v{T}, v{T}, v{v_k1r}", 4),
            (f"v_mul_f32 v{T}, v{G}, v{T}", 4), (f"v_exp_f32 v{T}, v{T}", 8), (f"v_add_f32 v{T}, 1.0, v{T}", 4),
            (f"v_rcp_f32 v{T}, v{T}", 8), (f"v_mul_f32 v{T}, v{G}, v{T}", 4)]

TSH = 0
def gelu_sched(slots, nslots, caps, maxT=2, GS=4, gapP=2, gapT=3):
    NT = 8
    chains = [gelu_chain(e, V_T + ((e + TSH) % NT)) for e in range(16)]
    NOPS = len(chains[0])
    pos = [0] * 16; done_cvt = [False] * 8; last = [-10] * 16
    fill = [[] for _ in range(nslots)]; dsw = [[] for _ in range(nslots)]
    gi = 0; wrote = [False, False]
    for s in slots:
        budget = caps[s]; nT = 0; progress = True
        while budget > 0 and progress:
            progress = False
            for p in range(8):
                if not done_cvt[p] and pos[2*p] == NOPS and pos[2*p+1] == NOPS and budget >= 4 and gi - max(last[2*p], last[2*p+1]) >= 1:
                    fill[s].append(f"v_cvt_pk_bf16_f32 v{V_HP+p}, v{V_T+(2*p+TSH)%NT}, v{V_T+(2*p+1+TSH)%NT}")
                    done_cvt[p] = True; budget -= 4; gi += 1; progress = True
                    break
            if progress: continue
            best = None
            for e in range(16):
                if pos[e] >= NOPS: continue
                if e >= NT and pos[e] == 0 and not done_cvt[(e - NT) // 2]: continue
                ins, c = chains[e][pos[e]]
                if c > budget: continue
                if c == 8 and nT >= maxT: continue
                gap = gi - last[e]
                if pos[e] > 0:
                    prev_trans = chains[e][pos[e]-1][1] == 8
                    if gap < (gapT if prev_trans else gapP): continue
                key = ((e // GS) * NOPS + pos[e]) * GS + (e % GS)
                if best is None or key < best[0]: best = (key, e)
            if best is not None:
                e = best[1]
                ins, c = chains[e][pos[e]]
                fill[s].append(ins); pos[e] += 1; last[e] = gi; gi += 1; budget -= c
                if c == 8: nT += 1
                progress = True
        gi += 3
        for ks in range(2):
            if not wrote[ks] and all(done_cvt[4*ks:4*ks+4]):
                dsw[s].append(f"ds_write_b128 v{v_hw}, {vr(V_HP+4*ks,4)} offset:{ks*1024}")
                wrote[ks] = True
    ok = all(done_cvt) and all(wrote)
    return ok, fill, dsw

def gelu_plain():
    L = []
    for q in range(4):
        T = [V_T + (q % 2) * 4 + e for e in range(4)]
        ch = [gelu_chain(4*q+e, T[e]) for e in range(4)]
        for o in range(len(ch[0])):
            for e in range(4): L.append(ch[e][o][0])
        L.append(f"v_cvt_pk_bf16_f32 v{V_HP+2*q}, v{T[0]}, v{T[1]}")
        L.append(f"v_cvt_pk_bf16_f32 v{V_HP+2*q+1}, v{T[2]}, v{T[3]}")
        if q % 2 == 1:
            L.append(f"ds_write_b128 v{v_hw}, {vr(V_HP+4*(q//2),4)} offset:{(q//2)*1024}")
    return L

def emit_epoch(g, e, nk_total, vq, lq, vm_tags, second, bregs, fill, misc, dma_tag, tagp="g", force_lgkm=None, ndma=1, end_extra=None,
               bar=True, nextbar=True, swap=False, kvalid=None, lastD=None, dma_fn=None, firstC0=True):
    a = g.a
    def put(lst):
        for ins in lst:
            if callable(ins): ins(); continue
            a(ins)
            if ins.startswith(("ds_write", "ds_read")): lq.issue("x")
            if ins.startswith(("buffer_store",)): vq.issue("st")
    def rvalid(x): return kvalid is None or (x % nk_total) < kvalid
    for k in range(4):
        s = 4 * e + k
        last_pre = (k == 3 and nextbar)
        if last_pre:
            if rvalid(s + PD): g.frag_read(lq, 3, (s + PD) % NB, second, f"{tagp}{s+PD}")
            for x in g.rd_valu(): a(x)
        tags = []
        if k % 2 == 0:
            tags = [f"{tagp}{x}" for x in (s, s + 1) if rvalid(x)]
        if k == 0 and bar:
            nl = min(15, lq.need(*tags)) if tags else 15
            if force_lgkm is not None: nl = min(nl, force_lgkm)
            nv = vq.need(*vm_tags)
            nv = max(0, nv - (g.flagval("vmx", 0) if g.inloop else 0))
            if "novm" in g.flags and g.inloop: a(f"s_waitcnt lgkmcnt({nl})")
            else: a(f"s_waitcnt vmcnt({nv}) lgkmcnt({nl})")
            if not ("nobar" in g.flags and g.inloop): a("s_barrier")
        elif tags:
            nl = min(15, lq.need(*tags))
            if k == 0 and force_lgkm is not None: nl = min(nl, force_lgkm)
            a(f"s_waitcnt lgkmcnt({nl})")
        lastk = (nk_total if kvalid is None else kvalid) - 1
        D = (V_G if lastD is None else lastD) if s == lastk else V_ACC
        C = "0" if (s == 0 and firstC0) else vr(V_ACC, 16)
        if rvalid(s):
            opA, opB = vr(V_FR+4*(s%NB),4), vr(bregs+4*s,4)
            if swap: opA, opB = opB, opA
            a(f"{MFMA} {vr(D,16)}, {opA}, {opB}, {C}")
        if not last_pre:
            put(fill[s])
            if rvalid(s + PD): g.frag_read(lq, k, (s + PD) % NB, second, f"{tagp}{s+PD}")
            if k == 3:
                for x in g.rd_valu(): a(x)
            if k == 0:
                if dma_fn is not None:
                    dma_fn(); vq.issue(dma_tag[0])
                else:
                    for d in range(ndma):
                        for x in g.dma_a(): a(x)
                        vq.issue(dma_tag[d])
                        for x in g.dma_b(): a(x)
            put(misc[s])
        else:
            assert not fill[s], (s, fill[s])
            put(misc[s])
        if k == 3 and end_extra: end_extra(s)

def gen_mlp(g):
    global TSH
    a = g.a
    a.c("MLP role v2")
    a(f"v_and_b32 v{v_lane}, 63, v{v_tid}")
    a(f"v_lshrrev_b32 v{V_M}, 6, v{v_tid}")
    a("s_nop 0")
    a(f"v_readfirstlane_b32 s{s_w}, v{V_M}")
    t0, t1, t2, xo = V_T, V_T+1, V_T+2, V_T+3
    a(f"v_lshrrev_b32 v{t0}, 3, v{v_lane}")
    a(f"v_and_b32 v{t2}, 7, v{v_lane}")
    a(f"s_lshl_b32 s{s_tmp}, s{s_w}, 3")
    a(f"v_add_u32 v{t0}, s{s_tmp}, v{t0}")
    a(f"v_lshrrev_b32 v{t1}, 1, v{t0}")
    a(f"v_and_b32 v{t1}, 7, v{t1}")
    a(f"v_xor_b32 v{t1}, v{t1}, v{t2}")
    a(f"v_lshlrev_b32 v{t1}, 4, v{t1}")
    a(f"v_mul_u32_u24 v{xo}, {X_RS}, v{t0}")
    a(f"v_add_u32 v{xo}, v{xo}, v{t1}")
    a(f"s_mul_i32 s{s_xso}, s{s_t}, {128*X_RS}")
    a(f"s_lshl_b32 s{s_xw}, s{s_w}, 10")
    vq = Q()
    def x_dma(c):
        slot = c % 6
        a(f"s_add_u32 m0, s{s_xw}, {LDS_H+slot*16384}")
        a(f"s_add_u32 s{s_tmp}, s{s_xso}, {c*128}")
        a(f"buffer_load_dwordx4 v{xo}, {sr(SX,4)}, s{s_tmp} offen lds")
        vq.issue(f"x{c}")
        a(f"s_add_u32 m0, s{s_xw}, {LDS_H+slot*16384+8192}")
        a(f"s_add_u32 s{s_tmp}, s{s_xso}, {c*128+64*X_RS}")
        a(f"buffer_load_dwordx4 v{xo}, {sr(SX,4)}, s{s_tmp} offen lds")
        vq.issue(f"x{c}")
    x_dma(0)
    a(f"v_lshrrev_b32 v{t1}, 4, v{v_lane}")
    a(f"v_and_b32 v{t1}, 1, v{t1}")
    a(f"v_lshlrev_b32 v{t1}, 2, v{t1}")
    a(f"v_xor_b32 v{t1}, v{t1}, v{t2}")
    a(f"v_lshlrev_b32 v{t1}, 4, v{t1}")
    a(f"v_mul_u32_u24 v{v_doff}, {W1_RS}, v{t0}")
    a(f"v_add_u32 v{v_doff}, v{v_doff}, v{t1}")
    a(f"v_mul_u32_u24 v{v_doffB}, {W2_RS}, v{t0}")
    a(f"v_add_u32 v{v_doffB}, v{v_doffB}, v{t1}")
    a(f"s_mul_i32 s{s_F0}, s{s_js}, 384")
    a(f"s_mov_b32 s{s_wo}, s{s_xw}")
    a(f"s_mov_b32 s{s_dstep}, {64*W1_RS}")
    a(f"s_lshl_b32 s{s_tmp}, s{s_P}, 6")
    a(f"s_add_u32 s{s_tmp}, s{s_tmp}, s{s_F0}")
    a(f"s_lshl_b32 s{s_dso}, s{s_tmp}, 1")
    g.dma_full(vq, "r0")
    m0_, m1_, m2_ = V_M, V_M+1, V_M+2
    a(f"v_mul_u32_u24 v{m0_}, 1366, v{v_tid}")
    a(f"v_lshrrev_b32 v{m0_}, 16, v{m0_}")
    a(f"v_mul_u32_u24 v{m1_}, 48, v{m0_}")
    a(f"v_sub_u32 v{m1_}, v{v_tid}, v{m1_}")
    a(f"v_mul_u32_u24 v{V_M+3}, 1536, v{m0_}")
    a(f"v_lshlrev_b32 v{m2_}, 5, v{m1_}")
    a(f"v_add_u32 v{V_M+3}, v{V_M+3}, v{m2_}")
    a(f"v_mul_u32_u24 v{m2_}, {4*W1_RS}, v{m0_}")
    a(f"v_lshlrev_b32 v{m1_}, 4, v{m1_}")
    a(f"v_add_u32 v{m2_}, v{m2_}, v{m1_}")
    a(f"v_cmp_lt_u32 vcc, 8, v{m0_}")
    a(f"v_mov_b32 v{m1_}, {OOB}")
    a(f"s_mul_i32 s{s_tmp}, s{s_t}, {36*W1_RS}")
    a(f"v_cndmask_b32 v{m2_}, v{m2_}, v{m1_}, vcc")
    a(f"s_lshl_b32 s{s_tmp2}, s{s_F0}, 1")
    a(f"s_add_u32 s{s_tmp}, s{s_tmp}, s{s_tmp2}")
    for q in range(4):
        a(f"buffer_load_dwordx4 {vr(V_CS+4*q,4)}, v{m2_}, {sr(SD,4)}, s{s_tmp} offen")
        vq.issue("cs")
        if q < 3: a(f"s_add_u32 s{s_tmp}, s{s_tmp}, {W1_RS}")
    a(f"v_min_u32 v{V_M+3}, {9*1536+47*32}, v{V_M+3}")
    x_dma(1); g.dma_full(vq, "r1")
    a(f"s_and_b32 s{s_i}, s{s_w}, 3")
    a(f"s_lshr_b32 s{s_jj}, s{s_w}, 2")
    a(f"v_and_b32 v{t0}, 15, v{v_lane}")
    a(f"v_lshrrev_b32 v{t0}, 2, v{t0}")
    a(f"v_lshrrev_b32 v{t1}, 1, v{t0}")
    a(f"v_xor_b32 v{t1}, s{s_jj}, v{t1}")
    a(f"v_lshlrev_b32 v{t1}, 6, v{t1}")
    a(f"v_lshlrev_b32 v{t0}, 7, v{t0}")
    a(f"v_add_u32 v{t0}, v{t0}, v{t1}")
    a(f"v_lshrrev_b32 v{t1}, 4, v{v_lane}")
    a(f"v_and_b32 v{t1}, 1, v{t1}")
    a(f"v_lshlrev_b32 v{t1}, 5, v{t1}")
    a(f"v_add_u32 v{t0}, v{t0}, v{t1}")
    a(f"v_and_b32 v{t1}, 3, v{v_lane}")
    a(f"v_lshlrev_b32 v{t1}, 3, v{t1}")
    a(f"v_add_u32 v{t0}, v{t0}, v{t1}")
    a(f"v_lshrrev_b32 v{t1}, 5, v{v_lane}")
    a(f"v_lshlrev_b32 v{t2}, 10, v{t1}")
    a(f"v_add_u32 v{v_abaseA}, v{t0}, v{t2}")
    a(f"v_lshlrev_b32 v{t2}, 9, v{t1}")
    a(f"v_add_u32 v{v_abaseB}, v{t0}, v{t2}")
    a(f"v_mov_b32 v{v_abase}, v{v_abaseA}")
    a(f"v_mov_b32 v{v_rd}, v{v_abaseA}")
    a(f"v_and_b32 v{t0}, 31, v{v_lane}")
    a(f"v_lshlrev_b32 v{v_l16}, 4, v{t0}")
    a(f"s_lshl_b32 s{s_tmp}, s{s_i}, 5")
    a(f"v_add_u32 v{t0}, s{s_tmp}, v{t0}")
    a(f"v_lshrrev_b32 v{t2}, 1, v{t0}")
    a(f"v_and_b32 v{t2}, 7, v{t2}")
    a(f"v_xor_b32 v{t2}, v{t2}, v{t1}")
    a(f"v_lshlrev_b32 v{t2}, 4, v{t2}")
    a(f"v_lshlrev_b32 v{t0}, 7, v{t0}")
    a(f"v_add_u32 v{v_xrd}, v{t0}, v{t2}")
    a(f"v_add_u32 v{v_xrd}, {LDS_H}, v{v_xrd}")
    a(f"v_lshlrev_b32 v{v_st}, 4, v{v_lane}")
    a(f"v_mov_b32 v{v_S}, 0")
    g.stamp()
    a(f"s_waitcnt vmcnt({vq.need('cs')})")
    acc = V_FR
    for r in range(4):
        a(f"v_lshlrev_b32 v{acc+2*r}, 16, v{V_CS+r}")
        a(f"v_and_b32 v{acc+2*r+1}, 0xffff0000, v{V_CS+r}")
    for q in range(1, 4):
        for r in range(4):
            a(f"v_lshlrev_b32 v{V_FR+8}, 16, v{V_CS+4*q+r}")
            a(f"v_and_b32 v{V_FR+9}, 0xffff0000, v{V_CS+4*q+r}")
            a(f"v_add_f32 v{acc+2*r}, v{acc+2*r}, v{V_FR+8}")
            a(f"v_add_f32 v{acc+2*r+1}, v{acc+2*r+1}, v{V_FR+9}")
    a(f"ds_write_b128 v{V_M+3}, {vr(acc,4)} offset:{LDS_SCR}")
    a(f"ds_write_b128 v{V_M+3}, {vr(acc+4,4)} offset:{LDS_SCR+16}")
    x_dma(2); g.dma_full(vq, "r2")
    x_dma(3); g.dma_full(vq, "r3")
    a("s_waitcnt lgkmcnt(0)")
    a("s_barrier")
    g.stamp()
    a(f"v_lshlrev_b32 v{V_M+4}, 2, v{v_tid}")
    a(f"v_min_u32 v{V_M+5}, {383*4}, v{V_M+4}")
    for q in range(9):
        a(f"ds_read_b32 v{V_CS+q}, v{V_M+5} offset:{LDS_SCR+q*1536}")
    a(f"v_cmp_gt_u32 vcc, 384, v{v_tid}")
    a(f"v_mov_b32 v{V_M+5}, {OOB}")
    a(f"s_mul_i32 s{s_tmp}, s{s_js}, 16")
    a(f"v_cndmask_b32 v{V_M+4}, v{V_M+5}, v{V_M+4}, vcc")
    a(f"s_add_u32 s{s_tmp}, s{s_tmp}, s{s_t}")
    a(f"s_mul_i32 s{s_tmp}, s{s_tmp}, 1536")
    a(f"s_add_u32 s{s_tmp2}, s{s_tmp}, {WS_CSP}")
    a("s_waitcnt lgkmcnt(0)")
    for q in range(1, 9):
        a(f"v_add_f32 v{V_CS}, v{V_CS}, v{V_CS+q}")
    a(f"buffer_store_dword v{V_CS}, v{V_M+4}, {sr(SW,4)}, s{s_tmp2} offen sc0 sc1")
    vq.issue("cst")
    x_dma(4); g.dma_full(vq, "r4")
    x_dma(5); g.dma_full(vq, "r5")
    a(f"s_waitcnt vmcnt({vq.need('x0','r0')})")
    a("s_barrier")
    g.stamp()
    lq = Q()
    def y_read(c):
        slot = c % 6
        for s in range(4):
            reg = V_Y + (4*c + s) * 4
            tmp = V_M + 4 + (s % 2)
            off = slot * 16384
            a(f"v_xor_b32 v{tmp}, {s*32}, v{v_xrd}")
            if off >= 65536:
                a(f"v_add_u32 v{tmp}, {off}, v{tmp}")
                a(f"ds_read_b128 {vr(reg,4)}, v{tmp}")
            else:
                a(f"ds_read_b128 {vr(reg,4)}, v{tmp} offset:{off}")
            lq.issue(f"y{c}")
    def stats(c):
        lab = a.label("Lst"); lab2 = a.label("Lst2")
        a(f"s_cmp_eq_u32 s{s_jj}, 0")
        a(f"s_cbranch_scc0 {lab}")
        for r in range(16):
            a(f"v_dot2c_f32_bf16 v{v_S}, 0x3f803f80, v{V_Y+16*c+r}")
        a(f"s_branch {lab2}")
        a(f"{lab}:")
        for r in range(16):
            a(f"v_dot2c_f32_bf16 v{v_S}, v{V_Y+16*c+r}, v{V_Y+16*c+r}")
        a(f"{lab2}:")
    y_read(0)
    for s in range(4):
        g.frag_read(lq, s, s, 512, f"f{s}")
    for x in g.rd_salu() + g.rd_valu(): a(x)
    nofill = [[] for _ in range(36)]
    for e in range(9):
        misc = [[] for _ in range(36)]
        need = [f"r{e+1}"] + ([f"x{e+1}"] if e + 1 <= 8 else [])
        if e == 2:
            need = need + ["cst"]
            def sig():
                lab = a.label("Lsig")
                a(f"s_cmp_eq_u32 s{s_w}, 0")
                a(f"s_cbranch_scc0 {lab}")
                a(f"v_mov_b32 v{V_M}, 1")
                a(f"s_lshl_b32 s{s_tmp}, s{s_js}, 2")
                a(f"v_mov_b32 v{V_M+1}, s{s_tmp}")
                a("s_mov_b64 exec, 1")
                a(f"buffer_atomic_add v{V_M}, v{V_M+1}, {sr(SG,4)}, 0 offen sc1")
                a("s_mov_b64 exec, -1")
                a(f"{lab}:")
            misc[4*e].append(sig)
        if e + 1 <= 8: misc[4*e].append(lambda e=e: y_read(e + 1))
        if e < 3: misc[4*e+2].append(lambda e=e: x_dma(6 + e))
        misc[4*e+1].append(lambda e=e: stats(e))
        if e == 2:
            def sw():
                a(f"s_add_u32 s{s_Pn}, s{s_P}, 1")
                a(f"s_cmp_eq_u32 s{s_Pn}, 6")
                a(f"s_cselect_b32 s{s_Pn}, 0, s{s_Pn}")
                a(f"s_lshl_b32 s{s_tmp}, s{s_Pn}, 6")
                a(f"s_add_u32 s{s_tmp}, s{s_tmp}, s{s_F0}")
                a(f"s_lshl_b32 s{s_dso}, s{s_tmp}, 1")
            misc[4*e+2].append(sw)
        emit_epoch(g, e, 36, vq, lq, need, 512, V_Y, nofill, misc, [f"r{e+6}"], tagp="f", force_lgkm=lq.need(f"y{e}"))
    g.stamp()
    a(f"v_mov_b32 v{V_M}, v{v_S}")
    a("s_nop 1")
    a(f"v_permlane32_swap_b32 v{v_S}, v{V_M}")
    a("s_nop 1")
    a(f"v_add_f32 v{v_S}, v{v_S}, v{V_M}")
    STAT = LDS_H + 1024
    a(f"s_lshl_b32 s{s_tmp}, s{s_i}, 8")
    a(f"s_lshl_b32 s{s_tmp2}, s{s_jj}, 7")
    a(f"s_add_u32 s{s_tmp}, s{s_tmp}, s{s_tmp2}")
    a(f"s_add_u32 s{s_tmp}, s{s_tmp}, {STAT}")
    a(f"v_lshrrev_b32 v{V_M+1}, 2, v{v_l16}")
    a(f"v_add_u32 v{V_M+2}, s{s_tmp}, v{V_M+1}")
    a(f"ds_write_b32 v{V_M+2}, v{v_S}")
    a(f"s_cmp_eq_u32 s{s_w}, 0")
    a("s_cbranch_scc0 L_nopoll")
    a(f"s_lshl_b32 s{s_tmp}, s{s_js}, 2")
    a(f"v_mov_b32 v{V_M+3}, s{s_tmp}")
    a("L_poll:")
    a(f"buffer_load_dword v{V_M+4}, v{V_M+3}, {sr(SG,4)}, 0 offen sc1")
    a("s_waitcnt vmcnt(0)")
    a(f"v_readfirstlane_b32 s{s_tmp}, v{V_M+4}")
    a("s_nop 3")
    a(f"s_cmp_ge_u32 s{s_tmp}, 16")
    a("s_cbranch_scc1 L_nopoll")
    a("s_sleep 1")
    a("s_branch L_poll")
    a("L_nopoll:")
    a("s_waitcnt lgkmcnt(0)")
    a("s_barrier")
    g.stamp()
    a(f"v_lshlrev_b32 v{V_M+3}, 2, v{v_tid}")
    a(f"v_cmp_gt_u32 vcc, 384, v{v_tid}")
    a(f"v_mov_b32 v{V_M+4}, {OOB}")
    a(f"s_mul_i32 s{s_tmp}, s{s_js}, {16*1536}")
    a(f"v_cndmask_b32 v{V_M+3}, v{V_M+4}, v{V_M+3}, vcc")
    a(f"s_add_u32 s{s_tmp}, s{s_tmp}, {WS_CSP}")
    for q in range(16):
        a(f"buffer_load_dword v{V_CS+q}, v{V_M+3}, {sr(SW,4)}, s{s_tmp} offen sc0 sc1")
        if q < 15: a(f"s_add_u32 s{s_tmp}, s{s_tmp}, 1536")
    a(f"v_lshrrev_b32 v{V_M+4}, 1, v{V_M+3}")
    a(f"s_lshl_b32 s{s_tmp}, s{s_F0}, 1")
    a(f"buffer_load_ushort v{V_M+5}, v{V_M+4}, {sr(SB,4)}, s{s_tmp} offen")
    a(f"s_lshl_b32 s{s_tmp}, s{s_i}, 8")
    a(f"s_add_u32 s{s_tmp}, s{s_tmp}, {STAT}")
    a(f"v_add_u32 v{V_M+2}, s{s_tmp}, v{V_M+1}")
    a(f"ds_read_b32 v{V_T}, v{V_M+2}")
    a(f"ds_read_b32 v{V_T+1}, v{V_M+2} offset:128")
    a("s_waitcnt lgkmcnt(0)")
    mu, var, sd, tt = V_T, V_T+1, V_T+2, V_T+3
    a(f"v_mul_f32 v{mu}, {f2u(1.0/576):#x}, v{mu}")
    a(f"v_mul_f32 v{var}, {f2u(1.0/576):#x}, v{var}")
    a(f"v_fma_f32 v{var}, -v{mu}, v{mu}, v{var}")
    a(f"v_max_f32 v{var}, 0, v{var}")
    a(f"v_add_f32 v{var}, {f2u(1e-5):#x}, v{var}")
    a(f"v_sqrt_f32 v{sd}, v{var}")
    a("s_nop 0")
    a(f"v_rcp_f32 v{v_rstd}, v{sd}")
    a("s_nop 0")
    a(f"v_mul_f32 v{v_k1r}, {f2u(K1C):#x}, v{v_rstd}")
    a(f"v_mul_f32 v{v_k2r}, v{v_rstd}, v{v_rstd}")
    a(f"v_mul_f32 v{v_k2r}, v{v_k2r}, v{v_rstd}")
    a(f"v_mul_f32 v{v_k2r}, {f2u(K2C):#x}, v{v_k2r}")
    a("s_waitcnt vmcnt(0)")
    for q in range(1, 16):
        a(f"v_add_f32 v{V_CS}, v{V_CS}, v{V_CS+q}")
    a(f"v_cvt_pk_bf16_f32 v{V_HP}, v{V_CS}, v{V_CS}")
    a(f"v_lshlrev_b32 v{V_CS+1}, 16, v{V_HP}")
    a(f"v_sub_f32 v{V_CS+1}, v{V_CS}, v{V_CS+1}")
    a(f"v_cvt_pk_bf16_f32 v{V_CS+1}, v{V_CS+1}, v{V_CS+1}")
    a(f"v_and_b32 v{V_CS+1}, 0xffff, v{V_CS+1}")
    a(f"v_lshlrev_b32 v{V_CS+2}, 16, v{V_M+5}")
    a(f"v_or_b32 v{V_HP+1}, v{V_CS+1}, v{V_CS+2}")
    a(f"v_mov_b32 v{V_HP+2}, v{V_M+5}")
    a(f"v_mov_b32 v{V_HP+3}, 0")
    a(f"v_lshrrev_b32 v{V_M+3}, 5, v{v_tid}")
    a(f"v_lshlrev_b32 v{V_M+3}, 11, v{V_M+3}")
    a(f"v_add_u32 v{V_M+3}, v{V_M+3}, v{v_l16}")
    a(f"v_add_u32 v{V_M+3}, {LDS_H}, v{V_M+3}")
    a(f"v_cmp_gt_u32 vcc, 384, v{v_tid}")
    a("s_and_saveexec_b64 s[52:53], vcc")
    a("s_cbranch_execz L_notab")
    for i in range(4):
        if i*24576 < 65536:
            a(f"ds_write_b128 v{V_M+3}, {vr(V_HP,4)} offset:{i*24576}")
        else:
            a(f"v_add_u32 v{V_M+3}, {i*24576}, v{V_M+3}")
            a(f"ds_write_b128 v{V_M+3}, {vr(V_HP,4)}")
    a("L_notab:")
    a("s_mov_b64 exec, s[52:53]")
    nm, mh, ml, sh, sl = V_T+4, V_T+5, V_T+6, V_T+7, V_M+6
    a(f"v_sub_f32 v{nm}, 0, v{mu}")
    a(f"v_cvt_pk_bf16_f32 v{mh}, v{nm}, v{sd}")
    a(f"v_lshlrev_b32 v{ml}, 16, v{mh}")
    a(f"v_and_b32 v{sh}, 0xffff0000, v{mh}")
    a(f"v_sub_f32 v{ml}, v{nm}, v{ml}")
    a(f"v_sub_f32 v{sl}, v{sd}, v{sh}")
    a(f"v_cvt_pk_bf16_f32 v{ml}, v{ml}, v{sl}")
    a(f"v_mov_b32 v{V_AUGB+1}, v{mh}")
    a(f"v_and_b32 v{V_AUGB}, 0xffff, v{mh}")
    a(f"v_lshlrev_b32 v{tt}, 16, v{ml}")
    a(f"v_or_b32 v{V_AUGB}, v{V_AUGB}, v{tt}")
    a(f"v_lshrrev_b32 v{V_AUGB+2}, 16, v{ml}")
    a(f"v_mov_b32 v{V_AUGB+3}, 0")
    a(f"v_cmp_gt_u32 vcc, 32, v{v_lane}")
    a("s_nop 1")
    for r in range(3):
        a(f"v_cndmask_b32 v{V_AUGB+r}, 0, v{V_AUGB+r}, vcc")
    a("s_waitcnt lgkmcnt(0)")
    a("s_barrier")
    g.stamp()
    def tile_salu():
        return [f"s_lshl_b32 s{s_tmp}, s{s_P}, 1", f"s_add_u32 s{s_tmp}, s{s_tmp}, s{s_jj}", f"s_mul_i32 s{s_tmp2}, s{s_i}, 12",
                f"s_add_u32 s{s_tmp2}, s{s_tmp2}, s{s_tmp}", f"s_lshl_b32 s{s_tmp2}, s{s_tmp2}, 11", f"s_add_u32 s{s_hwn}, s{s_tmp2}, {LDS_H}"]
    for x in tile_salu(): a(x)
    a(f"v_add_u32 v{V_M}, s{s_hwn}, v{v_l16}")
    a(f"ds_read_b128 {vr(V_AUGA,4)}, v{V_M}")
    a(f"v_add_u32 v{v_hw}, s{s_hwn}, v{v_st}")
    a("s_waitcnt lgkmcnt(0)")
    a(f"{MFMA} {vr(V_G,16)}, {vr(V_AUGA,4)}, {vr(V_AUGB,4)}, {vr(V_G,16)}")
    a(f"s_mov_b32 s{s_P}, s{s_Pn}")
    a(f"s_mov_b32 s{s_n}, 1")
    a(f"s_lshl_b32 s58, s{s_F0}, 1")
    a(f"s_mul_i32 s59, s{s_i}, 12")
    a(f"s_add_u32 s59, s59, s{s_jj}")
    a(f"s_lshl_b32 s59, s59, 11")
    a(f"s_add_u32 s59, s59, {LDS_H}")
    BARA = [0, 2, 4, 6, 8]
    a(".p2align 3")
    a("L_A:")
    g.inloop = True
    vq = Q(); lq = Q()
    for e in range(-9, 0): vq.issue(f"r{e+6}")
    for s in range(0, 4): lq.issue(f"g{s}"); lq.issue(f"g{s}")
    excl = [4*e - 1 for e in BARA if e > 0] + [35]
    slots = [sl for sl in range(1, 35) if sl not in excl]
    base = g.flagval("cap", 20)
    ok = False; extra = 0
    while not ok:
        caps = {sl: base for sl in slots}
        for j in range(extra):
            caps[slots[(j * len(slots)) // max(extra, 1)]] = base + 4
        ok, fill, dsw = gelu_sched(slots, 36, caps, maxT=g.flagval("maxT", 2), GS=g.flagval("gs", 4), gapP=g.flagval("gp", 2), gapT=g.flagval("gt", 3))
        if not ok: extra += 1
        assert extra <= len(slots)
    if "nogelu" in g.flags:
        fill = [[] for _ in range(36)]; dsw = [[] for _ in range(36)]
    g.info = f"gelu base {base} extra slots {extra}"
    misc = [list(dsw[s]) for s in range(36)]
    def sw():
        a(f"s_add_u32 s{s_Pn}, s{s_P}, 1")
        a(f"s_cmp_eq_u32 s{s_Pn}, 6")
        a(f"s_cselect_b32 s{s_Pn}, 0, s{s_Pn}")
        a(f"s_lshl_b32 s{s_tmp}, s{s_Pn}, 7")
        a(f"s_add_u32 s{s_dso}, s{s_tmp}, s58")
        a(f"s_cmp_eq_u32 s{s_n}, 5")
        a(f"s_cbranch_scc1 L_A_sw")
        a(f"L_A_swret:")
    misc[4*2+2].append(sw)
    misc[4*5+1] += [f"s_lshl_b32 s{s_tmp}, s{s_P}, 12", f"s_add_u32 s{s_hwn}, s59, s{s_tmp}"]
    def augrd():
        a(f"v_add_u32 v{V_M}, s{s_hwn}, v{v_l16}")
        a(f"ds_read_b128 {vr(V_AUGA,4)}, v{V_M}")
        lq.issue("aug")
    misc[4*8+0].append(augrd)
    misc[4*8+1] += [f"s_mov_b32 s{s_P}, s{s_Pn}", f"s_add_u32 s{s_n}, s{s_n}, 1", f"s_cmp_le_u32 s{s_n}, 5"]
    def endx(s):
        if s == 35:
            a(f"s_waitcnt lgkmcnt({min(15, lq.need('aug'))})")
            a(f"{MFMA} {vr(V_G,16)}, {vr(V_AUGA,4)}, {vr(V_AUGB,4)}, {vr(V_G,16)}")
            a(f"v_add_u32 v{v_hw}, s{s_hwn}, v{v_st}")
    for e in range(9):
        if "profA" in g.flags: a(f"s_memtime s[{80+2*e}:{81+2*e}]")
        bar = e in BARA
        nb = (e + 1) in BARA or e == 8
        tags = [f"r{e+1}", f"r{e+2}"] if e < 8 else [f"r{e+1}"]
        emit_epoch(g, e, 36, vq, lq, tags, 512, V_Y, fill, misc, [f"r{e+6}"], end_extra=endx, bar=bar, nextbar=nb)
    if "profA" in g.flags: a(f"s_memtime s[98:99]")
    a(f"s_cbranch_scc1 L_A")
    a("s_branch L_A_done")
    a(f"L_A_sw:")
    a(f"s_mov_b32 s{SD}, s{S_W2}")
    a(f"s_mov_b32 s{SD+1}, s{S_W2+1}")
    a(f"s_mov_b32 s{SD+2}, {SIZES['B_w2']}")
    a(f"s_mov_b32 s{s_dstep}, {64*W2_RS}")
    a(f"s_mul_i32 s57, s{s_F0}, {W2_RS}")
    a(f"s_lshl_b32 s{s_tmp}, s{s_Pd0}, 7")
    a(f"s_add_u32 s{s_dso}, s57, s{s_tmp}")
    a(f"v_mov_b32 v{v_doff}, v{v_doffB}")
    a(f"s_branch L_A_swret")
    a("L_A_done:")
    g.stamp()
    a("s_nop 15")
    for ins in gelu_plain(): a(ins)
    a("s_waitcnt vmcnt(0) lgkmcnt(0)")
    a("s_barrier")
    a(f"s_mul_i32 s{s_tmp}, s{s_i}, {12*2048}")
    a(f"s_add_u32 s{s_tmp}, s{s_tmp}, {LDS_H}")
    a(f"v_add_u32 v{V_M}, s{s_tmp}, v{v_st}")
    for s in range(24):
        a(f"ds_read_b128 {vr(V_Y+4*s,4)}, v{V_M} offset:{s*1024}")
    a(f"v_sub_u16 v{V_M+1}, v{v_rd}, v{v_abaseA}")
    a(f"v_add_u16 v{V_M+1}, v{V_M+1}, v{v_abaseB}")
    a(f"v_add_u16 v{v_rd}, 0xe000, v{V_M+1}")
    lq = Q()
    a("s_waitcnt lgkmcnt(0)")
    for s in range(4):
        g.frag_read(lq, s, s, 1024, f"g{s}")
    a(f"v_mov_b32 v{v_rd}, v{V_M+1}")
    g.stamp()
    a(f"s_lshl_b32 s{s_tmp}, s{s_t}, 2")
    a(f"s_add_u32 s{s_tmp}, s{s_tmp}, s{s_i}")
    a(f"s_mul_i32 s{s_tmp}, s{s_tmp}, {18*16}")
    a(f"s_add_u32 s{s_tmp}, s{s_tmp}, s{s_js}")
    a(f"s_lshl_b32 s{s_posbase}, s{s_tmp}, 11")
    a(f"s_lshl_b32 s{s_tmp}, s{s_jj}, 15")
    a(f"s_add_u32 s{s_posbase}, s{s_posbase}, s{s_tmp}")
    a(f"s_mov_b32 s{s_pos}, {OOB}")
    a(f"s_mov_b32 s{s_P}, s{s_Pd0}")
    a(f"s_add_u32 s{s_tmp}, s{s_P}, 1")
    a(f"s_cmp_eq_u32 s{s_tmp}, 9")
    a(f"s_cselect_b32 s{s_tmp}, 0, s{s_tmp}")
    a(f"s_lshl_b32 s{s_tmp}, s{s_tmp}, 7")
    a(f"s_add_u32 s{s_dso}, s57, s{s_tmp}")
    a(f"s_mov_b32 s{s_n}, 0")
    def epi_list():
        L = []
        for r in range(16): L.append(f"v_mul_f32 v{V_G+r}, v{V_G+r}, v{v_rstd}")
        for r in range(8): L.append(f"v_cvt_pk_bf16_f32 v{V_HP+r}, v{V_G+2*r}, v{V_G+2*r+1}")
        return L
    st0 = f"buffer_store_dwordx4 {vr(V_HP,4)}, v{v_st}, {sr(SW,4)}, s{s_pos} offen"
    st1 = f"buffer_store_dwordx4 {vr(V_HP+4,4)}, v{v_st}, {sr(SW,4)}, s{s_pos} offen offset:1024"
    a(".p2align 3")
    a("L_B:")
    BARB = [0, 2, 4]
    fillB = [[] for _ in range(24)]
    miscB = [[] for _ in range(24)]
    el = epi_list()
    sl = [2, 3, 4, 5, 6, 8]
    for idx, ins in enumerate(el): fillB[sl[idx * len(sl) // len(el)]].append(ins)
    if "noepi" in g.flags: fillB = [[] for _ in range(24)]
    p0, p1 = g.flagval("sta", 9), g.flagval("stb", 13)
    if "nostore" not in g.flags:
        miscB[p0].append(st0); miscB[p1].append(st1)
    miscB[17] += [f"s_add_u32 s{s_Pn}, s{s_P}, 1", f"s_cmp_eq_u32 s{s_Pn}, 9", f"s_cselect_b32 s{s_Pn}, 0, s{s_Pn}"]
    miscB[18] += [f"s_lshl_b32 s{s_tmp}, s{s_P}, 16", f"s_add_u32 s{s_pos}, s{s_posbase}, s{s_tmp}"]
    miscB[21] += [f"s_add_u32 s{s_tmp}, s{s_Pn}, 1", f"s_cmp_eq_u32 s{s_tmp}, 9", f"s_cselect_b32 s{s_tmp}, 0, s{s_tmp}", f"s_lshl_b32 s{s_tmp}, s{s_tmp}, 7"]
    miscB[22] += [f"s_add_u32 s{s_dso}, s57, s{s_tmp}", f"s_mov_b32 s{s_P}, s{s_Pn}", f"s_add_u32 s{s_n}, s{s_n}, 1", f"s_cmp_lt_u32 s{s_n}, 9"]
    vq = Q(); lq = Q()
    for e in range(6):
        for k in range(4):
            s = 4*e + k
            if k == 0: vq.issue(f"r{e}")
            for ins in miscB[s]:
                if isinstance(ins, str) and ins.startswith("buffer_store"): vq.issue("st")
    for s in range(4): lq.issue(f"g{s}"); lq.issue(f"g{s}")
    for e in range(6):
        if "prof" in g.flags: a(f"s_memtime s[{80+2*e}:{81+2*e}]")
        bar = e in BARB
        nb = (e + 1) in BARB or e == 5
        emit_epoch(g, e, 24, vq, lq, [f"r{e+1}", f"r{e+2}"], 1024, V_Y, fillB, miscB, [f"r{e+6}"], bar=bar, nextbar=nb)
    if "prof" in g.flags: a(f"s_memtime s[92:93]")
    a(f"s_cbranch_scc1 L_B")
    g.stamp()
    a("s_nop 15")
    for ins in epi_list(): a(ins)
    a(st0); a(st1)
    a("s_waitcnt vmcnt(0) lgkmcnt(0)")
    g.stamp()
    if g.stamps:
        a("s_waitcnt lgkmcnt(0)")
        a(f"s_lshl_b32 s{s_tmp}, s2, 3")
        a(f"s_add_u32 s{s_tmp}, s{s_tmp}, s{s_w}")
        a(f"s_lshl_b32 s{s_tmp}, s{s_tmp}, 6")
        a(f"s_add_u32 s{s_tmp}, s{s_tmp}, {WS_STAMP}")
        a("s_mov_b64 exec, 1")
        a(f"v_mov_b32 v{V_M+1}, 0")
        lst = [S_ST+2*i for i in range(g.nst)]
        if "prof" in g.flags: lst = [80, 82, 84, 86, 88, 90, 92]
        if "profA" in g.flags: lst = [80, 82, 84, 86, 88, 90, 92, 94, 96, 98]
        if g.flagval("fine", -1) >= 0: lst = [80, 82, 84, 86, 88, 90, 92, 94]
        for i in range(len(lst)):
            a(f"v_mov_b32 v{V_M}, s{lst[i]}")
            a(f"buffer_store_dword v{V_M}, v{V_M+1}, {sr(SW,4)}, s{s_tmp} offen offset:{4*i}")
        a("s_waitcnt vmcnt(0)")
```

```python
import sys
from asmlib import *
from mlp3 import *
import k2_red
from attn2 import gen_attn
from k2_red import gen_k2

def gen_k1(stamps=False, flags=()):
    g = Gen(stamps, flags)
    a = g.a
    a("s_cmp_ge_u32 s2, 256")
    a("s_cbranch_scc1 L_end1")
    a(f"s_load_dwordx2 s[{SW}:{SW+1}], s[0:1], {KA['ws']}")
    a(f"s_load_dwordx2 s[{SG}:{SG+1}], s[0:1], {KA['dbg']}")
    g.stamp()
    if "rt" in flags:
        a("s_memrealtime s[96:97]")
        a("s_memtime s[98:99]")
    a(f"s_and_b32 s{s_tmp}, s2, 7")
    a(f"s_lshr_b32 s{s_tmp2}, s2, 3")
    a(f"s_cmp_ge_u32 s{s_tmp2}, 24")
    a("s_cbranch_scc1 L_attn")
    a(f"s_load_dwordx2 s[{SX}:{SX+1}], s[0:1], {KA['A_x']}")
    a(f"s_load_dwordx2 s[{SD}:{SD+1}], s[0:1], {KA['B_w1']}")
    a(f"s_load_dwordx2 s[{SB}:{SB+1}], s[0:1], {KA['B_b1']}")
    a(f"s_load_dwordx2 s[{S_W2}:{S_W2+1}], s[0:1], {KA['B_w2']}")
    a(f"s_mul_i32 s{s_tmp3}, s{s_tmp2}, 43")
    a(f"s_lshr_b32 s{s_tmp3}, s{s_tmp3}, 8")
    a(f"s_mul_i32 s{s_js}, s{s_tmp3}, 6")
    a(f"s_sub_u32 s{s_js}, s{s_tmp2}, s{s_js}")
    a(f"s_and_b32 s{s_t}, s{s_tmp}, 1")
    a(f"s_mul_i32 s{s_t}, s{s_t}, 6")
    a(f"s_add_u32 s{s_js}, s{s_js}, s{s_t}")
    a(f"s_lshr_b32 s{s_t}, s{s_tmp}, 1")
    a(f"s_lshl_b32 s{s_t}, s{s_t}, 2")
    a(f"s_add_u32 s{s_t}, s{s_t}, s{s_tmp3}")
    if "norot" in flags:
        a(f"s_mov_b32 s{s_P}, 0"); a(f"s_mov_b32 s{s_Pd0}, 0")
    else:
        a(f"s_mov_b32 s{s_P}, s{s_tmp3}")
        a(f"s_lshl_b32 s{s_Pd0}, s{s_tmp3}, 1")
    a("s_waitcnt lgkmcnt(0)")
    for (r, n) in ((SX, "A_x"), (SD, "B_w1"), (SW, "ws"), (SG, "dbg"), (SB, "B_b1")):
        finish_srd(a, r, n)
    gen_mlp(g)
    a("s_branch L_rt" if "rt" in flags else "s_branch L_end1")
    a("L_attn:")
    if "noattn" not in flags:
        a(f"s_load_dwordx2 s[{SX}:{SX+1}], s[0:1], {KA['A_x']}")
        a(f"s_load_dwordx2 s[{SD}:{SD+1}], s[0:1], {KA['A_wqkv']}")
        a(f"s_load_dwordx2 s[{S_W2}:{S_W2+1}], s[0:1], {KA['A_wo']}")
        a(f"s_load_dwordx2 s[58:59], s[0:1], {KA['gate_w']}")
        a(f"s_sub_u32 s{s_tmp2}, s{s_tmp2}, 24")
        a(f"s_and_b32 s{s_js}, s{s_tmp}, 1")
        a(f"s_lshl_b32 s{s_js}, s{s_js}, 1")
        a(f"s_and_b32 s{s_tmp3}, s{s_tmp2}, 1")
        a(f"s_add_u32 s{s_js}, s{s_js}, s{s_tmp3}")
        a(f"s_lshr_b32 s{s_t}, s{s_tmp}, 1")
        a(f"s_lshl_b32 s{s_t}, s{s_t}, 2")
        a(f"s_lshr_b32 s{s_tmp3}, s{s_tmp2}, 1")
        a(f"s_add_u32 s{s_t}, s{s_t}, s{s_tmp3}")
        a(f"s_lshl_b32 s{s_Pd0}, s{s_tmp3}, 1")
        a("s_waitcnt lgkmcnt(0)")
        for (r, n) in ((SX, "A_x"), (SD, "A_wqkv"), (SW, "ws"), (SG, "dbg")):
            finish_srd(a, r, n)
        g.inloop = False
        gen_attn(g)
    if "rt" in flags:
        a("L_rt:")
        a("s_memrealtime s[100:101]")
        a("s_memtime s[94:95]")
        a("s_waitcnt lgkmcnt(0)")
        a("s_not_b32 s96, s96")
        a("s_sub_u32 s98, s94, s98")
        a("s_mov_b64 exec, 1")
        a("v_mov_b32 v1, 48")
        a("v_mov_b32 v2, s96")
        a(f"buffer_atomic_umax v2, v1, {sr(SG,4)}, 0 offen sc1")
        a("v_mov_b32 v3, s100")
        a(f"buffer_atomic_umax v3, v1, {sr(SG,4)}, 0 offen offset:4 sc1")
        a("v_mov_b32 v4, s98")
        a(f"buffer_atomic_umax v4, v1, {sr(SG,4)}, 0 offen offset:8 sc1")
        a("s_waitcnt vmcnt(0)")
    a("L_end1:")
    print(g.info, file=sys.stderr)
    return kernel_wrap("k1_kernel", a.text(), vgpr=256, sgpr=102, accum=256)

if __name__ == "__main__":
    out = sys.argv[1]
    stamps = "stamps" in sys.argv
    mode = "b" if "bonly" in sys.argv else "full"
    k1 = gen_k1(stamps, flags=sys.argv[2:])
    k2 = gen_k2(mode)
    launches = [("k1_kernel", (256,1,1), (512,1,1), LDS_TOTAL), ("k2_kernel", (576,1,1), (256,1,1), 0)]
    open(out, "w").write(file_wrap(launches, [k1, k2]))
```

```python
from asmlib import *
from mlp3 import *

WQ_RS = 3456
TS = 272
LDS_T = LDS_H
LDS_KVA = LDS_T + 158 * TS
LDS_O2 = LDS_KVA + 16384
LDS_GW = LDS_T + 320 * TS
O2S = 304
assert LDS_O2 + 128 * O2S <= LDS_TOTAL and LDS_GW + 1152 <= LDS_TOTAL
WS_KV = WS_G + 2048 * 4
KVH = 18 * 80
DBG_Z = 16 * 4
DBG_KV = 20 * 4
s_g4 = s_js
s_mask = 56
v_row, v_cp, v_zf = 96, 97, 98
WPAIR = 144 * 128

def phi_chain(e, T, U):
    G = V_G + e
    return [(f"v_min_f32 v{T}, 0, v{G}", 4), (f"v_mul_f32 v{T}, {f2u(LOG2E):#x}, v{T}", 4), (f"v_exp_f32 v{T}, v{T}", 8),
            (f"v_max_f32 v{U}, 0, v{G}", 4), (f"v_add_f32 v{U}, {f2u(1e-6):#x}, v{U}", 4), (f"v_add_f32 v{T}, v{T}, v{U}", 4),
            (f"v_cndmask_b32 v{T}, v{G}, v{T}, s[{s_mask}:{s_mask+1}]", 4)]

def phi_groups():
    L = []
    for q in range(4):
        T = [V_T + e for e in range(4)]; U = [V_T + 4 + e for e in range(4)]
        ch = [phi_chain(4*q+e, T[e], U[e]) for e in range(4)]
        order = [0, 1, 3, 2, 4, 5, 6]
        for o in order:
            for e in range(4): L.append(ch[e][o][0])
        L.append(f"v_cvt_pk_bf16_f32 v{V_HP+2*q}, v{T[0]}, v{T[1]}")
        L.append(f"v_cvt_pk_bf16_f32 v{V_HP+2*q+1}, v{T[2]}, v{T[3]}")
        L.append(f"ds_write_b64 v{V_M+7}, {vr(V_HP+2*q,2)} offset:{16*q}")
    return L

def gen_attn(g):
    a = g.a
    stl = [60]
    def stp(reg=None):
        if g.stamps:
            r = reg if reg is not None else 64 + 2 * (len(stl) - 2)
            stl.append(r)
            a(f"s_memtime s[{r}:{r+1}]")
    a.c("attention role v2")
    a(f"v_and_b32 v{v_lane}, 63, v{v_tid}")
    a(f"v_lshrrev_b32 v{V_M}, 6, v{v_tid}")
    a("s_nop 0")
    a(f"v_readfirstlane_b32 s{s_w}, v{V_M}")
    t0, t1, t2, xo = V_T, V_T+1, V_T+2, 99
    a(f"v_lshrrev_b32 v{t0}, 3, v{v_lane}")
    a(f"v_and_b32 v{t2}, 7, v{v_lane}")
    a(f"s_lshl_b32 s{s_tmp}, s{s_w}, 3")
    a(f"v_add_u32 v{t0}, s{s_tmp}, v{t0}")
    a(f"v_lshrrev_b32 v{t1}, 1, v{t0}")
    a(f"v_and_b32 v{t1}, 7, v{t1}")
    a(f"v_xor_b32 v{t1}, v{t1}, v{t2}")
    a(f"v_lshlrev_b32 v{t1}, 4, v{t1}")
    a(f"v_mul_u32_u24 v{xo}, {X_RS}, v{t0}")
    a(f"v_add_u32 v{xo}, v{xo}, v{t1}")
    a(f"s_mul_i32 s{s_xso}, s{s_t}, {128*X_RS}")
    a(f"s_lshl_b32 s{s_xw}, s{s_w}, 10")
    vq = Q()
    def x_dma(c):
        slot = c % 6
        a(f"s_add_u32 m0, s{s_xw}, {LDS_H+slot*16384}")
        a(f"s_add_u32 s{s_tmp}, s{s_xso}, {c*128}")
        a(f"buffer_load_dwordx4 v{xo}, {sr(SX,4)}, s{s_tmp} offen lds")
        vq.issue(f"x{c}")
        a(f"s_add_u32 m0, s{s_xw}, {LDS_H+slot*16384+8192}")
        a(f"s_add_u32 s{s_tmp}, s{s_xso}, {c*128+64*X_RS}")
        a(f"buffer_load_dwordx4 v{xo}, {sr(SX,4)}, s{s_tmp} offen lds")
        vq.issue(f"x{c}")
    x_dma(0)
    a(f"v_lshrrev_b32 v{t1}, 4, v{v_lane}")
    a(f"v_and_b32 v{t1}, 1, v{t1}")
    a(f"v_lshlrev_b32 v{t1}, 2, v{t1}")
    a(f"v_xor_b32 v{v_cp}, v{t1}, v{t2}")
    a(f"v_mul_u32_u24 v{v_row}, {WQ_RS}, v{t0}")
    a(f"v_lshlrev_b32 v{t1}, 4, v{v_cp}")
    a(f"v_mul_u32_u24 v{v_doffB}, {W2_RS}, v{t0}")
    a(f"v_add_u32 v{v_doffB}, v{v_doffB}, v{t1}")
    a(f"s_mul_i32 s55, s{s_g4}, {128 if 'alignq' in g.flags else 144}")
    def set_doff_list(sP):
        m = V_M
        return [f"s_lshl_b32 s{s_tmp}, s{sP}, 6",
                f"v_lshlrev_b32 v{m}, 3, v{v_cp}",
                f"v_add_u32 v{m}, s{s_tmp}, v{m}",
                f"v_mov_b32 v{m+1}, 576",
                f"v_mov_b32 v{m+2}, 1008",
                f"v_cmp_le_u32 vcc, 144, v{m}",
                f"v_mov_b32 v{m+3}, -288",
                "s_nop 0",
                f"v_cndmask_b32 v{m+1}, v{m+1}, v{m+2}, vcc",
                f"v_cmp_le_u32 vcc, 288, v{m}",
                f"v_add_u32 v{m}, s55, v{m}",
                "s_nop 0",
                f"v_cndmask_b32 v{m+1}, v{m+1}, v{m+3}, vcc",
                f"v_add_u32 v{m}, v{m}, v{m+1}",
                f"v_lshlrev_b32 v{m}, 1, v{m}",
                f"v_add_u32 v{v_doff}, v{v_row}, v{m}"]
    a(f"s_mul_i32 s54, s{s_t}, 52")
    a(f"s_lshr_b32 s54, s54, 8")
    a(f"s_mul_i32 s54, s54, 5")
    a(f"s_sub_u32 s54, s{s_t}, s54")
    if "norot" in g.flags: a("s_mov_b32 s54, 0")
    a(f"s_mov_b32 s{s_P}, s54")
    a(f"s_mov_b32 s{s_n}, 0")
    for x in set_doff_list(s_P): a(x)
    a(f"s_mov_b32 s{s_wo}, s{s_xw}")
    a(f"s_mov_b32 s{s_dstep}, {64*WQ_RS}")
    a(f"s_mov_b32 s{s_dso}, 0")
    g.dma_full(vq, "r0")
    if "ob" in g.flags: a("s_barrier")
    x_dma(1); g.dma_full(vq, "r1")
    if "ob" in g.flags: a("s_barrier")
    if "oldpf" in g.flags:
        a(f"s_and_b32 s{s_tmp2}, s{s_t}, 3")
        a(f"s_mul_i32 s{s_tmp2}, s{s_tmp2}, {144*WQ_RS}")
        a(f"s_mul_i32 s{s_tmp3}, s{s_g4}, 288")
        a(f"s_and_b32 s{s_tmp3}, s{s_tmp3}, 0xffffff80")
        a(f"s_add_u32 s52, s{s_tmp2}, s{s_tmp3}")
        touch(g, vq, SD, 4, 1728, 52, ('qkv',), V_T+4, V_M+7)
    a(f"s_cmp_eq_u32 s{s_t}, 0")
    a("s_cbranch_scc0 L_nozero")
    for r in range(4): a(f"v_mov_b32 v{V_HP+r}, 0")
    a(f"v_lshlrev_b32 v{V_M}, 4, v{v_tid}")
    a(f"s_mul_i32 s{s_tmp}, s{s_g4}, {8*KVH}")
    a(f"s_add_u32 s{s_tmp}, s{s_tmp}, {WS_KV}")
    a(f"buffer_store_dwordx4 {vr(V_HP,4)}, v{V_M}, {sr(SW,4)}, s{s_tmp} offen sc0 sc1")
    a(f"v_add_u32 v{V_M}, 8192, v{V_M}")
    a(f"v_cmp_gt_u32 vcc, 11520, v{V_M}")
    a(f"v_mov_b32 v{V_M+1}, {OOB}")
    a("s_nop 0")
    a(f"v_cndmask_b32 v{V_M}, v{V_M+1}, v{V_M}, vcc")
    a(f"buffer_store_dwordx4 {vr(V_HP,4)}, v{V_M}, {sr(SW,4)}, s{s_tmp} offen sc0 sc1")
    a("s_waitcnt vmcnt(0)")
    a("s_barrier")
    a(f"s_cmp_eq_u32 s{s_w}, 0")
    a("s_cbranch_scc0 L_nozero")
    a(f"v_mov_b32 v{V_M}, 1")
    a(f"s_lshl_b32 s{s_tmp}, s{s_g4}, 2")
    a(f"s_add_u32 s{s_tmp}, s{s_tmp}, {DBG_Z}")
    a(f"v_mov_b32 v{V_M+1}, s{s_tmp}")
    a("s_mov_b64 exec, 1")
    a(f"buffer_atomic_add v{V_M}, v{V_M+1}, {sr(SG,4)}, 0 offen sc1")
    a("s_mov_b64 exec, -1")
    a("L_nozero:")
    for c in range(2, 6):
        x_dma(c); g.dma_full(vq, f"r{c}")
    if "mpf" in g.flags:
        a(f"s_mul_i32 s{s_tmp2}, s{s_w}, 18")
        a(f"v_add_u32 v{V_T+4}, s{s_tmp2}, v{v_lane}")
        a(f"v_lshrrev_b32 v{V_T+5}, 2, v{V_T+4}")
        a(f"v_mul_u32_u24 v{V_T+5}, {WQ_RS}, v{V_T+5}")
        a(f"v_and_b32 v{V_T+6}, 3, v{V_T+4}")
        a(f"v_lshlrev_b32 v{V_T+6}, 7, v{V_T+6}")
        a(f"v_add_u32 v{V_T+5}, v{V_T+5}, v{V_T+6}")
        a(f"v_cmp_gt_u32 vcc, 18, v{v_lane}")
        a(f"v_mov_b32 v{V_T+6}, {OOB}")
        a(f"s_mul_i32 s{s_tmp2}, s{s_t}, {36*WQ_RS}")
        a(f"v_cndmask_b32 v{V_T+5}, v{V_T+6}, v{V_T+5}, vcc")
        a(f"s_mul_i32 s{s_tmp3}, s{s_g4}, 288")
        a(f"s_and_b32 s{s_tmp3}, s{s_tmp3}, 0xffffff80")
        a(f"s_add_u32 s52, s{s_tmp2}, s{s_tmp3}")
        a(f"buffer_load_dword v{V_T+7}, v{V_T+5}, {sr(SD,4)}, s52 offen")
        vq.issue("mpf")
        a(f"s_mov_b32 s88, s{S_W2}")
        a(f"s_mov_b32 s89, s{S_W2+1}")
        a(f"s_mov_b32 s90, {SIZES['A_wo']}")
        a(f"s_mov_b32 s91, 0x00020000")
        a(f"s_mul_i32 s{s_tmp2}, s{s_t}, 9")
        a(f"s_add_u32 s{s_tmp2}, s{s_tmp2}, s55")
        a(f"s_mul_i32 s{s_tmp2}, s{s_tmp2}, {W2_RS}")
        a(f"s_mul_i32 s{s_tmp3}, s{s_w}, {11*128}")
        a(f"s_add_u32 s52, s{s_tmp2}, s{s_tmp3}")
        a(f"v_lshlrev_b32 v{V_T+5}, 7, v{v_lane}")
        a(f"v_cmp_gt_u32 vcc, 11, v{v_lane}")
        a("s_nop 1")
        a(f"v_cndmask_b32 v{V_T+5}, v{V_T+6}, v{V_T+5}, vcc")
        a(f"buffer_load_dword v{V_T+7}, v{V_T+5}, s[88:91], s52 offen")
        vq.issue("mpf")
    a(f"s_and_b32 s{s_i}, s{s_w}, 3")
    a(f"s_lshr_b32 s{s_jj}, s{s_w}, 2")
    a(f"v_and_b32 v{t0}, 15, v{v_lane}")
    a(f"v_lshrrev_b32 v{t0}, 2, v{t0}")
    a(f"v_lshrrev_b32 v{t1}, 1, v{t0}")
    a(f"v_xor_b32 v{t1}, s{s_jj}, v{t1}")
    a(f"v_lshlrev_b32 v{t1}, 6, v{t1}")
    a(f"v_lshlrev_b32 v{t0}, 7, v{t0}")
    a(f"v_add_u32 v{t0}, v{t0}, v{t1}")
    a(f"v_lshrrev_b32 v{t1}, 4, v{v_lane}")
    a(f"v_and_b32 v{t1}, 1, v{t1}")
    a(f"v_lshlrev_b32 v{t1}, 5, v{t1}")
    a(f"v_add_u32 v{t0}, v{t0}, v{t1}")
    a(f"v_and_b32 v{t1}, 3, v{v_lane}")
    a(f"v_lshlrev_b32 v{t1}, 3, v{t1}")
    a(f"v_add_u32 v{t0}, v{t0}, v{t1}")
    a(f"v_lshrrev_b32 v{t1}, 5, v{v_lane}")
    a(f"v_lshlrev_b32 v{t2}, 10, v{t1}")
    a(f"v_add_u32 v{v_abase}, v{t0}, v{t2}")
    a(f"v_mov_b32 v{v_rd}, v{v_abase}")
    a(f"v_and_b32 v{t0}, 31, v{v_lane}")
    a(f"v_lshlrev_b32 v{v_l16}, 4, v{t0}")
    a(f"s_lshl_b32 s{s_tmp}, s{s_i}, 5")
    a(f"v_add_u32 v{t0}, s{s_tmp}, v{t0}")
    a(f"v_lshrrev_b32 v{t2}, 1, v{t0}")
    a(f"v_and_b32 v{t2}, 7, v{t2}")
    a(f"v_xor_b32 v{t2}, v{t2}, v{t1}")
    a(f"v_lshlrev_b32 v{t2}, 4, v{t2}")
    a(f"v_lshlrev_b32 v{t0}, 7, v{t0}")
    a(f"v_add_u32 v{v_xrd}, v{t0}, v{t2}")
    a(f"v_add_u32 v{v_xrd}, {LDS_H}, v{v_xrd}")
    a(f"v_lshlrev_b32 v{v_st}, 4, v{v_lane}")
    a(f"v_and_b32 v{t0}, 31, v{v_lane}")
    a(f"v_mul_u32_u24 v{v_hw}, {TS}, v{t0}")
    a(f"v_lshlrev_b32 v{t1}, 3, v{t1}")
    a(f"v_add_u32 v{v_hw}, v{v_hw}, v{t1}")
    a(f"s_lshl_b32 s{s_tmp}, s{s_i}, 6")
    a(f"s_add_u32 s{s_tmp}, s{s_tmp}, {LDS_T}")
    a(f"v_add_u32 v{v_hw}, s{s_tmp}, v{v_hw}")
    a(f"s_waitcnt vmcnt({vq.need('x0','r0')})")
    a("s_barrier")
    stp(62)
    lq = Q()
    def y_read(c):
        slot = c % 6
        for s in range(4):
            reg = V_Y + (4*c + s) * 4
            tmp = V_M + 4 + (s % 2)
            off = slot * 16384
            a(f"v_xor_b32 v{tmp}, {s*32}, v{v_xrd}")
            if off >= 65536:
                a(f"v_add_u32 v{tmp}, {off}, v{tmp}")
                a(f"ds_read_b128 {vr(reg,4)}, v{tmp}")
            else:
                a(f"ds_read_b128 {vr(reg,4)}, v{tmp} offset:{off}")
            lq.issue(f"y{c}")
    def mask_row_list(sP):
        return [f"s_lshl_b32 s{s_tmp}, s{sP}, 6",
                f"s_lshl_b32 s{s_tmp2}, s{s_jj}, 5",
                f"s_add_u32 s{s_tmp}, s{s_tmp}, s{s_tmp2}",
                f"v_lshrrev_b32 v{V_M}, 4, v{v_l16}",
                f"v_add_u32 v{V_M}, s{s_tmp}, v{V_M}",
                f"v_mov_b32 v{V_M+1}, 288",
                f"v_cmp_gt_u32 vcc, 144, v{V_M}",
                f"v_cmp_ge_u32 s[{s_mask}:{s_mask+1}], v{V_M}, v{V_M+1}",
                f"s_cmp_ge_u32 s{s_tmp}, 320",
                f"s_cselect_b32 s{s_tmp2}, 288, 0",
                f"s_sub_u32 s{s_tmp}, s{s_tmp}, s{s_tmp2}",
                f"s_mul_i32 s{s_hwn}, s{s_tmp}, {TS}",
                f"s_or_b64 s[{s_mask}:{s_mask+1}], s[{s_mask}:{s_mask+1}], vcc",
                f"v_add_u32 v{V_M+7}, s{s_hwn}, v{v_hw}"]
    y_read(0)
    for s in range(4):
        g.frag_read(lq, s, s, 512, f"f{s}")
    for x in g.rd_valu(): a(x)
    nofill = [[] for _ in range(36)]
    def next_pair_list():
        return [f"s_add_u32 s{s_tmp2}, s{s_n}, 1", f"s_min_u32 s{s_tmp2}, s{s_tmp2}, 6",
                f"s_add_u32 s{s_tmp3}, s{s_tmp2}, s54",
                f"s_cmp_ge_u32 s{s_tmp3}, 5", f"s_cselect_b32 s{s_Pn}, 5, 0", f"s_sub_u32 s{s_Pn}, s{s_tmp3}, s{s_Pn}",
                f"s_add_u32 s{s_tmp3}, s{s_tmp3}, 1", f"s_and_b32 s{s_tmp3}, s{s_tmp3}, 1", f"s_add_u32 s{s_tmp3}, s{s_tmp3}, 5",
                f"s_cmp_ge_u32 s{s_tmp2}, 5", f"s_cselect_b32 s{s_Pn}, s{s_tmp3}, s{s_Pn}"] + set_doff_list(s_Pn) + [f"s_cmp_eq_u32 s{s_n}, 6", f"s_cselect_b32 s{s_dso}, {OOB}, 0"]
    V_PF = 100
    if "tpf" in g.flags:
        a(f"s_mov_b32 s88, s{S_W2}")
        a(f"s_mov_b32 s89, s{S_W2+1}")
        a(f"s_mov_b32 s90, {SIZES['A_wo']}")
        a(f"s_mov_b32 s91, 0x00020000")
        a(f"s_and_b32 s{s_tmp2}, s{s_t}, 3")
        a(f"s_mul_i32 s{s_tmp2}, s{s_tmp2}, 36")
        a(f"s_add_u32 s{s_tmp2}, s{s_tmp2}, s55")
        a(f"s_mul_i32 s{s_tmp2}, s{s_tmp2}, {W2_RS}")
        a(f"s_mul_i32 s{s_tmp3}, s{s_w}, 5184")
        a(f"s_add_u32 s{s_tmp2}, s{s_tmp2}, s{s_tmp3}")
        a(f"v_mov_b32 v{V_PF}, s{s_tmp2}")
        a(f"v_cmp_gt_u32 vcc, 1, v{v_lane}")
        a(f"v_mov_b32 v{V_PF+1}, {OOB}")
        a("s_nop 0")
        a(f"v_cndmask_b32 v{V_PF}, v{V_PF+1}, v{V_PF}, vcc")
    def pf():
        a(f"buffer_load_dword v{V_PF+2}, v{V_PF}, s[88:91], 0 offen")
        vqh[0].issue("pf")
        a(f"v_add_u32 v{V_PF}, 128, v{V_PF}")
    vqh = [vq]
    for e in range(9):
        misc = [[] for _ in range(36)]
        need = [f"r{e+1}"] + ([f"x{e+1}"] if e + 1 <= 8 else [])
        if e + 1 <= 8: misc[4*e].append(lambda e=e: y_read(e + 1))
        if e < 3: misc[4*e+2].append(lambda e=e: x_dma(6 + e))
        if e == 2: misc[4*e+1] += next_pair_list()
        if "tpf" in g.flags: misc[4*e+2].append(pf)
        emit_epoch(g, e, 36, vq, lq, need, 512, V_Y, nofill, misc, [f"r{e+6}"], tagp="f", force_lgkm=lq.need(f"y{e}"), swap=True)
    stp()
    for x in mask_row_list(s_P): a(x)
    a(f"s_mov_b32 s{s_P}, s{s_Pn}")
    a(f"s_mov_b32 s{s_n}, 1")
    BARA = [0, 2, 4, 6, 8]
    a(".p2align 3")
    a("L_T:")
    if g.stamps:
        a(f"s_cmp_eq_u32 s{s_n}, 6")
        a("s_cbranch_scc0 L_T_nost")
        a("s_memtime s[92:93]")
        a("L_T_nost:")
    g.inloop = True
    vq = Q(); lq = Q()
    vqh[0] = vq
    for e in range(-9, 0):
        vq.issue(f"r{e+6}")
        if "tpf" in g.flags: vq.issue("pf")
    for s in range(0, 4): lq.issue(f"g{s}"); lq.issue(f"g{s}")
    excl = [4*e - 1 for e in BARA if e > 0] + [35]
    slots = [sl for sl in range(3, 30) if sl not in excl]
    pl = phi_groups()
    fill = [[] for _ in range(36)]; misc = [[] for _ in range(36)]
    tot = sum(8 if x.startswith("v_exp") else (4 if x.startswith("v_") else 0) for x in pl)
    per = tot / len(slots); acc = 0.0; si = 0
    for ins in pl:
        c = 8 if ins.startswith("v_exp") else (4 if ins.startswith("v_") else 0)
        if ins.startswith("ds_write"):
            misc[slots[min(si, len(slots)-1)]].append(ins); continue
        while si < len(slots) - 1 and acc + c / 2 > per * (si + 1): si += 1
        fill[slots[si]].append(ins); acc += c
    npl = next_pair_list()
    misc[8] += npl[:11]; misc[9] += npl[11:20]; misc[10] += npl[20:]
    def kvsig():
        lab = a.label("Lkvs")
        a(f"s_cmp_eq_u32 s{s_n}, 5")
        a(f"s_cbranch_scc0 {lab}")
        a(f"s_cmp_eq_u32 s{s_w}, 0")
        a(f"s_cbranch_scc0 {lab}")
        a(f"v_mov_b32 v{V_M}, 1")
        a(f"s_lshl_b32 s{s_tmp}, s{s_g4}, 2")
        a(f"s_add_u32 s{s_tmp}, s{s_tmp}, {DBG_KV}")
        a(f"v_mov_b32 v{V_M+1}, s{s_tmp}")
        a("s_mov_b64 exec, 1")
        a(f"buffer_atomic_add v{V_M}, v{V_M+1}, {sr(SG,4)}, 0 offen sc1")
        a("s_mov_b64 exec, -1")
        a(f"{lab}:")
    misc[16].append(kvsig)
    def zload():
        a(f"s_lshl_b32 s{s_tmp}, s{s_g4}, 2")
        a(f"s_add_u32 s{s_tmp}, s{s_tmp}, {DBG_Z}")
        a(f"v_mov_b32 v{V_M+2}, s{s_tmp}")
        a(f"buffer_load_dword v{v_zf}, v{V_M+2}, {sr(SG,4)}, 0 offen sc1")
        vq.issue("zf")
    misc[13].append(zload)
    if "tpf" in g.flags:
        for e in range(9): misc[4*e+2].append(pf)
    if "oldpf" in g.flags:
        def pfwo():
            a(f"s_cmp_eq_u32 s{s_n}, 3")
            a(f"s_cbranch_scc1 L_T_pf")
            a(f"L_T_pfret:")
        misc[20].append(pfwo)
    mrl = mask_row_list(s_P)
    misc[32] += mrl[:7]; misc[33] += mrl[7:]
    for e in range(9):
        bar = e in BARA
        nb = (e + 1) in BARA or e == 8
        tags = [f"r{e+1}", f"r{e+2}"] if e < 8 else [f"r{e+1}"]
        emit_epoch(g, e, 36, vq, lq, tags, 512, V_Y, fill, misc, [f"r{e+6}"], bar=bar, nextbar=nb, swap=True)
    a(f"s_cmp_eq_u32 s{s_n}, 4")
    a("s_cbranch_scc1 L_KV")
    a("L_KV_ret:")
    a(f"s_mov_b32 s{s_P}, s{s_Pn}")
    a(f"s_add_u32 s{s_n}, s{s_n}, 1")
    a(f"s_cmp_le_u32 s{s_n}, 6")
    a("s_cbranch_scc1 L_T")
    a("s_branch L_T_done")
    if "oldpf" in g.flags:
        a("L_T_pf:")
        a(f"s_mov_b32 s88, s{S_W2}")
        a(f"s_mov_b32 s89, s{S_W2+1}")
        a(f"s_mov_b32 s90, {SIZES['A_wo']}")
        a(f"s_mov_b32 s91, 0x00020000")
        a(f"s_and_b32 s{s_tmp2}, s{s_t}, 3")
        a(f"s_mul_i32 s{s_tmp2}, s{s_tmp2}, 36")
        a(f"s_mul_i32 s{s_tmp3}, s{s_g4}, 144")
        a(f"s_add_u32 s{s_tmp2}, s{s_tmp2}, s{s_tmp3}")
        a(f"s_mul_i32 s52, s{s_tmp2}, {W2_RS}")
        touch(g, None, 88, 1, 324, 52, ('lin',), V_M+2, 98+2)
        a("s_branch L_T_pfret")
    a("L_KV:")
    stp()
    a("s_nop 11")
    for ins in phi_groups(): a(ins)
    a("s_waitcnt lgkmcnt(0)")
    a("s_barrier")
    m = V_M
    a(f"s_mul_i32 s{s_tmp}, s{s_w}, {18*TS}")
    a(f"s_add_u32 s{s_tmp}, s{s_tmp}, {LDS_T}")
    a(f"v_lshrrev_b32 v{m}, 4, v{v_l16}")
    a(f"v_mul_u32_u24 v{m+1}, {TS}, v{m}")
    a(f"v_lshrrev_b32 v{m+2}, 5, v{v_lane}")
    a(f"v_lshlrev_b32 v{m+2}, 4, v{m+2}")
    a(f"v_add_u32 v{m+1}, v{m+1}, v{m+2}")
    a(f"v_add_u32 v{m+1}, s{s_tmp}, v{m+1}")
    a(f"v_add_u32 v{m+2}, {144*TS}, v{m+1}")
    a(f"v_cmp_eq_u32 vcc, 18, v{m}")
    a(f"v_mov_b32 v{m+3}, 0x3f803f80")
    BUF = [V_T, V_HP]
    def kvrd(s):
        b = BUF[s % 2]
        a(f"ds_read_b128 {vr(b,4)}, v{m+1} offset:{32*s}")
        a(f"ds_read_b128 {vr(b+4,4)}, v{m+2} offset:{32*s}")
    kvrd(0)
    for s in range(8):
        if s + 1 < 8: kvrd(s + 1)
        a(f"s_waitcnt lgkmcnt({2 if s + 1 < 8 else 0})")
        b = BUF[s % 2]
        for j in range(4):
            a(f"v_cndmask_b32 v{b+4+j}, v{b+4+j}, v{m+3}, vcc")
        a("s_nop 1")
        C = "0" if s == 0 else vr(V_ACC, 16)
        a(f"{MFMA} {vr(V_ACC,16)}, {vr(b,4)}, {vr(b+4,4)}, {C}")
        a("s_nop 3")
    a(f"s_waitcnt vmcnt(5)")
    a(f"v_readfirstlane_b32 s{s_tmp}, v{v_zf}")
    a("s_nop 3")
    a(f"s_cmp_ge_u32 s{s_tmp}, 1")
    a("s_cbranch_scc1 L_zok")
    a(f"s_lshl_b32 s{s_tmp}, s{s_g4}, 2")
    a(f"s_add_u32 s{s_tmp}, s{s_tmp}, {DBG_Z}")
    a(f"v_mov_b32 v{m+4}, s{s_tmp}")
    a("L_zpoll:")
    a(f"buffer_load_dword v{m+5}, v{m+4}, {sr(SG,4)}, 0 offen sc1")
    a("s_waitcnt vmcnt(0)")
    a(f"v_readfirstlane_b32 s{s_tmp}, v{m+5}")
    a("s_nop 3")
    a(f"s_cmp_ge_u32 s{s_tmp}, 1")
    a("s_cbranch_scc1 L_zok")
    a("s_sleep 1")
    a("s_branch L_zpoll")
    a("L_zok:")
    a(f"s_lshl_b32 s{s_tmp}, s{s_g4}, 3")
    a(f"s_add_u32 s{s_tmp}, s{s_tmp}, s{s_w}")
    a(f"s_mul_i32 s{s_tmp}, s{s_tmp}, {KVH}")
    a(f"s_add_u32 s{s_tmp}, s{s_tmp}, {WS_KV}")
    a(f"v_lshrrev_b32 v{m+2}, 5, v{v_lane}")
    a(f"v_mul_u32_u24 v{m+2}, {4*80}, v{m+2}")
    a(f"v_lshlrev_b32 v{m+3}, 2, v{m}")
    a(f"v_add_u32 v{m+2}, v{m+2}, v{m+3}")
    a(f"v_cmp_gt_u32 vcc, 19, v{m}")
    a(f"v_mov_b32 v{m+3}, {OOB}")
    a("s_nop 0")
    a(f"v_cndmask_b32 v{m+2}, v{m+3}, v{m+2}, vcc")
    a(f"v_cmp_gt_u32 vcc, 32, v{v_lane}")
    a("s_nop 1")
    a(f"v_cndmask_b32 v{m+4}, v{m+3}, v{m+2}, vcc")
    a("s_nop 7")
    for r in range(10):
        d0 = 8 * (r // 4) + (r % 4)
        vo = m + 2 if r < 8 else m + 4
        if "noatom" not in g.flags:
            a(f"buffer_atomic_add_f32 v{V_ACC+r}, v{vo}, {sr(SW,4)}, s{s_tmp} offen offset:{d0*80}")
    a("s_barrier")
    a(f"s_cmp_eq_u32 s{s_jj}, 1")
    a("s_cbranch_scc0 L_KV_nomv")
    a(f"v_add_u32 v{m+5}, {288*TS}, v{v_hw}")
    for q in range(4):
        a(f"ds_read_b64 {vr(V_T+2*q,2)}, v{m+5} offset:{16*q}")
    a("s_waitcnt lgkmcnt(0)")
    for q in range(4):
        a(f"ds_write_b64 v{v_hw}, {vr(V_T+2*q,2)} offset:{16*q}")
    a("L_KV_nomv:")
    a(f"v_add_u32 v{m+7}, {322*TS}, v{v_hw}")
    stp()
    a("s_branch L_KV_ret")
    a("L_T_done:")
    g.inloop = False
    stp()
    a("s_waitcnt vmcnt(0) lgkmcnt(0)")
    a("s_barrier")
    a(f"s_mov_b32 s{SD}, s{S_W2}")
    a(f"s_mov_b32 s{SD+1}, s{S_W2+1}")
    a(f"s_mov_b32 s{SD+2}, {SIZES['A_wo']}")
    a(f"s_mul_i32 s{s_F0}, s{s_g4}, {144*W2_RS}")
    def wo_pair_dma(j, ldsbase):
        a(f"s_add_u32 s{s_tmp}, s{s_Pd0}, {j}")
        a(f"s_cmp_ge_u32 s{s_tmp}, 9")
        a(f"s_cselect_b32 s{s_tmp2}, 9, 0")
        a(f"s_sub_u32 s{s_tmp}, s{s_tmp}, s{s_tmp2}")
        a(f"s_lshl_b32 s{s_tmp}, s{s_tmp}, 7")
        a(f"s_add_u32 s{s_dso}, s{s_F0}, s{s_tmp}")
        for mm in range(2):
            a(f"s_add_u32 m0, s{s_xw}, {ldsbase + mm*8192}")
            a(f"s_add_u32 s{s_tmp}, s{s_dso}, {mm*64*W2_RS}")
            a(f"buffer_load_dwordx4 v{v_doffB}, {sr(SD,4)}, s{s_tmp} offen lds")
        lab = a.label("Lw3")
        a(f"s_cmp_lt_u32 s{s_w}, 2")
        a(f"s_cbranch_scc0 {lab}")
        a(f"s_add_u32 m0, s{s_xw}, {ldsbase + 2*8192}")
        a(f"s_add_u32 s{s_tmp}, s{s_dso}, {2*64*W2_RS}")
        a(f"buffer_load_dwordx4 v{v_doffB}, {sr(SD,4)}, s{s_tmp} offen lds")
        a(f"{lab}:")
    for j in range(3): wo_pair_dma(j, j * WPAIR)
    a(f"s_load_dwordx2 s[52:53], s[0:1], {KA['gate_w']}")
    a("s_nop 7")
    for ins in phi_groups(): a(ins)
    a("s_waitcnt lgkmcnt(0)")
    a(f"s_mov_b32 s{SB}, s52")
    a(f"s_mov_b32 s{SB+1}, s53")
    a(f"s_mov_b32 s{SB+2}, {SIZES['gate_w']}")
    a(f"s_mov_b32 s{SB+3}, 0x00020000")
    a(f"s_cmp_lt_u32 s{s_w}, 2")
    a("s_cbranch_scc0 L_nogw")
    a(f"s_add_u32 m0, s{s_xw}, {LDS_GW}")
    a(f"v_lshlrev_b32 v{m}, 4, v{v_tid}")
    a(f"buffer_load_dwordx4 v{m}, {sr(SB,4)}, 0 offen lds")
    a("L_nogw:")
    a(f"s_cmp_eq_u32 s{s_w}, 0")
    a("s_cbranch_scc0 L_kvnopoll")
    a(f"s_lshl_b32 s{s_tmp}, s{s_g4}, 2")
    a(f"s_add_u32 s{s_tmp}, s{s_tmp}, {DBG_KV}")
    a(f"v_mov_b32 v{m+4}, s{s_tmp}")
    a("L_kvpoll:")
    a(f"buffer_load_dword v{m+5}, v{m+4}, {sr(SG,4)}, 0 offen sc1")
    a("s_waitcnt vmcnt(0)")
    a(f"v_readfirstlane_b32 s{s_tmp}, v{m+5}")
    a("s_nop 3")
    a(f"s_cmp_ge_u32 s{s_tmp}, 16")
    a("s_cbranch_scc1 L_kvnopoll")
    a("s_sleep 1")
    a("s_branch L_kvpoll")
    a("L_kvnopoll:")
    a("s_waitcnt vmcnt(0) lgkmcnt(0)")
    a("s_barrier")
    stp()
    a(f"s_lshl_b32 s{s_tmp}, s{s_g4}, 3")
    a(f"s_add_u32 s{s_tmp}, s{s_tmp}, s{s_w}")
    a(f"s_mul_i32 s{s_tmp}, s{s_tmp}, {KVH}")
    a(f"s_add_u32 s{s_tmp}, s{s_tmp}, {WS_KV}")
    a(f"v_lshrrev_b32 v{m}, 4, v{v_l16}")
    a(f"v_lshlrev_b32 v{m+1}, 2, v{m}")
    a(f"v_mov_b32 v{m+3}, {OOB}")
    a(f"v_cmp_gt_u32 vcc, 19, v{m}")
    a("s_nop 1")
    a(f"v_cndmask_b32 v{m+1}, v{m+3}, v{m+1}, vcc")
    a(f"v_cmp_gt_u32 vcc, 32, v{v_lane}")
    a(f"v_add_u32 v{m+2}, {16*80}, v{m+1}")
    a("s_nop 0")
    a(f"v_cndmask_b32 v{m+2}, v{m+2}, v{m+1}, vcc")
    a(f"v_cndmask_b32 v{m+4}, v{m+3}, v{m+1}, vcc")
    KL = V_G
    for j in range(16):
        vo = m + 2 if j < 2 else m + 4
        a(f"buffer_load_dword v{KL+j}, v{vo}, {sr(SW,4)}, s{s_tmp} offen offset:{j*80} sc0 sc1")
    a(f"s_cmp_eq_u32 s{s_i}, s{s_g4}")
    a("s_cbranch_scc0 L_nogate")
    a(f"v_lshrrev_b32 v{m+5}, 5, v{v_lane}")
    a(f"v_lshlrev_b32 v{m+5}, 4, v{m+5}")
    a(f"v_add_u32 v{m+5}, {LDS_GW}, v{m+5}")
    a(f"v_mov_b32 v{v_S}, 0")
    a(f"s_cmp_eq_u32 s{s_jj}, 1")
    a("s_cbranch_scc1 L_gate1")
    for half in range(2):
        if half == 1: a("L_gate1:")
        GB = [V_FR, V_FR + 4, V_FR + 8, V_FR + 12]
        ks = list(range(18 * half, 18 * half + 18))
        for idx in range(3):
            a(f"ds_read_b128 {vr(GB[idx % 4],4)}, v{m+5} offset:{32*ks[idx]}")
        for idx, s in enumerate(ks):
            if idx + 3 < 18:
                a(f"ds_read_b128 {vr(GB[(idx+3) % 4],4)}, v{m+5} offset:{32*ks[idx+3]}")
            a(f"s_waitcnt lgkmcnt({min(3, 17 - idx)})")
            for j in range(4):
                a(f"v_dot2c_f32_bf16 v{v_S}, v{GB[idx % 4]+j}, v{V_Y+4*s+j}")
        if half == 0: a("s_branch L_gate2")
    a("L_gate2:")
    a("s_nop 4")
    a(f"v_mov_b32 v{m+6}, v{v_S}")
    a("s_nop 1")
    a(f"v_permlane32_swap_b32 v{v_S}, v{m+6}")
    a("s_nop 1")
    a(f"v_add_f32 v{v_S}, v{v_S}, v{m+6}")
    a(f"s_lshl_b32 s{s_tmp2}, s{s_jj}, 7")
    a(f"s_add_u32 s{s_tmp2}, s{s_tmp2}, {LDS_GW + 1152}")
    a(f"v_lshrrev_b32 v{m+6}, 2, v{v_l16}")
    a(f"v_add_u32 v{m+6}, s{s_tmp2}, v{m+6}")
    a(f"ds_write_b32 v{m+6}, v{v_S}")
    a("L_nogate:")
    a("s_waitcnt vmcnt(0)")
    for j in range(8):
        a(f"v_cvt_pk_bf16_f32 v{V_HP+j}, v{KL+2*j}, v{KL+2*j+1}")
    a(f"s_lshl_b32 s{s_tmp}, s{s_w}, 11")
    a(f"s_add_u32 s{s_tmp}, s{s_tmp}, {LDS_KVA}")
    a(f"v_lshlrev_b32 v{m}, 2, v{v_l16}")
    a(f"v_lshrrev_b32 v{m+1}, 5, v{v_lane}")
    a(f"v_lshlrev_b32 v{m+1}, 5, v{m+1}")
    a(f"v_add_u32 v{m}, v{m}, v{m+1}")
    a(f"v_add_u32 v{m}, s{s_tmp}, v{m}")
    a(f"ds_write_b128 v{m}, {vr(V_HP,4)}")
    a(f"ds_write_b128 v{m}, {vr(V_HP+4,4)} offset:16")
    a("s_waitcnt lgkmcnt(0)")
    a("s_barrier")
    a(f"s_cmp_eq_u32 s{s_w}, s{s_g4}")
    a("s_cbranch_scc0 L_nogate2")
    a(f"v_lshrrev_b32 v{m+6}, 2, v{v_l16}")
    a(f"v_add_u32 v{m+5}, {LDS_GW + 1152}, v{m+6}")
    a(f"ds_read_b32 v{v_S}, v{m+5}")
    a(f"ds_read_b32 v{m+4}, v{m+5} offset:128")
    a("s_waitcnt lgkmcnt(0)")
    a(f"v_add_f32 v{v_S}, v{v_S}, v{m+4}")
    a(f"v_mul_f32 v{v_S}, {f2u(-LOG2E):#x}, v{v_S}")
    a(f"v_exp_f32 v{v_S}, v{v_S}")
    a("s_nop 0")
    a(f"v_add_f32 v{v_S}, 1.0, v{v_S}")
    a(f"v_rcp_f32 v{v_S}, v{v_S}")
    a(f"s_lshl_b32 s{s_tmp}, s{s_t}, 7")
    a(f"s_lshl_b32 s{s_tmp2}, s{s_g4}, 5")
    a(f"s_add_u32 s{s_tmp}, s{s_tmp}, s{s_tmp2}")
    a(f"s_lshl_b32 s{s_tmp}, s{s_tmp}, 2")
    a(f"s_add_u32 s{s_tmp}, s{s_tmp}, {WS_G}")
    a("s_mov_b32 exec_hi, 0")
    a(f"buffer_store_dword v{v_S}, v{m+6}, {sr(SW,4)}, s{s_tmp} offen sc0 sc1")
    a("s_mov_b32 exec_hi, -1")
    a("L_nogate2:")
    stp()
    a(f"v_and_b32 v{m}, 15, v{v_lane}")
    a(f"v_lshrrev_b32 v{m}, 2, v{m}")
    a(f"v_lshrrev_b32 v{m+1}, 5, v{v_lane}")
    a(f"v_lshlrev_b32 v{m+2}, 3, v{m+1}")
    a(f"v_add_u32 v{m}, v{m}, v{m+2}")
    a(f"v_mul_u32_u24 v{m}, {TS}, v{m}")
    a(f"v_lshrrev_b32 v{m+2}, 4, v{v_lane}")
    a(f"v_and_b32 v{m+2}, 1, v{m+2}")
    a(f"v_lshlrev_b32 v{m+2}, 5, v{m+2}")
    a(f"v_add_u32 v{m}, v{m}, v{m+2}")
    a(f"v_and_b32 v{m+2}, 3, v{v_lane}")
    a(f"v_lshlrev_b32 v{m+2}, 3, v{m+2}")
    a(f"v_add_u32 v{m}, v{m}, v{m+2}")
    a(f"s_lshl_b32 s{s_tmp}, s{s_i}, 6")
    a(f"s_mul_i32 s{s_tmp2}, s{s_jj}, {4*18*TS}")
    a(f"s_add_u32 s{s_tmp}, s{s_tmp}, s{s_tmp2}")
    a(f"s_add_u32 s{s_tmp}, s{s_tmp}, {LDS_T}")
    a(f"v_add_u32 v{m}, s{s_tmp}, v{m}")
    a(f"v_lshlrev_b32 v{m+2}, 2, v{v_l16}")
    a(f"v_lshlrev_b32 v{m+3}, 4, v{m+1}")
    a(f"v_add_u32 v{m+2}, v{m+2}, v{m+3}")
    a(f"s_lshl_b32 s{s_tmp}, s{s_jj}, 13")
    a(f"s_add_u32 s{s_tmp}, s{s_tmp}, {LDS_KVA}")
    a(f"v_add_u32 v{m+2}, s{s_tmp}, v{m+2}")
    a(f"v_lshrrev_b32 v{m+3}, 4, v{v_l16}")
    a(f"v_mul_u32_u24 v{m+3}, {O2S}, v{m+3}")
    a(f"v_lshlrev_b32 v{m+4}, 3, v{m+1}")
    a(f"v_add_u32 v{m+3}, v{m+3}, v{m+4}")
    a(f"s_mul_i32 s{s_tmp}, s{s_i}, {32*O2S}")
    a(f"s_mul_i32 s{s_tmp2}, s{s_jj}, {4*36}")
    a(f"s_add_u32 s{s_tmp}, s{s_tmp}, s{s_tmp2}")
    a(f"s_add_u32 s{s_tmp}, s{s_tmp}, {LDS_O2}")
    a(f"v_add_u32 v{m+3}, s{s_tmp}, v{m+3}")
    for hh in range(4):
        FA, FB = V_Y + 16*hh, V_Y + 16*hh + 8
        for s in range(2):
            a(f"ds_read_b128 {vr(FA+4*s,4)}, v{m+2} offset:{hh*2048+32*s}")
            a(f"ds_read_b64_tr_b16 {vr(FB+4*s,2)}, v{m} offset:{(18*hh+16*s)*TS}")
            a(f"ds_read_b64_tr_b16 {vr(FB+4*s+2,2)}, v{m} offset:{(18*hh+16*s+4)*TS}")
        if hh == 1: a("s_waitcnt lgkmcnt(6)") if False else None
    a("s_waitcnt lgkmcnt(0)")
    for hh in range(4):
        FA, FB, R = V_Y + 16*hh, V_Y + 16*hh + 8, V_Y + 64 + 16*hh
        a(f"{MFMA} {vr(R,16)}, {vr(FA,4)}, {vr(FB,4)}, 0")
        a(f"{MFMA} {vr(R,16)}, {vr(FA+4,4)}, {vr(FB+4,4)}, {vr(R,16)}")
    a("s_nop 7")
    for hh in range(4):
        R = V_Y + 64 + 16*hh
        if hh == 3: a("s_nop 7")
        a(f"v_mov_b32 v{V_T}, v{R+10}")
        a(f"v_mov_b32 v{V_T+1}, v{R+10}")
        a("s_nop 1")
        a(f"v_permlane32_swap_b32 v{V_T+1}, v{V_T}")
        a("s_nop 1")
        a(f"v_add_f32 v{V_T+1}, {f2u(1e-6):#x}, v{V_T+1}")
        a(f"v_rcp_f32 v{V_T+1}, v{V_T+1}")
        a("s_nop 0")
        for r in range(10): a(f"v_mul_f32 v{R+r}, v{R+r}, v{V_T+1}")
        for p in range(5): a(f"v_cvt_pk_bf16_f32 v{V_HP+p}, v{R+2*p}, v{R+2*p+1}")
        for p in range(4):
            a(f"ds_write_b32 v{m+3}, v{V_HP+p} offset:{hh*36 + (p//2)*16 + (p%2)*4}")
        a("s_mov_b32 exec_hi, 0")
        a(f"ds_write_b32 v{m+3}, v{V_HP+4} offset:{hh*36 + 32}")
        a("s_mov_b32 exec_hi, -1")
    a("s_waitcnt lgkmcnt(0)")
    a("s_barrier")
    a(f"v_lshrrev_b32 v{m}, 4, v{v_l16}")
    a(f"v_mul_u32_u24 v{m}, {O2S}, v{m}")
    a(f"v_lshrrev_b32 v{m+1}, 5, v{v_lane}")
    a(f"v_lshlrev_b32 v{m+1}, 4, v{m+1}")
    a(f"v_add_u32 v{m}, v{m}, v{m+1}")
    a(f"s_mul_i32 s{s_tmp}, s{s_i}, {32*O2S}")
    a(f"s_add_u32 s{s_tmp}, s{s_tmp}, {LDS_O2}")
    a(f"v_add_u32 v{m}, s{s_tmp}, v{m}")
    for s in range(9):
        a(f"ds_read_b128 {vr(V_Y+4*s,4)}, v{m} offset:{32*s}")
    a("s_waitcnt lgkmcnt(0)")
    a("s_barrier")
    stp()
    a(f"s_lshl_b32 s{s_tmp}, s{s_t}, 2")
    a(f"s_add_u32 s{s_tmp}, s{s_tmp}, s{s_i}")
    a(f"s_mul_i32 s{s_tmp}, s{s_tmp}, {18*16}")
    a(f"s_add_u32 s{s_tmp}, s{s_tmp}, s{s_g4}")
    a(f"s_add_u32 s{s_tmp}, s{s_tmp}, 12")
    a(f"s_lshl_b32 s{s_posbase}, s{s_tmp}, 11")
    a(f"s_add_u32 s{s_posbase}, s{s_posbase}, {WS_P}")
    a(f"s_lshl_b32 s{s_tmp}, s{s_jj}, 15")
    a(f"s_add_u32 s{s_posbase}, s{s_posbase}, s{s_tmp}")
    a(f"s_mov_b32 s{s_P}, s{s_Pd0}")
    a(f"s_mov_b32 s{s_n}, 0")
    a(f"s_mov_b32 s{s_ro}, 0")
    sf = " nt" if "stnt" in g.flags else (" sc0 sc1" if "stsc" in g.flags else (" sc1" if "stsc1" in g.flags else (" sc0 sc1 nt" if "stall" in g.flags else "")))
    st0 = f"buffer_store_dwordx4 {vr(V_HP,4)}, v{v_st}, {sr(SW,4)}, s{s_pos} offen{sf}"
    st1 = f"buffer_store_dwordx4 {vr(V_HP+4,4)}, v{v_st}, {sr(SW,4)}, s{s_pos} offen offset:1024{sf}"
    a(f"s_mov_b32 s{s_pos}, {OOB}")
    a(".p2align 3")
    a("L_W:")
    a(f"s_cmp_eq_u32 s{s_n}, 3")
    a("s_cbranch_scc1 L_W_sync3")
    a(f"s_cmp_eq_u32 s{s_n}, 8")
    a("s_cbranch_scc1 L_W_sync8")
    a("L_W_go:")
    a(f"s_cmp_lt_u32 s{s_n}, 3")
    a("s_cbranch_scc1 L_W_dma")
    a("L_W_dmaret:")
    a(f"v_add_u32 v{v_rd}, s{s_ro}, v{v_abase}")
    def wrd(s):
        r = V_FR + 4 * (s % 6)
        a(f"ds_read_b64_tr_b16 {vr(r,2)}, v{v_rd} offset:{s*2048}")
        a(f"ds_read_b64_tr_b16 {vr(r+2,2)}, v{v_rd} offset:{s*2048+512}")
    for s in range(5): wrd(s)
    for r in range(8): a(f"v_cvt_pk_bf16_f32 v{V_HP+r}, v{V_G+2*r}, v{V_G+2*r+1}")
    a(st0); a(st1)
    issued = 5
    for s in range(9):
        outstanding_after = 2 * (min(issued, 9) - (s + 1))
        a(f"s_waitcnt lgkmcnt({outstanding_after})")
        D = V_G if s == 8 else V_ACC
        C = "0" if s == 0 else vr(V_ACC, 16)
        a(f"{MFMA} {vr(D,16)}, {vr(V_FR+4*(s%6),4)}, {vr(V_Y+4*s,4)}, {C}")
        if issued < 9:
            wrd(issued); issued += 1
    a(f"s_lshl_b32 s{s_tmp}, s{s_P}, 16")
    a(f"s_add_u32 s{s_pos}, s{s_posbase}, s{s_tmp}")
    a(f"s_add_u32 s{s_P}, s{s_P}, 1")
    a(f"s_cmp_eq_u32 s{s_P}, 9")
    a(f"s_cselect_b32 s{s_P}, 0, s{s_P}")
    a(f"s_add_u32 s{s_n}, s{s_n}, 1")
    a(f"s_mul_i32 s{s_ro}, s{s_n}, {WPAIR}")
    a(f"s_cmp_ge_u32 s{s_n}, 3")
    a(f"s_cselect_b32 s{s_tmp}, {LDS_H - 3*WPAIR}, 0")
    a(f"s_add_u32 s{s_ro}, s{s_ro}, s{s_tmp}")
    a(f"s_cmp_eq_u32 s{s_n}, 8")
    a(f"s_cselect_b32 s{s_ro}, 0, s{s_ro}")
    a("s_nop 4")
    a(f"s_cmp_lt_u32 s{s_n}, 9")
    a("s_cbranch_scc1 L_W")
    a("s_branch L_W_done")
    a("L_W_dma:")
    a(f"s_cmp_eq_u32 s{s_n}, 1")
    a("s_cbranch_scc1 L_W_dma1")
    a(f"s_cmp_eq_u32 s{s_n}, 2")
    a("s_cbranch_scc1 L_W_dma2")
    wo_pair_dma(3, LDS_H + 0 * WPAIR); wo_pair_dma(4, LDS_H + 1 * WPAIR)
    a("s_branch L_W_dmaret")
    a("L_W_dma1:")
    wo_pair_dma(5, LDS_H + 2 * WPAIR); wo_pair_dma(6, LDS_H + 3 * WPAIR)
    a("s_branch L_W_dmaret")
    a("L_W_dma2:")
    wo_pair_dma(7, LDS_H + 4 * WPAIR)
    a("s_branch L_W_dmaret")
    a("L_W_sync3:")
    a("s_waitcnt vmcnt(0)")
    a("s_barrier")
    wo_pair_dma(8, 0)
    a("s_branch L_W_go")
    a("L_W_sync8:")
    a("s_waitcnt vmcnt(0)")
    a("s_barrier")
    a("s_branch L_W_go")
    a("L_W_done:")
    a("s_nop 15")
    for r in range(8): a(f"v_cvt_pk_bf16_f32 v{V_HP+r}, v{V_G+2*r}, v{V_G+2*r+1}")
    a(st0); a(st1)
    a("s_waitcnt vmcnt(0) lgkmcnt(0)")
    stp()
    if g.stamps:
        a("s_waitcnt lgkmcnt(0)")
        a(f"s_lshl_b32 s{s_tmp}, s2, 3")
        a(f"s_add_u32 s{s_tmp}, s{s_tmp}, s{s_w}")
        a(f"s_lshl_b32 s{s_tmp}, s{s_tmp}, 6")
        a(f"s_add_u32 s{s_tmp}, s{s_tmp}, {WS_STAMP}")
        a("s_mov_b64 exec, 1")
        a(f"v_mov_b32 v{V_M+1}, 0")
        stl.append(92)
        for i, r in enumerate(stl):
            a(f"v_mov_b32 v{V_M}, s{r}")
            a(f"buffer_store_dword v{V_M}, v{V_M+1}, {sr(SW,4)}, s{s_tmp} offen offset:{4*i}")
        a("s_waitcnt vmcnt(0)")
```

```python
from asmlib import *
from mlp3 import WS_P, WS_G, vr, sr
def gen_k2(mode="full", nmlp=12, natt=4, rt=False, xmap=True):
    a = Asm()
    SW, SO, SB2 = 4, 8, 12
    a(f"s_load_dwordx2 s[{SW}:{SW+1}], s[0:1], {KA['ws']}")
    a(f"s_load_dwordx2 s[{SO}:{SO+1}], s[0:1], {KA['out']}")
    a(f"s_load_dwordx2 s[{SB2}:{SB2+1}], s[0:1], {KA['B_b2']}")
    if rt: a("s_memrealtime s[32:33]")
    a("s_cmp_ge_u32 s2, 576")
    a("s_cbranch_scc1 L_end2")
    a("v_and_b32 v1, 63, v0")
    a("v_lshrrev_b32 v2, 6, v0")
    a("s_nop 0")
    a("v_readfirstlane_b32 s20, v2")
    a("s_nop 3")
    if xmap:
        a("s_and_b32 s21, s2, 7")
        a("s_lshr_b32 s21, s21, 1")
        a("s_mul_i32 s21, s21, 144")
        a("s_lshr_b32 s22, s2, 3")
        a("s_lshl_b32 s22, s22, 1")
        a("s_add_u32 s21, s21, s22")
        a("s_and_b32 s22, s2, 1")
        a("s_add_u32 s21, s21, s22")
        a("s_lshl_b32 s21, s21, 2")
    else:
        a("s_lshl_b32 s21, s2, 2")
    a("s_add_u32 s21, s21, s20")
    a("s_lshr_b32 s22, s21, 1")
    a("s_and_b32 s23, s21, 1")
    a("s_lshl_b32 s24, s22, 15")
    a("s_lshl_b32 s25, s23, 10")
    a("s_add_u32 s24, s24, s25")
    a(f"s_add_u32 s24, s24, {WS_P}")
    a("s_mul_i32 s26, s22, 3641")
    a("s_lshr_b32 s26, s26, 16")
    a("s_mul_i32 s27, s26, 18")
    a("s_sub_u32 s27, s22, s27")
    a("s_waitcnt lgkmcnt(0)")
    for (r, n) in ((SW, "ws"), (SO, "out"), (SB2, "B_b2")):
        finish_srd(a, r, n)
    a("v_lshlrev_b32 v3, 4, v1")
    nsl = nmlp + (natt if mode == "full" else 0)
    V = 16
    for sl in range(nsl):
        a(f"s_add_u32 s28, s24, {sl*2048}")
        a(f"buffer_load_dwordx4 {vr(V+4*sl,4)}, v3, {sr(SW,4)}, s28 offen")
    a("v_lshrrev_b32 v4, 5, v1")
    a("s_lshl_b32 s28, s27, 5")
    a("s_lshl_b32 s29, s23, 4")
    a("s_add_u32 s28, s28, s29")
    a("v_lshlrev_b32 v5, 2, v4")
    a("v_add_u32 v5, s28, v5")
    a("v_lshlrev_b32 v5, 1, v5")
    a(f"buffer_load_dwordx2 v[8:9], v5, {sr(SB2,4)}, 0 offen")
    a(f"buffer_load_dwordx2 v[10:11], v5, {sr(SB2,4)}, 0 offen offset:16")
    a("v_and_b32 v6, 31, v1")
    a("s_lshl_b32 s30, s26, 5")
    a("v_add_u32 v6, s30, v6")
    if mode == "full":
        a("v_lshlrev_b32 v7, 2, v6")
        a(f"s_mov_b32 s31, {WS_G}")
        a(f"buffer_load_dword v12, v7, {sr(SW,4)}, s31 offen")
    a("v_mul_u32_u24 v13, 1152, v6")
    a("v_lshlrev_b32 v14, 4, v4")
    a("v_add_u32 v13, v13, v14")
    a("s_lshl_b32 s28, s28, 1")
    A, B = 100, 108
    extra = 2 + (1 if mode == "full" else 0)
    for sl in range(nsl):
        remaining = nsl - 1 - sl + extra
        a(f"s_waitcnt vmcnt({remaining})")
        dst = A if sl < nmlp else B
        first = (sl == 0 or sl == nmlp)
        for r in range(4):
            src = V + 4*sl + r
            if first:
                a(f"v_lshlrev_b32 v{dst+2*r}, 16, v{src}")
                a(f"v_and_b32 v{dst+2*r+1}, 0xffff0000, v{src}")
            else:
                a(f"v_lshlrev_b32 v2, 16, v{src}")
                a(f"v_and_b32 v15, 0xffff0000, v{src}")
                a(f"v_add_f32 v{dst+2*r}, v{dst+2*r}, v2")
                a(f"v_add_f32 v{dst+2*r+1}, v{dst+2*r+1}, v15")
    a("s_waitcnt vmcnt(0)")
    for r in range(4):
        a(f"v_lshlrev_b32 v2, 16, v{8+r}")
        a(f"v_and_b32 v15, 0xffff0000, v{8+r}")
        a(f"v_add_f32 v{A+2*r}, v{A+2*r}, v2")
        a(f"v_add_f32 v{A+2*r+1}, v{A+2*r+1}, v15")
    if mode == "full":
        for e in range(8):
            a(f"v_sub_f32 v{B+e}, v{B+e}, v{A+e}")
            a(f"v_fma_f32 v{A+e}, v12, v{B+e}, v{A+e}")
    for r in range(4):
        a(f"v_cvt_pk_bf16_f32 v{116+r}, v{A+2*r}, v{A+2*r+1}")
    a("s_nop 1")
    a("v_permlane32_swap_b32 v116, v118")
    a("v_permlane32_swap_b32 v117, v119")
    a("s_nop 1")
    a(f"buffer_store_dwordx4 v[116:119], v13, {sr(SO,4)}, s28 offen")
    a("s_waitcnt vmcnt(0)")
    if rt:
        a("s_memrealtime s[34:35]")
        a("s_waitcnt lgkmcnt(0)")
        a("s_lshl_b32 s36, s2, 3")
        a("s_add_u32 s36, s36, 0x3200000")
        a("s_mov_b64 exec, 1")
        a("v_mov_b32 v1, 0")
        a("v_mov_b32 v2, s32")
        a("v_mov_b32 v3, s34")
        a("s_cmp_eq_u32 s20, 0")
        a("s_cbranch_scc0 L_end2")
        a(f"buffer_store_dwordx2 v[2:3], v1, {sr(SW,4)}, s36 offen")
        a("s_waitcnt vmcnt(0)")
    a("L_end2:")
    return kernel_wrap("k2_kernel", a.text(), vgpr=120, sgpr=40, accum=120)
```

```python
from asmlib import *
import struct

NS = 8
SLOT = 8192
RINGSZ = NS * SLOT
LDS_RING = 0
LDS_H = 65536
LDS_TOTAL = 163840
LDS_SCR = 6 * SLOT
LDS_STAT = LDS_H
import sys as _s
WS_BASE = 0
for _f in _s.argv:
    if _f.startswith('wsb'): WS_BASE = int(_f[3:]) << 20
WS_P = WS_BASE
WS_CSP = WS_BASE + 37748736
WS_G = WS_CSP + 12*16*384*4
WS_STAMP = 0x3000000 if WS_BASE == 0 else 0
W1_RS = 9216
W2_RS = 1152
X_RS = 1152
LOG2E = 1.4426950408889634
K1C = -2.0 * 0.7978845608028654 * LOG2E
K2C = -2.0 * 0.7978845608028654 * 0.044715 * LOG2E
def f2u(x): return struct.unpack("<I", struct.pack("<f", x))[0]
OOB = 0x40000000

SX, SD, SW, SG, SB = 4, 8, 12, 16, 20
S_W2 = 24
s_t, s_js, s_w, s_i, s_jj, s_F0 = 28, 29, 30, 31, 32, 33
s_n = 34
s_ro, s_wo, s_wbase = 35, 36, 37
s_dso, s_dstep = 38, 39
s_P, s_Pn = 40, 41
s_tmp, s_tmp2, s_tmp3 = 42, 43, 44
s_pos, s_posbase, s_xso, s_xw, s_Pd0 = 45, 46, 47, 48, 49
s_hwn = 50
S_ST = 60
v_tid, v_lane, v_doff, v_doffB, v_abaseA, v_abase, v_rd = 0, 1, 2, 3, 4, 5, 6
v_abaseB = 7
v_hw, v_l16 = 8, 9
v_k1r, v_k2r, v_rstd = 10, 11, 12
v_S, v_xrd, v_st = 13, 14, 15
V_T, V_HP, V_FR, V_M = 16, 24, 32, 56
V_ACC, V_G, V_CS, V_Y = 64, 80, 96, 112
V_AUGA, V_AUGB = 96, 100
NB, PD = 6, 4
MFMA = "v_mfma_f32_32x32x16_bf16"
def vr(a, n): return f"v[{a}:{a+n-1}]"
def sr(a, n): return f"s[{a}:{a+n-1}]"

class Q:
    def __init__(self): self.q = []
    def issue(self, tag): self.q.append(tag)
    def need(self, *tags):
        last = -1
        for idx, tg in enumerate(self.q):
            if tg in tags: last = idx
        assert last >= 0, f"{tags} not in queue"
        return len(self.q) - 1 - last

class Gen:
    def __init__(self, stamps=False, flags=()):
        self.flags = set(flags)
        self.a = Asm()
        self.stamps = stamps
        self.nst = 0
        self.inloop = False
    def stamp(self):
        if self.stamps:
            i = self.nst; self.nst += 1
            self.a(f"{'s_memrealtime' if 'stampRT' in self.flags else 's_memtime'} s[{S_ST+2*i}:{S_ST+2*i+1}]")
    def flagval(self, pre, default):
        for f in self.flags:
            if f.startswith(pre) and f[len(pre):].isdigit(): return int(f[len(pre):])
        return default
    def dma_a(self):
        L = [f"s_and_b32 m0, s{s_wo}, {RINGSZ-1}", f"s_add_u32 s{s_wo}, s{s_wo}, {SLOT}"]
        if not ("nodma" in self.flags and self.inloop):
            L.append(f"buffer_load_dwordx4 v{v_doff}, {sr(SD,4)}, s{s_dso} offen lds")
        return L
    def dma_b(self):
        return [f"s_add_u32 s{s_dso}, s{s_dso}, s{s_dstep}"]
    def rd_salu(self):
        return []
    def rd_valu(self):
        return [f"v_add_u16 v{v_rd}, {SLOT}, v{v_rd}"]
    def dma_full(self, vq, tag):
        for x in self.dma_a(): self.a(x)
        vq.issue(tag)
        for x in self.dma_b(): self.a(x)
    def frag_read(self, lq, kslot, buf, second, tag):
        a = self.a
        r = V_FR + 4 * buf
        a(f"ds_read_b64_tr_b16 {vr(r,2)}, v{v_rd} offset:{kslot*2048}")
        a(f"ds_read_b64_tr_b16 {vr(r+2,2)}, v{v_rd} offset:{kslot*2048+second}")
        lq.issue(tag); lq.issue(tag)

USE_FMA = True
def gelu_chain(e, T):
    G = V_G + e
    if USE_FMA:
        return [(f"v_mul_f32 v{T}, v{G}, v{G}", 4), (f"v_fma_f32 v{T}, v{T}, v{v_k2r}, v{v_k1r}", 4),
                (f"v_mul_f32 v{T}, v{G}, v{T}", 4), (f"v_exp_f32 v{T}, v{T}", 8), (f"v_add_f32 v{T}, 1.0, v{T}", 4),
                (f"v_rcp_f32 v{T}, v{T}", 8), (f"v_mul_f32 v{T}, v{G}, v{T}", 4)]
    return [(f"v_mul_f32 v{T}, v{G}, v{G}", 4), (f"v_mul_f32 v{T}, v{T}, v{v_k2r}", 4), (f"v_add_f32 v{T}, v{T}, v{v_k1r}", 4),
            (f"v_mul_f32 v{T}, v{G}, v{T}", 4), (f"v_exp_f32 v{T}, v{T}", 8), (f"v_add_f32 v{T}, 1.0, v{T}", 4),
            (f"v_rcp_f32 v{T}, v{T}", 8), (f"v_mul_f32 v{T}, v{G}, v{T}", 4)]

TSH = 0
def gelu_sched(slots, nslots, caps, maxT=2, GS=4, gapP=2, gapT=3):
    NT = 8
    chains = [gelu_chain(e, V_T + ((e + TSH) % NT)) for e in range(16)]
    NOPS = len(chains[0])
    pos = [0] * 16; done_cvt = [False] * 8; last = [-10] * 16
    fill = [[] for _ in range(nslots)]; dsw = [[] for _ in range(nslots)]
    gi = 0; wrote = [False, False]
    for s in slots:
        budget = caps[s]; nT = 0; progress = True
        while budget > 0 and progress:
            progress = False
            for p in range(8):
                if not done_cvt[p] and pos[2*p] == NOPS and pos[2*p+1] == NOPS and budget >= 4 and gi - max(last[2*p], last[2*p+1]) >= 1:
                    fill[s].append(f"v_cvt_pk_bf16_f32 v{V_HP+p}, v{V_T+(2*p+TSH)%NT}, v{V_T+(2*p+1+TSH)%NT}")
                    done_cvt[p] = True; budget -= 4; gi += 1; progress = True
                    break
            if progress: continue
            best = None
            for e in range(16):
                if pos[e] >= NOPS: continue
                if e >= NT and pos[e] == 0 and not done_cvt[(e - NT) // 2]: continue
                ins, c = chains[e][pos[e]]
                if c > budget: continue
                if c == 8 and nT >= maxT: continue
                gap = gi - last[e]
                if pos[e] > 0:
                    prev_trans = chains[e][pos[e]-1][1] == 8
                    if gap < (gapT if prev_trans else gapP): continue
                key = ((e // GS) * NOPS + pos[e]) * GS + (e % GS)
                if best is None or key < best[0]: best = (key, e)
            if best is not None:
                e = best[1]
                ins, c = chains[e][pos[e]]
                fill[s].append(ins); pos[e] += 1; last[e] = gi; gi += 1; budget -= c
                if c == 8: nT += 1
                progress = True
        gi += 3
        for ks in range(2):
            if not wrote[ks] and all(done_cvt[4*ks:4*ks+4]):
                dsw[s].append(f"ds_write_b128 v{v_hw}, {vr(V_HP+4*ks,4)} offset:{ks*1024}")
                wrote[ks] = True
    ok = all(done_cvt) and all(wrote)
    return ok, fill, dsw

def gelu_plain():
    L = []
    for q in range(4):
        T = [V_T + (q % 2) * 4 + e for e in range(4)]
        ch = [gelu_chain(4*q+e, T[e]) for e in range(4)]
        for o in range(len(ch[0])):
            for e in range(4): L.append(ch[e][o][0])
        L.append(f"v_cvt_pk_bf16_f32 v{V_HP+2*q}, v{T[0]}, v{T[1]}")
        L.append(f"v_cvt_pk_bf16_f32 v{V_HP+2*q+1}, v{T[2]}, v{T[3]}")
        if q % 2 == 1:
            L.append(f"ds_write_b128 v{v_hw}, {vr(V_HP+4*(q//2),4)} offset:{(q//2)*1024}")
    return L

def emit_epoch(g, e, nk_total, vq, lq, vm_tags, second, bregs, fill, misc, dma_tag, tagp="g", force_lgkm=None, ndma=1, end_extra=None,
               bar=True, nextbar=True, swap=False, kvalid=None, lastD=None, dma_fn=None, firstC0=True):
    a = g.a
    def put(lst):
        for ins in lst:
            if callable(ins): ins(); continue
            a(ins)
            if ins.startswith(("ds_write", "ds_read")): lq.issue("x")
            if ins.startswith(("buffer_store",)): vq.issue("st")
    def rvalid(x): return kvalid is None or (x % nk_total) < kvalid
    for k in range(4):
        s = 4 * e + k
        last_pre = (k == 3 and nextbar)
        if last_pre:
            if rvalid(s + PD): g.frag_read(lq, 3, (s + PD) % NB, second, f"{tagp}{s+PD}")
            for x in g.rd_valu(): a(x)
        tags = []
        if k % 2 == 0:
            tags = [f"{tagp}{x}" for x in (s, s + 1) if rvalid(x)]
        if k == 0 and bar:
            nl = min(15, lq.need(*tags)) if tags else 15
            if force_lgkm is not None: nl = min(nl, force_lgkm)
            nv = vq.need(*vm_tags)
            nv = max(0, nv - (g.flagval("vmx", 0) if g.inloop else 0))
            if "novm" in g.flags and g.inloop: a(f"s_waitcnt lgkmcnt({nl})")
            else: a(f"s_waitcnt vmcnt({nv}) lgkmcnt({nl})")
            if not ("nobar" in g.flags and g.inloop): a("s_barrier")
        elif tags:
            nl = min(15, lq.need(*tags))
            if k == 0 and force_lgkm is not None: nl = min(nl, force_lgkm)
            a(f"s_waitcnt lgkmcnt({nl})")
        lastk = (nk_total if kvalid is None else kvalid) - 1
        D = (V_G if lastD is None else lastD) if s == lastk else V_ACC
        C = "0" if (s == 0 and firstC0) else vr(V_ACC, 16)
        if rvalid(s):
            opA, opB = vr(V_FR+4*(s%NB),4), vr(bregs+4*s,4)
            if swap: opA, opB = opB, opA
            a(f"{MFMA} {vr(D,16)}, {opA}, {opB}, {C}")
        if not last_pre:
            put(fill[s])
            if rvalid(s + PD): g.frag_read(lq, k, (s + PD) % NB, second, f"{tagp}{s+PD}")
            if k == 3:
                for x in g.rd_valu(): a(x)
            if k == 0:
                if dma_fn is not None:
                    dma_fn(); vq.issue(dma_tag[0])
                else:
                    for d in range(ndma):
                        for x in g.dma_a(): a(x)
                        vq.issue(dma_tag[d])
                        for x in g.dma_b(): a(x)
            put(misc[s])
        else:
            assert not fill[s], (s, fill[s])
            put(misc[s])
        if k == 3 and end_extra: end_extra(s)


def touch(g, vq, srd, U, N, soff, mode, vt, vd, tag="pf"):
    a = g.a
    for u in range(U):
        a(f"s_mul_i32 s{s_tmp}, s{s_w}, {U*64}")
        a(f"s_add_u32 s{s_tmp}, s{s_tmp}, {u*64}")
        a(f"v_add_u32 v{vt}, s{s_tmp}, v{v_lane}")
        if mode[0] == 'lin':
            a(f"v_lshlrev_b32 v{vt+1}, 7, v{vt}")
        elif mode[0] == 'div':
            L, RS = mode[1], mode[2]
            magic = (65536 + L - 1) // L
            a(f"v_mul_u32_u24 v{vt+1}, {magic}, v{vt}")
            a(f"v_lshrrev_b32 v{vt+1}, 16, v{vt+1}")
            a(f"v_mul_u32_u24 v{vt+2}, {L}, v{vt+1}")
            a(f"v_sub_u32 v{vt+2}, v{vt}, v{vt+2}")
            a(f"v_lshlrev_b32 v{vt+2}, 7, v{vt+2}")
            a(f"v_mul_u32_u24 v{vt+1}, {RS}, v{vt+1}")
            a(f"v_add_u32 v{vt+1}, v{vt+1}, v{vt+2}")
        elif mode[0] == 'qkv':
            magic = (65536 + 11) // 12
            a(f"v_mul_u32_u24 v{vt+1}, {magic}, v{vt}")
            a(f"v_lshrrev_b32 v{vt+1}, 16, v{vt+1}")
            a(f"v_mul_u32_u24 v{vt+2}, 12, v{vt+1}")
            a(f"v_sub_u32 v{vt+2}, v{vt}, v{vt+2}")
            a(f"v_lshrrev_b32 v{vt+3}, 2, v{vt+2}")
            a(f"v_and_b32 v{vt+2}, 3, v{vt+2}")
            a(f"v_lshlrev_b32 v{vt+2}, 7, v{vt+2}")
            a(f"v_mul_u32_u24 v{vt+3}, 1152, v{vt+3}")
            a(f"v_add_u32 v{vt+2}, v{vt+2}, v{vt+3}")
            a(f"v_mul_u32_u24 v{vt+1}, 3456, v{vt+1}")
            a(f"v_add_u32 v{vt+1}, v{vt+1}, v{vt+2}")
        a(f"v_cmp_gt_u32 vcc, {N}, v{vt}")
        a(f"v_mov_b32 v{vt+2}, {OOB}")
        a("s_nop 0")
        a(f"v_cndmask_b32 v{vt+1}, v{vt+2}, v{vt+1}, vcc")
        a(f"buffer_load_dword v{vd}, v{vt+1}, {sr(srd,4)}, s{soff} offen")
        if vq is not None: vq.issue(tag)

def gen_mlp(g):
    global TSH
    a = g.a
    a.c("MLP role v2")
    a(f"v_and_b32 v{v_lane}, 63, v{v_tid}")
    a(f"v_lshrrev_b32 v{V_M}, 6, v{v_tid}")
    a("s_nop 0")
    a(f"v_readfirstlane_b32 s{s_w}, v{V_M}")
    t0, t1, t2, xo = V_T, V_T+1, V_T+2, V_T+3
    a(f"v_lshrrev_b32 v{t0}, 3, v{v_lane}")
    a(f"v_and_b32 v{t2}, 7, v{v_lane}")
    a(f"s_lshl_b32 s{s_tmp}, s{s_w}, 3")
    a(f"v_add_u32 v{t0}, s{s_tmp}, v{t0}")
    a(f"v_lshrrev_b32 v{t1}, 1, v{t0}")
    a(f"v_and_b32 v{t1}, 7, v{t1}")
    a(f"v_xor_b32 v{t1}, v{t1}, v{t2}")
    a(f"v_lshlrev_b32 v{t1}, 4, v{t1}")
    a(f"v_mul_u32_u24 v{xo}, {X_RS}, v{t0}")
    a(f"v_add_u32 v{xo}, v{xo}, v{t1}")
    a(f"s_mul_i32 s{s_xso}, s{s_t}, {128*X_RS}")
    a(f"s_lshl_b32 s{s_xw}, s{s_w}, 10")
    vq = Q()
    def x_dma(c):
        slot = c % 6
        a(f"s_add_u32 m0, s{s_xw}, {LDS_H+slot*16384}")
        a(f"s_add_u32 s{s_tmp}, s{s_xso}, {c*128}")
        a(f"buffer_load_dwordx4 v{xo}, {sr(SX,4)}, s{s_tmp} offen lds")
        vq.issue(f"x{c}")
        a(f"s_add_u32 m0, s{s_xw}, {LDS_H+slot*16384+8192}")
        a(f"s_add_u32 s{s_tmp}, s{s_xso}, {c*128+64*X_RS}")
        a(f"buffer_load_dwordx4 v{xo}, {sr(SX,4)}, s{s_tmp} offen lds")
        vq.issue(f"x{c}")
    x_dma(0)
    a(f"v_lshrrev_b32 v{t1}, 4, v{v_lane}")
    a(f"v_and_b32 v{t1}, 1, v{t1}")
    a(f"v_lshlrev_b32 v{t1}, 2, v{t1}")
    a(f"v_xor_b32 v{t1}, v{t1}, v{t2}")
    a(f"v_lshlrev_b32 v{t1}, 4, v{t1}")
    a(f"v_mul_u32_u24 v{v_doff}, {W1_RS}, v{t0}")
    a(f"v_add_u32 v{v_doff}, v{v_doff}, v{t1}")
    a(f"v_mul_u32_u24 v{v_doffB}, {W2_RS}, v{t0}")
    a(f"v_add_u32 v{v_doffB}, v{v_doffB}, v{t1}")
    a(f"s_mul_i32 s{s_F0}, s{s_js}, 384")
    a(f"s_mov_b32 s{s_wo}, s{s_xw}")
    a(f"s_mov_b32 s{s_dstep}, {64*W1_RS}")
    a(f"s_lshl_b32 s{s_tmp}, s{s_P}, 6")
    a(f"s_add_u32 s{s_tmp}, s{s_tmp}, s{s_F0}")
    a(f"s_lshl_b32 s{s_dso}, s{s_tmp}, 1")
    g.dma_full(vq, "r0")
    if "ob" in g.flags: a("s_barrier")
    m0_, m1_, m2_ = V_M, V_M+1, V_M+2
    a(f"v_mul_u32_u24 v{m0_}, 1366, v{v_tid}")
    a(f"v_lshrrev_b32 v{m0_}, 16, v{m0_}")
    a(f"v_mul_u32_u24 v{m1_}, 48, v{m0_}")
    a(f"v_sub_u32 v{m1_}, v{v_tid}, v{m1_}")
    a(f"v_mul_u32_u24 v{V_M+3}, 1536, v{m0_}")
    a(f"v_lshlrev_b32 v{m2_}, 5, v{m1_}")
    a(f"v_add_u32 v{V_M+3}, v{V_M+3}, v{m2_}")
    a(f"v_mul_u32_u24 v{m2_}, {4*W1_RS}, v{m0_}")
    a(f"v_lshlrev_b32 v{m1_}, 4, v{m1_}")
    a(f"v_add_u32 v{m2_}, v{m2_}, v{m1_}")
    a(f"v_cmp_lt_u32 vcc, 8, v{m0_}")
    a(f"v_mov_b32 v{m1_}, {OOB}")
    a(f"s_mul_i32 s{s_tmp}, s{s_t}, {36*W1_RS}")
    a(f"v_cndmask_b32 v{m2_}, v{m2_}, v{m1_}, vcc")
    a(f"s_lshl_b32 s{s_tmp2}, s{s_F0}, 1")
    a(f"s_add_u32 s{s_tmp}, s{s_tmp}, s{s_tmp2}")
    for q in range(4):
        a(f"buffer_load_dwordx4 {vr(V_CS+4*q,4)}, v{m2_}, {sr(SD,4)}, s{s_tmp} offen")
        vq.issue("cs")
        if q < 3: a(f"s_add_u32 s{s_tmp}, s{s_tmp}, {W1_RS}")
    a(f"v_min_u32 v{V_M+3}, {9*1536+47*32}, v{V_M+3}")
    if "ob" in g.flags: a("s_barrier")
    x_dma(1); g.dma_full(vq, "r1")
    if "oldpf" in g.flags:
        a(f"s_and_b32 s{s_tmp2}, s{s_t}, 3")
        a(f"s_mul_i32 s{s_tmp2}, s{s_tmp2}, {144*W1_RS}")
        a(f"s_lshl_b32 s{s_tmp3}, s{s_F0}, 1")
        a(f"s_add_u32 s52, s{s_tmp2}, s{s_tmp3}")
        touch(g, vq, SD, 2, 864, 52, ('div', 6, W1_RS), V_T+4, V_M+7)
    a(f"s_and_b32 s{s_i}, s{s_w}, 3")
    a(f"s_lshr_b32 s{s_jj}, s{s_w}, 2")
    a(f"v_and_b32 v{t0}, 15, v{v_lane}")
    a(f"v_lshrrev_b32 v{t0}, 2, v{t0}")
    a(f"v_lshrrev_b32 v{t1}, 1, v{t0}")
    a(f"v_xor_b32 v{t1}, s{s_jj}, v{t1}")
    a(f"v_lshlrev_b32 v{t1}, 6, v{t1}")
    a(f"v_lshlrev_b32 v{t0}, 7, v{t0}")
    a(f"v_add_u32 v{t0}, v{t0}, v{t1}")
    a(f"v_lshrrev_b32 v{t1}, 4, v{v_lane}")
    a(f"v_and_b32 v{t1}, 1, v{t1}")
    a(f"v_lshlrev_b32 v{t1}, 5, v{t1}")
    a(f"v_add_u32 v{t0}, v{t0}, v{t1}")
    a(f"v_and_b32 v{t1}, 3, v{v_lane}")
    a(f"v_lshlrev_b32 v{t1}, 3, v{t1}")
    a(f"v_add_u32 v{t0}, v{t0}, v{t1}")
    a(f"v_lshrrev_b32 v{t1}, 5, v{v_lane}")
    a(f"v_lshlrev_b32 v{t2}, 10, v{t1}")
    a(f"v_add_u32 v{v_abaseA}, v{t0}, v{t2}")
    a(f"v_lshlrev_b32 v{t2}, 9, v{t1}")
    a(f"v_add_u32 v{v_abaseB}, v{t0}, v{t2}")
    a(f"v_mov_b32 v{v_abase}, v{v_abaseA}")
    a(f"v_mov_b32 v{v_rd}, v{v_abaseA}")
    a(f"v_and_b32 v{t0}, 31, v{v_lane}")
    a(f"v_lshlrev_b32 v{v_l16}, 4, v{t0}")
    a(f"s_lshl_b32 s{s_tmp}, s{s_i}, 5")
    a(f"v_add_u32 v{t0}, s{s_tmp}, v{t0}")
    a(f"v_lshrrev_b32 v{t2}, 1, v{t0}")
    a(f"v_and_b32 v{t2}, 7, v{t2}")
    a(f"v_xor_b32 v{t2}, v{t2}, v{t1}")
    a(f"v_lshlrev_b32 v{t2}, 4, v{t2}")
    a(f"v_lshlrev_b32 v{t0}, 7, v{t0}")
    a(f"v_add_u32 v{v_xrd}, v{t0}, v{t2}")
    a(f"v_add_u32 v{v_xrd}, {LDS_H}, v{v_xrd}")
    a(f"v_lshlrev_b32 v{v_st}, 4, v{v_lane}")
    a(f"v_mov_b32 v{v_S}, 0")
    g.stamp()
    a(f"s_waitcnt vmcnt({vq.need('cs')})")
    acc = V_FR
    for r in range(4):
        a(f"v_lshlrev_b32 v{acc+2*r}, 16, v{V_CS+r}")
        a(f"v_and_b32 v{acc+2*r+1}, 0xffff0000, v{V_CS+r}")
    for q in range(1, 4):
        for r in range(4):
            a(f"v_lshlrev_b32 v{V_FR+8}, 16, v{V_CS+4*q+r}")
            a(f"v_and_b32 v{V_FR+9}, 0xffff0000, v{V_CS+4*q+r}")
            a(f"v_add_f32 v{acc+2*r}, v{acc+2*r}, v{V_FR+8}")
            a(f"v_add_f32 v{acc+2*r+1}, v{acc+2*r+1}, v{V_FR+9}")
    a(f"ds_write_b128 v{V_M+3}, {vr(acc,4)} offset:{LDS_SCR}")
    a(f"ds_write_b128 v{V_M+3}, {vr(acc+4,4)} offset:{LDS_SCR+16}")
    x_dma(2); g.dma_full(vq, "r2")
    x_dma(3); g.dma_full(vq, "r3")
    a("s_waitcnt lgkmcnt(0)")
    a("s_barrier")
    g.stamp()
    a(f"v_lshlrev_b32 v{V_M+4}, 2, v{v_tid}")
    a(f"v_min_u32 v{V_M+5}, {383*4}, v{V_M+4}")
    for q in range(9):
        a(f"ds_read_b32 v{V_CS+q}, v{V_M+5} offset:{LDS_SCR+q*1536}")
    a(f"v_cmp_gt_u32 vcc, 384, v{v_tid}")
    a(f"v_mov_b32 v{V_M+5}, {OOB}")
    a(f"s_mul_i32 s{s_tmp}, s{s_js}, 16")
    a(f"v_cndmask_b32 v{V_M+4}, v{V_M+5}, v{V_M+4}, vcc")
    a(f"s_add_u32 s{s_tmp}, s{s_tmp}, s{s_t}")
    a(f"s_mul_i32 s{s_tmp}, s{s_tmp}, 1536")
    a(f"s_add_u32 s{s_tmp2}, s{s_tmp}, {WS_CSP}")
    a("s_waitcnt lgkmcnt(0)")
    for q in range(1, 9):
        a(f"v_add_f32 v{V_CS}, v{V_CS}, v{V_CS+q}")
    a(f"buffer_store_dword v{V_CS}, v{V_M+4}, {sr(SW,4)}, s{s_tmp2} offen sc0 sc1")
    vq.issue("cst")
    x_dma(4); g.dma_full(vq, "r4")
    x_dma(5); g.dma_full(vq, "r5")
    if "mpf" in g.flags:
        a(f"s_mov_b32 s88, s{S_W2}")
        a(f"s_mov_b32 s89, s{S_W2+1}")
        a(f"s_mov_b32 s90, {SIZES['B_w2']}")
        a(f"s_mov_b32 s91, 0x00020000")
        a(f"s_mul_i32 s{s_tmp2}, s{s_t}, 24")
        a(f"s_add_u32 s{s_tmp2}, s{s_tmp2}, s{s_F0}")
        a(f"s_mul_i32 s{s_tmp2}, s{s_tmp2}, {W2_RS}")
        a(f"s_mul_i32 s{s_tmp3}, s{s_w}, {27*128}")
        a(f"s_add_u32 s52, s{s_tmp2}, s{s_tmp3}")
        a(f"v_lshlrev_b32 v{V_M+6}, 7, v{v_lane}")
        a(f"v_cmp_gt_u32 vcc, 27, v{v_lane}")
        a(f"v_mov_b32 v{V_M+7}, {OOB}")
        a("s_nop 0")
        a(f"v_cndmask_b32 v{V_M+6}, v{V_M+7}, v{V_M+6}, vcc")
        a(f"buffer_load_dword v{V_M+7}, v{V_M+6}, s[88:91], s52 offen")
        vq.issue("mpf")
    a(f"s_waitcnt vmcnt({vq.need('x0','r0')})")
    a("s_barrier")
    g.stamp()
    lq = Q()
    def y_read(c):
        slot = c % 6
        for s in range(4):
            reg = V_Y + (4*c + s) * 4
            tmp = V_M + 4 + (s % 2)
            off = slot * 16384
            a(f"v_xor_b32 v{tmp}, {s*32}, v{v_xrd}")
            if off >= 65536:
                a(f"v_add_u32 v{tmp}, {off}, v{tmp}")
                a(f"ds_read_b128 {vr(reg,4)}, v{tmp}")
            else:
                a(f"ds_read_b128 {vr(reg,4)}, v{tmp} offset:{off}")
            lq.issue(f"y{c}")
    def stats(c):
        lab = a.label("Lst"); lab2 = a.label("Lst2")
        a(f"s_cmp_eq_u32 s{s_jj}, 0")
        a(f"s_cbranch_scc0 {lab}")
        for r in range(16):
            a(f"v_dot2c_f32_bf16 v{v_S}, 0x3f803f80, v{V_Y+16*c+r}")
        a(f"s_branch {lab2}")
        a(f"{lab}:")
        for r in range(16):
            a(f"v_dot2c_f32_bf16 v{v_S}, v{V_Y+16*c+r}, v{V_Y+16*c+r}")
        a(f"{lab2}:")
    y_read(0)
    for s in range(4):
        g.frag_read(lq, s, s, 512, f"f{s}")
    for x in g.rd_salu() + g.rd_valu(): a(x)
    nofill = [[] for _ in range(36)]
    VB1 = V_HP + 7
    def flag_load():
        a(f"s_lshl_b32 s{s_tmp}, s{s_js}, 2")
        a(f"v_mov_b32 v{V_T+4}, s{s_tmp}")
        a(f"buffer_load_dword v{V_T+5}, v{V_T+4}, {sr(SG,4)}, 0 offen sc1")
        vq.issue("flag")
    def tab_loads():
        a(f"v_lshlrev_b32 v{V_M+3}, 2, v{v_tid}")
        a(f"v_cmp_gt_u32 vcc, 384, v{v_tid}")
        a(f"v_mov_b32 v{V_M+2}, {OOB}")
        a(f"s_mul_i32 s{s_tmp}, s{s_js}, {16*1536}")
        a(f"v_cndmask_b32 v{V_M+3}, v{V_M+2}, v{V_M+3}, vcc")
        a(f"s_add_u32 s{s_tmp}, s{s_tmp}, {WS_CSP}")
        for q in range(16):
            a(f"buffer_load_dword v{V_CS+q}, v{V_M+3}, {sr(SW,4)}, s{s_tmp} offen sc0 sc1")
            if q < 15: a(f"s_add_u32 s{s_tmp}, s{s_tmp}, 1536")
        a(f"v_lshrrev_b32 v{V_M+2}, 1, v{V_M+3}")
        a(f"s_lshl_b32 s{s_tmp}, s{s_F0}, 1")
        a(f"buffer_load_ushort v{VB1}, v{V_M+2}, {sr(SB,4)}, s{s_tmp} offen")
    def flag_check():
        a(f"v_readfirstlane_b32 s{s_tmp}, v{V_T+5}")
        a(f"s_mov_b32 s55, 0")
        a("s_nop 2")
        a(f"s_cmp_ge_u32 s{s_tmp}, 16")
        a("s_cbranch_scc0 L_notyet")
        a(f"s_mov_b32 s55, 1")
        tab_loads()
        a("L_notyet:")
    FL, FC = g.flagval("fl", 6), g.flagval("fc", 8)
    for e in range(9):
        misc = [[] for _ in range(36)]
        need = [f"r{e+1}"] + ([f"x{e+1}"] if e + 1 <= 8 else [])
        if e == 2:
            need = need + ["cst"]
            def sig():
                lab = a.label("Lsig")
                a(f"s_cmp_eq_u32 s{s_w}, 0")
                a(f"s_cbranch_scc0 {lab}")
                a(f"v_mov_b32 v{V_M}, 1")
                a(f"s_lshl_b32 s{s_tmp}, s{s_js}, 2")
                a(f"v_mov_b32 v{V_M+1}, s{s_tmp}")
                a("s_mov_b64 exec, 1")
                a(f"buffer_atomic_add v{V_M}, v{V_M+1}, {sr(SG,4)}, 0 offen sc1")
                a("s_mov_b64 exec, -1")
                a(f"{lab}:")
            misc[4*e].append(sig)
        if e == FL: misc[4*e+1].append(flag_load)
        if e == FC:
            need = need + ["flag"]
            misc[4*e+0].append(flag_check)
        if e + 1 <= 8: misc[4*e].append(lambda e=e: y_read(e + 1))
        if e < 3: misc[4*e+2].append(lambda e=e: x_dma(6 + e))
        misc[4*e+1].append(lambda e=e: stats(e))
        if e == 2:
            def sw():
                a(f"s_add_u32 s{s_Pn}, s{s_P}, 1")
                a(f"s_cmp_eq_u32 s{s_Pn}, 6")
                a(f"s_cselect_b32 s{s_Pn}, 0, s{s_Pn}")
                a(f"s_lshl_b32 s{s_tmp}, s{s_Pn}, 6")
                a(f"s_add_u32 s{s_tmp}, s{s_tmp}, s{s_F0}")
                a(f"s_lshl_b32 s{s_dso}, s{s_tmp}, 1")
            misc[4*e+2].append(sw)
        emit_epoch(g, e, 36, vq, lq, need, 512, V_Y, nofill, misc, [f"r{e+6}"], tagp="f", force_lgkm=lq.need(f"y{e}"))
    g.stamp()
    a("s_nop 3")
    a(f"v_mov_b32 v{V_M}, v{v_S}")
    a("s_nop 1")
    a(f"v_permlane32_swap_b32 v{v_S}, v{V_M}")
    a("s_nop 1")
    a(f"v_add_f32 v{v_S}, v{v_S}, v{V_M}")
    STAT = LDS_H + 1024
    a(f"s_lshl_b32 s{s_tmp}, s{s_i}, 8")
    a(f"s_lshl_b32 s{s_tmp2}, s{s_jj}, 7")
    a(f"s_add_u32 s{s_tmp}, s{s_tmp}, s{s_tmp2}")
    a(f"s_add_u32 s{s_tmp}, s{s_tmp}, {STAT}")
    a(f"v_lshrrev_b32 v{V_M+1}, 2, v{v_l16}")
    a(f"v_add_u32 v{V_M}, s{s_tmp}, v{V_M+1}")
    a(f"ds_write_b32 v{V_M}, v{v_S}")
    a(f"s_cmp_eq_u32 s55, 1")
    a("s_cbranch_scc1 L_haveflag")
    a(f"s_lshl_b32 s{s_tmp}, s{s_js}, 2")
    a(f"v_mov_b32 v{V_T+4}, s{s_tmp}")
    a("L_poll:")
    a(f"buffer_load_dword v{V_T+5}, v{V_T+4}, {sr(SG,4)}, 0 offen sc1")
    a("s_waitcnt vmcnt(0)")
    a(f"v_readfirstlane_b32 s{s_tmp}, v{V_T+5}")
    a("s_nop 3")
    a(f"s_cmp_ge_u32 s{s_tmp}, 16")
    a("s_cbranch_scc1 L_polled")
    a("s_sleep 1")
    a("s_branch L_poll")
    a("L_polled:")
    tab_loads()
    a("L_haveflag:")
    a("s_waitcnt lgkmcnt(0)")
    a("s_barrier")
    g.stamp()
    a(f"s_lshl_b32 s{s_tmp}, s{s_i}, 8")
    a(f"s_add_u32 s{s_tmp}, s{s_tmp}, {STAT}")
    a(f"v_add_u32 v{V_M}, s{s_tmp}, v{V_M+1}")
    a(f"ds_read_b32 v{V_T}, v{V_M}")
    a(f"ds_read_b32 v{V_T+1}, v{V_M} offset:128")
    a("s_waitcnt lgkmcnt(0)")
    mu, var, sd, tt = V_T, V_T+1, V_T+2, V_T+3
    a(f"v_mul_f32 v{mu}, {f2u(1.0/576):#x}, v{mu}")
    a(f"v_mul_f32 v{var}, {f2u(1.0/576):#x}, v{var}")
    a(f"v_fma_f32 v{var}, -v{mu}, v{mu}, v{var}")
    a(f"v_max_f32 v{var}, 0, v{var}")
    a(f"v_add_f32 v{var}, {f2u(1e-5):#x}, v{var}")
    a(f"v_sqrt_f32 v{sd}, v{var}")
    a("s_nop 0")
    a(f"v_rcp_f32 v{v_rstd}, v{sd}")
    a("s_nop 0")
    a(f"v_mul_f32 v{v_k1r}, {f2u(K1C):#x}, v{v_rstd}")
    a(f"v_mul_f32 v{v_k2r}, v{v_rstd}, v{v_rstd}")
    a(f"v_mul_f32 v{v_k2r}, v{v_k2r}, v{v_rstd}")
    a(f"v_mul_f32 v{v_k2r}, {f2u(K2C):#x}, v{v_k2r}")
    a("s_waitcnt vmcnt(0)")
    for q in range(1, 16):
        a(f"v_add_f32 v{V_CS}, v{V_CS}, v{V_CS+q}")
    a(f"v_cvt_pk_bf16_f32 v{V_HP}, v{V_CS}, v{V_CS}")
    a(f"v_lshlrev_b32 v{V_CS+1}, 16, v{V_HP}")
    a(f"v_sub_f32 v{V_CS+1}, v{V_CS}, v{V_CS+1}")
    a(f"v_cvt_pk_bf16_f32 v{V_CS+1}, v{V_CS+1}, v{V_CS+1}")
    a(f"v_and_b32 v{V_CS+1}, 0xffff, v{V_CS+1}")
    a(f"v_lshlrev_b32 v{V_CS+2}, 16, v{VB1}")
    a(f"v_or_b32 v{V_HP+1}, v{V_CS+1}, v{V_CS+2}")
    a(f"v_mov_b32 v{V_HP+2}, v{VB1}")
    a(f"v_mov_b32 v{V_HP+3}, 0")
    a(f"v_lshrrev_b32 v{V_M+3}, 5, v{v_tid}")
    a(f"v_lshlrev_b32 v{V_M+3}, 11, v{V_M+3}")
    a(f"v_add_u32 v{V_M+3}, v{V_M+3}, v{v_l16}")
    a(f"v_add_u32 v{V_M+3}, {LDS_H}, v{V_M+3}")
    a(f"v_cmp_gt_u32 vcc, 384, v{v_tid}")
    a("s_and_saveexec_b64 s[52:53], vcc")
    a("s_cbranch_execz L_notab")
    for i in range(4):
        if i*24576 < 65536:
            a(f"ds_write_b128 v{V_M+3}, {vr(V_HP,4)} offset:{i*24576}")
        else:
            a(f"v_add_u32 v{V_M+3}, {i*24576}, v{V_M+3}")
            a(f"ds_write_b128 v{V_M+3}, {vr(V_HP,4)}")
    a("L_notab:")
    a("s_mov_b64 exec, s[52:53]")
    nm, mh, ml, sh, sl = V_T+4, V_T+5, V_T+6, V_T+7, V_M+6
    a(f"v_sub_f32 v{nm}, 0, v{mu}")
    a(f"v_cvt_pk_bf16_f32 v{mh}, v{nm}, v{sd}")
    a(f"v_lshlrev_b32 v{ml}, 16, v{mh}")
    a(f"v_and_b32 v{sh}, 0xffff0000, v{mh}")
    a(f"v_sub_f32 v{ml}, v{nm}, v{ml}")
    a(f"v_sub_f32 v{sl}, v{sd}, v{sh}")
    a(f"v_cvt_pk_bf16_f32 v{ml}, v{ml}, v{sl}")
    a(f"v_mov_b32 v{V_AUGB+1}, v{mh}")
    a(f"v_and_b32 v{V_AUGB}, 0xffff, v{mh}")
    a(f"v_lshlrev_b32 v{tt}, 16, v{ml}")
    a(f"v_or_b32 v{V_AUGB}, v{V_AUGB}, v{tt}")
    a(f"v_lshrrev_b32 v{V_AUGB+2}, 16, v{ml}")
    a(f"v_mov_b32 v{V_AUGB+3}, 0")
    a(f"v_cmp_gt_u32 vcc, 32, v{v_lane}")
    a("s_nop 1")
    for r in range(3):
        a(f"v_cndmask_b32 v{V_AUGB+r}, 0, v{V_AUGB+r}, vcc")
    a("s_waitcnt lgkmcnt(0)")
    a("s_barrier")
    g.stamp()
    def tile_salu():
        return [f"s_lshl_b32 s{s_tmp}, s{s_P}, 1", f"s_add_u32 s{s_tmp}, s{s_tmp}, s{s_jj}", f"s_mul_i32 s{s_tmp2}, s{s_i}, 12",
                f"s_add_u32 s{s_tmp2}, s{s_tmp2}, s{s_tmp}", f"s_lshl_b32 s{s_tmp2}, s{s_tmp2}, 11", f"s_add_u32 s{s_hwn}, s{s_tmp2}, {LDS_H}"]
    for x in tile_salu(): a(x)
    a(f"v_add_u32 v{V_M}, s{s_hwn}, v{v_l16}")
    a(f"ds_read_b128 {vr(V_AUGA,4)}, v{V_M}")
    a(f"v_add_u32 v{v_hw}, s{s_hwn}, v{v_st}")
    a("s_waitcnt lgkmcnt(0)")
    a(f"{MFMA} {vr(V_G,16)}, {vr(V_AUGA,4)}, {vr(V_AUGB,4)}, {vr(V_G,16)}")
    a(f"s_mov_b32 s{s_P}, s{s_Pn}")
    a(f"s_mov_b32 s{s_n}, 1")
    a(f"s_lshl_b32 s58, s{s_F0}, 1")
    a(f"s_mul_i32 s59, s{s_i}, 12")
    a(f"s_add_u32 s59, s59, s{s_jj}")
    a(f"s_lshl_b32 s59, s59, 11")
    a(f"s_add_u32 s59, s59, {LDS_H}")
    if "tpf" in g.flags:
        a(f"s_mov_b32 s88, s{S_W2}")
        a(f"s_mov_b32 s89, s{S_W2+1}")
        a(f"s_mov_b32 s90, {SIZES['B_w2']}")
        a(f"s_mov_b32 s91, 0x00020000")
        a(f"s_and_b32 s{s_tmp2}, s{s_t}, 3")
        a(f"s_mul_i32 s{s_tmp2}, s{s_tmp2}, 96")
        a(f"s_add_u32 s{s_tmp2}, s{s_tmp2}, s{s_F0}")
        a(f"s_mul_i32 s{s_tmp2}, s{s_tmp2}, {W2_RS}")
        a(f"s_mul_i32 s{s_tmp3}, s{s_w}, 13824")
        a(f"s_add_u32 s{s_tmp2}, s{s_tmp2}, s{s_tmp3}")
        a(f"v_lshlrev_b32 v{V_M+6}, 7, v{v_lane}")
        a(f"v_add_u32 v{V_M+6}, s{s_tmp2}, v{V_M+6}")
        a(f"v_cmp_gt_u32 vcc, 3, v{v_lane}")
        a(f"v_mov_b32 v{V_M+5}, {OOB}")
        a("s_nop 0")
        a(f"v_cndmask_b32 v{V_M+6}, v{V_M+5}, v{V_M+6}, vcc")
    BARA = [0, 2, 4, 6, 8]
    a(".p2align 3")
    a("L_A:")
    g.inloop = True
    vq = Q(); lq = Q()
    for e in range(-9, 0):
        vq.issue(f"r{e+6}")
        if "tpf" in g.flags and e >= -4: vq.issue("pf")
    for s in range(0, 4): lq.issue(f"g{s}"); lq.issue(f"g{s}")
    excl = [4*e - 1 for e in BARA if e > 0] + [35]
    slots = [sl for sl in range(1, 35) if sl not in excl]
    base = g.flagval("cap", 20)
    ok = False; extra = 0
    while not ok:
        caps = {sl: base for sl in slots}
        for j in range(extra):
            caps[slots[(j * len(slots)) // max(extra, 1)]] = base + 4
        ok, fill, dsw = gelu_sched(slots, 36, caps, maxT=g.flagval("maxT", 2), GS=g.flagval("gs", 4), gapP=g.flagval("gp", 2), gapT=g.flagval("gt", 3))
        if not ok: extra += 1
        assert extra <= len(slots)
    if "nogelu" in g.flags:
        fill = [[] for _ in range(36)]; dsw = [[] for _ in range(36)]
    g.info = f"gelu base {base} extra slots {extra}"
    misc = [list(dsw[s]) for s in range(36)]
    def sw():
        a(f"s_add_u32 s{s_Pn}, s{s_P}, 1")
        a(f"s_cmp_eq_u32 s{s_Pn}, 6")
        a(f"s_cselect_b32 s{s_Pn}, 0, s{s_Pn}")
        a(f"s_lshl_b32 s{s_tmp}, s{s_Pn}, 7")
        a(f"s_add_u32 s{s_dso}, s{s_tmp}, s58")
        a(f"s_cmp_eq_u32 s{s_n}, 5")
        a(f"s_cbranch_scc1 L_A_sw")
        a(f"L_A_swret:")
    misc[4*2+2].append(sw)
    misc[4*5+1] += [f"s_lshl_b32 s{s_tmp}, s{s_P}, 12", f"s_add_u32 s{s_hwn}, s59, s{s_tmp}"]
    def augrd():
        a(f"v_add_u32 v{V_M}, s{s_hwn}, v{v_l16}")
        a(f"ds_read_b128 {vr(V_AUGA,4)}, v{V_M}")
        lq.issue("aug")
    misc[4*8+0].append(augrd)
    V_PF = V_M + 6
    if "tpf" in g.flags:
        def pf():
            a(f"buffer_load_dword v{V_M+7}, v{V_PF}, s[88:91], 0 offen")
            vq.issue("pf")
            a(f"v_add_u32 v{V_PF}, 384, v{V_PF}")
        for e in range(9): misc[4*e+2].append(pf)
    misc[4*8+1] += [f"s_mov_b32 s{s_P}, s{s_Pn}", f"s_add_u32 s{s_n}, s{s_n}, 1", f"s_cmp_le_u32 s{s_n}, 5"]
    def endx(s):
        if s == 35:
            a(f"s_waitcnt lgkmcnt({min(15, lq.need('aug'))})")
            a(f"{MFMA} {vr(V_G,16)}, {vr(V_AUGA,4)}, {vr(V_AUGB,4)}, {vr(V_G,16)}")
            a(f"v_add_u32 v{v_hw}, s{s_hwn}, v{v_st}")
    for e in range(9):
        if "profA" in g.flags: a(f"s_memtime s[{80+2*e}:{81+2*e}]")
        bar = e in BARA
        nb = (e + 1) in BARA or e == 8
        tags = [f"r{e+1}", f"r{e+2}"] if e < 8 else [f"r{e+1}"]
        emit_epoch(g, e, 36, vq, lq, tags, 512, V_Y, fill, misc, [f"r{e+6}"], end_extra=endx, bar=bar, nextbar=nb)
    if "profA" in g.flags: a(f"s_memtime s[98:99]")
    a(f"s_cbranch_scc1 L_A")
    a("s_branch L_A_done")
    a(f"L_A_sw:")
    a(f"s_mov_b32 s{SD}, s{S_W2}")
    a(f"s_mov_b32 s{SD+1}, s{S_W2+1}")
    a(f"s_mov_b32 s{SD+2}, {SIZES['B_w2']}")
    a(f"s_mov_b32 s{s_dstep}, {64*W2_RS}")
    a(f"s_mul_i32 s57, s{s_F0}, {W2_RS}")
    a(f"s_lshl_b32 s{s_tmp}, s{s_Pd0}, 7")
    a(f"s_add_u32 s{s_dso}, s57, s{s_tmp}")
    a(f"v_mov_b32 v{v_doff}, v{v_doffB}")
    a(f"s_branch L_A_swret")
    a("L_A_done:")
    g.stamp()
    a("s_nop 15")
    for ins in gelu_plain(): a(ins)
    a("s_waitcnt vmcnt(0) lgkmcnt(0)")
    a("s_barrier")
    a(f"s_mul_i32 s{s_tmp}, s{s_i}, {12*2048}")
    a(f"s_add_u32 s{s_tmp}, s{s_tmp}, {LDS_H}")
    a(f"v_add_u32 v{V_M}, s{s_tmp}, v{v_st}")
    for s in range(24):
        a(f"ds_read_b128 {vr(V_Y+4*s,4)}, v{V_M} offset:{s*1024}")
    a(f"v_sub_u16 v{V_M+1}, v{v_rd}, v{v_abaseA}")
    a(f"v_add_u16 v{V_M+1}, v{V_M+1}, v{v_abaseB}")
    a(f"v_add_u16 v{v_rd}, 0xe000, v{V_M+1}")
    lq = Q()
    a("s_waitcnt lgkmcnt(0)")
    for s in range(4):
        g.frag_read(lq, s, s, 1024, f"g{s}")
    a(f"v_mov_b32 v{v_rd}, v{V_M+1}")
    g.stamp()
    a(f"s_lshl_b32 s{s_tmp}, s{s_t}, 2")
    a(f"s_add_u32 s{s_tmp}, s{s_tmp}, s{s_i}")
    a(f"s_mul_i32 s{s_tmp}, s{s_tmp}, {18*16}")
    a(f"s_add_u32 s{s_tmp}, s{s_tmp}, s{s_js}")
    a(f"s_lshl_b32 s{s_posbase}, s{s_tmp}, 11")
    a(f"s_add_u32 s{s_posbase}, s{s_posbase}, {WS_P}")
    a(f"s_lshl_b32 s{s_tmp}, s{s_jj}, 15")
    a(f"s_add_u32 s{s_posbase}, s{s_posbase}, s{s_tmp}")
    a(f"s_mov_b32 s{s_pos}, {OOB}")
    a(f"s_mov_b32 s{s_P}, s{s_Pd0}")
    a(f"s_add_u32 s{s_tmp}, s{s_P}, 1")
    a(f"s_cmp_eq_u32 s{s_tmp}, 9")
    a(f"s_cselect_b32 s{s_tmp}, 0, s{s_tmp}")
    a(f"s_lshl_b32 s{s_tmp}, s{s_tmp}, 7")
    a(f"s_add_u32 s{s_dso}, s57, s{s_tmp}")
    a(f"s_mov_b32 s{s_n}, 0")
    def epi_list():
        L = []
        for r in range(16): L.append(f"v_mul_f32 v{V_G+r}, v{V_G+r}, v{v_rstd}")
        for r in range(8): L.append(f"v_cvt_pk_bf16_f32 v{V_HP+r}, v{V_G+2*r}, v{V_G+2*r+1}")
        return L
    sf = " nt" if "stnt" in g.flags else (" sc0 sc1" if "stsc" in g.flags else (" sc1" if "stsc1" in g.flags else (" sc0 sc1 nt" if "stall" in g.flags else "")))
    st0 = f"buffer_store_dwordx4 {vr(V_HP,4)}, v{v_st}, {sr(SW,4)}, s{s_pos} offen{sf}"
    st1 = f"buffer_store_dwordx4 {vr(V_HP+4,4)}, v{v_st}, {sr(SW,4)}, s{s_pos} offen offset:1024{sf}"
    a(".p2align 3")
    a("L_B:")
    BARB = [0, 2, 4]
    fillB = [[] for _ in range(24)]
    miscB = [[] for _ in range(24)]
    el = epi_list()
    sl = [2, 3, 4, 5, 6, 8]
    for idx, ins in enumerate(el): fillB[sl[idx * len(sl) // len(el)]].append(ins)
    if "noepi" in g.flags: fillB = [[] for _ in range(24)]
    p0, p1 = g.flagval("sta", 9), g.flagval("stb", 13)
    if "nostore" not in g.flags:
        miscB[p0].append(st0); miscB[p1].append(st1)
    miscB[17] += [f"s_add_u32 s{s_Pn}, s{s_P}, 1", f"s_cmp_eq_u32 s{s_Pn}, 9", f"s_cselect_b32 s{s_Pn}, 0, s{s_Pn}"]
    miscB[18] += [f"s_lshl_b32 s{s_tmp}, s{s_P}, 16", f"s_add_u32 s{s_pos}, s{s_posbase}, s{s_tmp}"]
    miscB[21] += [f"s_add_u32 s{s_tmp}, s{s_Pn}, 1", f"s_cmp_eq_u32 s{s_tmp}, 9", f"s_cselect_b32 s{s_tmp}, 0, s{s_tmp}", f"s_lshl_b32 s{s_tmp}, s{s_tmp}, 7"]
    miscB[22] += [f"s_add_u32 s{s_dso}, s57, s{s_tmp}", f"s_mov_b32 s{s_P}, s{s_Pn}", f"s_add_u32 s{s_n}, s{s_n}, 1", f"s_cmp_lt_u32 s{s_n}, 9"]
    vq = Q(); lq = Q()
    for e in range(6):
        for k in range(4):
            s = 4*e + k
            if k == 0: vq.issue(f"r{e}")
            for ins in miscB[s]:
                if isinstance(ins, str) and ins.startswith("buffer_store"): vq.issue("st")
    for s in range(4): lq.issue(f"g{s}"); lq.issue(f"g{s}")
    for e in range(6):
        if "prof" in g.flags: a(f"s_memtime s[{80+2*e}:{81+2*e}]")
        bar = e in BARB
        nb = (e + 1) in BARB or e == 5
        emit_epoch(g, e, 24, vq, lq, [f"r{e+1}", f"r{e+2}"], 1024, V_Y, fillB, miscB, [f"r{e+6}"], bar=bar, nextbar=nb)
    if "prof" in g.flags: a(f"s_memtime s[92:93]")
    a(f"s_cbranch_scc1 L_B")
    g.stamp()
    a("s_nop 15")
    for ins in epi_list(): a(ins)
    a(st0); a(st1)
    a("s_waitcnt vmcnt(0) lgkmcnt(0)")
    g.stamp()
    if g.stamps:
        a("s_waitcnt lgkmcnt(0)")
        a(f"s_lshl_b32 s{s_tmp}, s2, 3")
        a(f"s_add_u32 s{s_tmp}, s{s_tmp}, s{s_w}")
        a(f"s_lshl_b32 s{s_tmp}, s{s_tmp}, 6")
        a(f"s_add_u32 s{s_tmp}, s{s_tmp}, {WS_STAMP}")
        a("s_mov_b64 exec, 1")
        a(f"v_mov_b32 v{V_M+1}, 0")
        lst = [S_ST+2*i for i in range(g.nst)]
        if "prof" in g.flags: lst = [80, 82, 84, 86, 88, 90, 92]
        if "profA" in g.flags: lst = [80, 82, 84, 86, 88, 90, 92, 94, 96, 98]
        if g.flagval("fine", -1) >= 0: lst = [80, 82, 84, 86, 88, 90, 92, 94]
        for i in range(len(lst)):
            a(f"v_mov_b32 v{V_M}, s{lst[i]}")
            a(f"buffer_store_dword v{V_M}, v{V_M+1}, {sr(SW,4)}, s{s_tmp} offen offset:{4*i}")
        a("s_waitcnt vmcnt(0)")
```

```python
import sys
from asmlib import *
from mlp3 import *
import k2_red
from attn2 import gen_attn
from k2_red import gen_k2

def gen_k1(stamps=False, flags=()):
    g = Gen(stamps, flags)
    a = g.a
    a("s_cmp_ge_u32 s2, 256")
    a("s_cbranch_scc1 L_end1")
    a(f"s_load_dwordx2 s[{SW}:{SW+1}], s[0:1], {KA['ws']}")
    a(f"s_load_dwordx2 s[{SG}:{SG+1}], s[0:1], {KA['dbg']}")
    g.stamp()
    if "rt" in flags:
        a("s_memrealtime s[96:97]")
    a(f"s_and_b32 s{s_tmp}, s2, 7")
    a(f"s_lshr_b32 s{s_tmp2}, s2, 3")
    a(f"s_cmp_ge_u32 s{s_tmp2}, 24")
    a("s_cbranch_scc1 L_attn")
    a(f"s_load_dwordx2 s[{SX}:{SX+1}], s[0:1], {KA['A_x']}")
    a(f"s_load_dwordx2 s[{SD}:{SD+1}], s[0:1], {KA['B_w1']}")
    a(f"s_load_dwordx2 s[{SB}:{SB+1}], s[0:1], {KA['B_b1']}")
    a(f"s_load_dwordx2 s[{S_W2}:{S_W2+1}], s[0:1], {KA['B_w2']}")
    if "map38" in flags:
        a(f"s_lshr_b32 s{s_js}, s{s_tmp}, 1")
        a(f"s_mul_i32 s{s_js}, s{s_js}, 3")
        a(f"s_lshr_b32 s{s_tmp3}, s{s_tmp2}, 3")
        a(f"s_add_u32 s{s_js}, s{s_js}, s{s_tmp3}")
        a(f"s_and_b32 s{s_t}, s{s_tmp}, 1")
        a(f"s_lshl_b32 s{s_t}, s{s_t}, 3")
        a(f"s_and_b32 s{s_tmp3}, s{s_tmp2}, 7")
        a(f"s_add_u32 s{s_t}, s{s_t}, s{s_tmp3}")
    else:
        a(f"s_mul_i32 s{s_tmp3}, s{s_tmp2}, 43")
        a(f"s_lshr_b32 s{s_tmp3}, s{s_tmp3}, 8")
        a(f"s_mul_i32 s{s_js}, s{s_tmp3}, 6")
        a(f"s_sub_u32 s{s_js}, s{s_tmp2}, s{s_js}")
        a(f"s_and_b32 s{s_t}, s{s_tmp}, 1")
        a(f"s_mul_i32 s{s_t}, s{s_t}, 6")
        a(f"s_add_u32 s{s_js}, s{s_js}, s{s_t}")
        a(f"s_lshr_b32 s{s_t}, s{s_tmp}, 1")
        a(f"s_lshl_b32 s{s_t}, s{s_t}, 2")
        a(f"s_add_u32 s{s_t}, s{s_t}, s{s_tmp3}")
    if "norot" in flags:
        a(f"s_mov_b32 s{s_P}, 0"); a(f"s_mov_b32 s{s_Pd0}, 0")
    else:
        a(f"s_mul_i32 s{s_tmp3}, s{s_t}, 43")
        a(f"s_lshr_b32 s{s_tmp3}, s{s_tmp3}, 8")
        a(f"s_mul_i32 s{s_tmp3}, s{s_tmp3}, 6")
        a(f"s_sub_u32 s{s_P}, s{s_t}, s{s_tmp3}")
        a(f"s_cmp_ge_u32 s{s_t}, 9")
        a(f"s_cselect_b32 s{s_tmp3}, 9, 0")
        a(f"s_sub_u32 s{s_Pd0}, s{s_t}, s{s_tmp3}")
    a("s_waitcnt lgkmcnt(0)")
    for (r, n) in ((SX, "A_x"), (SD, "B_w1"), (SW, "ws"), (SG, "dbg"), (SB, "B_b1")):
        finish_srd(a, r, n)
    gen_mlp(g)
    a("s_branch L_rt" if "rt" in flags else "s_branch L_end1")
    a("L_attn:")
    if "noattn" not in flags:
        a(f"s_load_dwordx2 s[{SX}:{SX+1}], s[0:1], {KA['A_x']}")
        a(f"s_load_dwordx2 s[{SD}:{SD+1}], s[0:1], {KA['A_wqkv']}")
        a(f"s_load_dwordx2 s[{S_W2}:{S_W2+1}], s[0:1], {KA['A_wo']}")
        a(f"s_load_dwordx2 s[58:59], s[0:1], {KA['gate_w']}")
        a(f"s_sub_u32 s{s_tmp2}, s{s_tmp2}, 24")
        if "map38" in flags:
            a(f"s_lshr_b32 s{s_js}, s{s_tmp}, 1")
            a(f"s_and_b32 s{s_t}, s{s_tmp}, 1")
            a(f"s_lshl_b32 s{s_t}, s{s_t}, 3")
            a(f"s_add_u32 s{s_t}, s{s_t}, s{s_tmp2}")
        else:
            a(f"s_and_b32 s{s_js}, s{s_tmp}, 1")
            a(f"s_lshl_b32 s{s_js}, s{s_js}, 1")
            a(f"s_and_b32 s{s_tmp3}, s{s_tmp2}, 1")
            a(f"s_add_u32 s{s_js}, s{s_js}, s{s_tmp3}")
            a(f"s_lshr_b32 s{s_t}, s{s_tmp}, 1")
            a(f"s_lshl_b32 s{s_t}, s{s_t}, 2")
            a(f"s_lshr_b32 s{s_tmp3}, s{s_tmp2}, 1")
            a(f"s_add_u32 s{s_t}, s{s_t}, s{s_tmp3}")
        a(f"s_cmp_ge_u32 s{s_t}, 9")
        a(f"s_cselect_b32 s{s_tmp3}, 9, 0")
        a(f"s_sub_u32 s{s_Pd0}, s{s_t}, s{s_tmp3}")
        a("s_waitcnt lgkmcnt(0)")
        for (r, n) in ((SX, "A_x"), (SD, "A_wqkv"), (SW, "ws"), (SG, "dbg")):
            finish_srd(a, r, n)
        g.inloop = False
        gen_attn(g)
    if "rt" in flags:
        a("L_rt:")
        a("s_memrealtime s[100:101]")
        a("s_waitcnt lgkmcnt(0)")
        a("s_lshl_b32 s98, s2, 3")
        a("s_add_u32 s98, s98, 0x3100000")
        a("s_mov_b64 exec, 1")
        a("v_mov_b32 v1, 0")
        a("v_mov_b32 v2, s96")
        a("v_mov_b32 v3, s100")
        a(f"s_cmp_eq_u32 s{s_w}, 0")
        a("s_cbranch_scc0 L_end1")
        a(f"buffer_store_dwordx2 v[2:3], v1, {sr(SW,4)}, s98 offen")
        a("s_waitcnt vmcnt(0)")
    a("L_end1:")
    print(g.info, file=sys.stderr)
    return kernel_wrap("k1_kernel", a.text(), vgpr=256, sgpr=102, accum=256)

if __name__ == "__main__":
    out = sys.argv[1]
    stamps = "stamps" in sys.argv
    mode = "b" if "bonly" in sys.argv else "full"
    k1 = gen_k1(stamps, flags=sys.argv[2:])
    k2 = gen_k2(mode, rt=('rt' in sys.argv), xmap=('noxmap' not in sys.argv))
    launches = [("k1_kernel", (256,1,1), (512,1,1), LDS_TOTAL), ("k2_kernel", (576,1,1), (256,1,1), 0)]
    open(out, "w").write(file_wrap(launches, [k1, k2]))
```

```python
from asmlib import *
from mlp3 import *

WS_FLAG = WS_G + 2048 * 4 + 32 * 18 * 80 + 4096
WS_FLAG = (WS_FLAG + 4095) // 4096 * 4096
DBG_NONCE = 63 * 4

def gen_nonce_init(g):
    a = g.a
    lab = a.label("Lnn")
    a("s_cmp_eq_u32 s2, 0")
    a(f"s_cbranch_scc0 {lab}")
    a("v_cmp_eq_u32 vcc, 0, v0")
    a("s_and_saveexec_b64 s[94:95], vcc")
    a(f"s_cbranch_execz {lab}_r")
    a("s_memrealtime s[92:93]")
    a("s_waitcnt lgkmcnt(0)")
    a("s_or_b32 s92, s92, 1")
    a("v_mov_b32 v2, s92")
    a(f"v_mov_b32 v3, {DBG_NONCE}")
    a(f"buffer_store_dword v2, v3, {sr(SG,4)}, 0 offen sc0 sc1")
    a(f"{lab}_r:")
    a("s_mov_b64 exec, s[94:95]")
    a(f"{lab}:")

def gen_final(g, jreg):
    a = g.a
    SO, SB2 = 4, 20
    a.c("final reduce")
    a("s_mov_b64 exec, -1")
    RT = "rtf" in g.flags
    if RT: a("s_memrealtime s[64:65]")
    a(f"s_load_dwordx2 s[{SO}:{SO+1}], s[0:1], {KA['out']}")
    a(f"s_load_dwordx2 s[{SB2}:{SB2+1}], s[0:1], {KA['B_b2']}")
    m = V_M
    a(f"v_mov_b32 v{m}, {DBG_NONCE}")
    a("L_fn_poll:")
    a(f"buffer_load_dword v{m+1}, v{m}, {sr(SG,4)}, 0 offen sc1")
    a("s_waitcnt vmcnt(0)")
    a(f"v_readfirstlane_b32 s52, v{m+1}")
    a("s_nop 3")
    a("s_cmp_eq_u32 s52, 0")
    a("s_cbranch_scc1 L_fn_poll")
    a("s_barrier")
    a(f"s_lshl_b32 s53, s{s_t}, 7")
    a(f"s_add_u32 s53, s53, {WS_FLAG}")
    a(f"s_cmp_eq_u32 s{s_w}, 0")
    a("s_cbranch_scc0 L_fn_nosig")
    a(f"s_lshl_b32 s{s_tmp}, s{jreg}, 2")
    a(f"v_mov_b32 v{m}, s{s_tmp}")
    a(f"v_mov_b32 v{m+1}, s52")
    a("s_mov_b64 exec, 1")
    a(f"buffer_store_dword v{m+1}, v{m}, {sr(SW,4)}, s53 offen sc0 sc1")
    a("s_mov_b64 exec, -1")
    a(f"v_and_b32 v{m}, 15, v{v_lane}")
    a(f"v_lshlrev_b32 v{m}, 2, v{m}")
    a("L_fn_wait:")
    a(f"buffer_load_dword v{m+1}, v{m}, {sr(SW,4)}, s53 offen sc0 sc1")
    a("s_waitcnt vmcnt(0)")
    a(f"v_cmp_ne_u32 vcc, s52, v{m+1}")
    a("s_nop 4")
    a("s_cmp_eq_u64 vcc, 0")
    a("s_cbranch_scc1 L_fn_nosig")
    a("s_sleep 1")
    a("s_branch L_fn_wait")
    a("L_fn_nosig:")
    a("s_waitcnt lgkmcnt(0)")
    a(f"s_mov_b32 s{SO+2}, {SIZES['out']}")
    a(f"s_mov_b32 s{SO+3}, 0x00020000")
    a(f"s_mov_b32 s{SB2+2}, {SIZES['B_b2']}")
    a(f"s_mov_b32 s{SB2+3}, 0x00020000")
    a("s_barrier")
    if RT: a("s_memrealtime s[66:67]")
    def unit(ureg, V, tag):
        a(f"s_lshr_b32 s54, s{ureg}, 1")
        a(f"s_and_b32 s55, s{ureg}, 1")
        a(f"s_mul_i32 s56, s{s_t}, 72")
        a(f"s_add_u32 s56, s56, s54")
        a(f"s_lshl_b32 s57, s56, 15")
        a(f"s_lshl_b32 s58, s55, 10")
        a(f"s_add_u32 s57, s57, s58")
        a(f"s_add_u32 s57, s57, {WS_P}")
        for sl in range(16):
            a(f"buffer_load_dwordx4 {vr(V+4*sl,4)}, v{v_st}, {sr(SW,4)}, s57 offen sc0 sc1")
            if sl < 15: a(f"s_add_u32 s57, s57, 2048")
        a(f"s_mul_i32 s58, s54, 3641")
        a(f"s_lshr_b32 s58, s58, 16")
        a(f"s_mul_i32 s59, s58, 18")
        a(f"s_sub_u32 s59, s54, s59")
        A0 = V + 64
        a(f"v_lshrrev_b32 v{A0}, 5, v{v_lane}")
        a(f"s_lshl_b32 s59, s59, 5")
        a(f"s_lshl_b32 s55, s55, 4")
        a(f"s_add_u32 s59, s59, s55")
        a(f"v_lshlrev_b32 v{A0+1}, 2, v{A0}")
        a(f"v_add_u32 v{A0+1}, s59, v{A0+1}")
        a(f"v_lshlrev_b32 v{A0+1}, 1, v{A0+1}")
        a(f"buffer_load_dwordx2 {vr(A0+2,2)}, v{A0+1}, {sr(SB2,4)}, 0 offen")
        a(f"buffer_load_dwordx2 {vr(A0+4,2)}, v{A0+1}, {sr(SB2,4)}, 0 offen offset:16")
        a(f"v_lshrrev_b32 v{A0+6}, 4, v{v_l16}")
        a(f"s_lshl_b32 s56, s{s_t}, 7")
        a(f"s_lshl_b32 s58, s58, 5")
        a(f"s_add_u32 s56, s56, s58")
        a(f"v_add_u32 v{A0+6}, s56, v{A0+6}")
        a(f"v_lshlrev_b32 v{A0+7}, 2, v{A0+6}")
        a(f"s_mov_b32 s58, {WS_G}")
        a(f"buffer_load_dword v{A0+8}, v{A0+7}, {sr(SW,4)}, s58 offen sc0 sc1")
        a(f"v_mul_u32_u24 v{A0+9}, 1152, v{A0+6}")
        a(f"v_lshlrev_b32 v{A0+7}, 4, v{A0}")
        a(f"v_add_u32 v{A0+9}, v{A0+9}, v{A0+7}")
        a(f"s_lshl_b32 s59, s59, 1")
        a(f"v_add_u32 v{A0+9}, s59, v{A0+9}")
        return A0
    def compute(V, A0, younger):
        A, B = 16, 24
        T0, T1 = 32, 33
        for sl in range(16):
            a(f"s_waitcnt vmcnt({min(63, 15 - sl + 3 + younger)})")
            dst = A if sl < 12 else B
            first = (sl == 0 or sl == 12)
            for r in range(4):
                src = V + 4*sl + r
                if first:
                    a(f"v_lshlrev_b32 v{dst+2*r}, 16, v{src}")
                    a(f"v_and_b32 v{dst+2*r+1}, 0xffff0000, v{src}")
                else:
                    a(f"v_lshlrev_b32 v{T0}, 16, v{src}")
                    a(f"v_and_b32 v{T1}, 0xffff0000, v{src}")
                    a(f"v_add_f32 v{dst+2*r}, v{dst+2*r}, v{T0}")
                    a(f"v_add_f32 v{dst+2*r+1}, v{dst+2*r+1}, v{T1}")
        a(f"s_waitcnt vmcnt({younger})")
        for r in range(4):
            a(f"v_lshlrev_b32 v{T0}, 16, v{A0+2+r}")
            a(f"v_and_b32 v{T1}, 0xffff0000, v{A0+2+r}")
            a(f"v_add_f32 v{A+2*r}, v{A+2*r}, v{T0}")
            a(f"v_add_f32 v{A+2*r+1}, v{A+2*r+1}, v{T1}")
        for e in range(8):
            a(f"v_sub_f32 v{B+e}, v{B+e}, v{A+e}")
            a(f"v_fma_f32 v{A+e}, v{A0+8}, v{B+e}, v{A+e}")
        for r in range(4):
            a(f"v_cvt_pk_bf16_f32 v{36+r}, v{A+2*r}, v{A+2*r+1}")
        a("s_nop 1")
        a("v_permlane32_swap_b32 v36, v38")
        a("v_permlane32_swap_b32 v37, v39")
        a("s_nop 1")
        a(f"buffer_store_dwordx4 v[36:39], v{A0+9}, {sr(SO,4)}, 0 offen")
    a(f"s_mul_i32 s60, s{jreg}, 9")
    a(f"s_add_u32 s61, s60, s{s_w}")
    V1, V2 = 64, 160
    A1 = unit(61, V1, "u1")
    a(f"s_cmp_eq_u32 s{s_w}, 0")
    a("s_cbranch_scc0 L_fn_one")
    a(f"s_add_u32 s61, s60, 8")
    A2 = unit(61, V2, "u2")
    compute(V1, A1, 19)
    compute(V2, A2, 1)
    a("s_branch L_fn_end")
    a("L_fn_one:")
    compute(V1, A1, 0)
    a("L_fn_end:")
    a("s_waitcnt vmcnt(0)")
    if RT:
        a("s_memrealtime s[68:69]")
        a("s_waitcnt lgkmcnt(0)")
        a("s_lshl_b32 s70, s2, 4")
        a("s_add_u32 s70, s70, 0x3100000")
        a("s_mov_b64 exec, 1")
        a("v_mov_b32 v1, 0")
        a("v_mov_b32 v2, s96"); a("v_mov_b32 v3, s64"); a("v_mov_b32 v4, s66"); a("v_mov_b32 v5, s68")
        a(f"s_cmp_eq_u32 s{s_w}, 0")
        a("s_cbranch_scc0 L_fn_x")
        a(f"buffer_store_dwordx4 v[2:5], v1, {sr(SW,4)}, s70 offen")
        a("s_waitcnt vmcnt(0)")
        a("L_fn_x:")
```

```python
from asmlib import *
import struct

NS = 8
SLOT = 8192
RINGSZ = NS * SLOT
LDS_RING = 0
LDS_H = 65536
LDS_TOTAL = 163840
LDS_SCR = 6 * SLOT
LDS_STAT = LDS_H
import sys as _s
WS_BASE = 0
for _f in _s.argv:
    if _f.startswith('wsb'): WS_BASE = int(_f[3:]) << 20
WS_P = WS_BASE
WS_CSP = WS_BASE + 37748736
WS_G = WS_CSP + 12*16*384*4
WS_STAMP = 0x3000000 if WS_BASE == 0 else 0
W1_RS = 9216
W2_RS = 1152
X_RS = 1152
LOG2E = 1.4426950408889634
K1C = -2.0 * 0.7978845608028654 * LOG2E
K2C = -2.0 * 0.7978845608028654 * 0.044715 * LOG2E
def f2u(x): return struct.unpack("<I", struct.pack("<f", x))[0]
OOB = 0x40000000

SX, SD, SW, SG, SB = 4, 8, 12, 16, 20
S_W2 = 24
s_t, s_js, s_w, s_i, s_jj, s_F0 = 28, 29, 30, 31, 32, 33
s_n = 34
s_ro, s_wo, s_wbase = 35, 36, 37
s_dso, s_dstep = 38, 39
s_P, s_Pn = 40, 41
s_tmp, s_tmp2, s_tmp3 = 42, 43, 44
s_pos, s_posbase, s_xso, s_xw, s_Pd0 = 45, 46, 47, 48, 49
s_hwn = 50
S_ST = 60
v_tid, v_lane, v_doff, v_doffB, v_abaseA, v_abase, v_rd = 0, 1, 2, 3, 4, 5, 6
v_abaseB = 7
v_hw, v_l16 = 8, 9
v_k1r, v_k2r, v_rstd = 10, 11, 12
v_S, v_xrd, v_st = 13, 14, 15
V_T, V_HP, V_FR, V_M = 16, 24, 32, 56
V_ACC, V_G, V_CS, V_Y = 64, 80, 96, 112
V_AUGA, V_AUGB = 96, 100
NB, PD = 6, 4
MFMA = "v_mfma_f32_32x32x16_bf16"
def vr(a, n): return f"v[{a}:{a+n-1}]"
def sr(a, n): return f"s[{a}:{a+n-1}]"

class Q:
    def __init__(self): self.q = []
    def issue(self, tag): self.q.append(tag)
    def need(self, *tags):
        last = -1
        for idx, tg in enumerate(self.q):
            if tg in tags: last = idx
        assert last >= 0, f"{tags} not in queue"
        return len(self.q) - 1 - last

class Gen:
    def __init__(self, stamps=False, flags=()):
        self.flags = set(flags)
        self.a = Asm()
        self.stamps = stamps
        self.nst = 0
        self.inloop = False
    def stamp(self):
        if self.stamps:
            i = self.nst; self.nst += 1
            self.a(f"{'s_memrealtime' if 'stampRT' in self.flags else 's_memtime'} s[{S_ST+2*i}:{S_ST+2*i+1}]")
    def flagval(self, pre, default):
        for f in self.flags:
            if f.startswith(pre) and f[len(pre):].isdigit(): return int(f[len(pre):])
        return default
    def dma_a(self):
        L = [f"s_and_b32 m0, s{s_wo}, {RINGSZ-1}", f"s_add_u32 s{s_wo}, s{s_wo}, {SLOT}"]
        if not ("nodma" in self.flags and self.inloop):
            L.append(f"buffer_load_dwordx4 v{v_doff}, {sr(SD,4)}, s{s_dso} offen lds")
        return L
    def dma_b(self):
        return [f"s_add_u32 s{s_dso}, s{s_dso}, s{s_dstep}"]
    def rd_salu(self):
        return []
    def rd_valu(self):
        return [f"v_add_u16 v{v_rd}, {SLOT}, v{v_rd}"]
    def dma_full(self, vq, tag):
        for x in self.dma_a(): self.a(x)
        vq.issue(tag)
        for x in self.dma_b(): self.a(x)
    def frag_read(self, lq, kslot, buf, second, tag):
        a = self.a
        r = V_FR + 4 * buf
        a(f"ds_read_b64_tr_b16 {vr(r,2)}, v{v_rd} offset:{kslot*2048}")
        a(f"ds_read_b64_tr_b16 {vr(r+2,2)}, v{v_rd} offset:{kslot*2048+second}")
        lq.issue(tag); lq.issue(tag)

USE_FMA = True
def gelu_chain(e, T):
    G = V_G + e
    if USE_FMA:
        return [(f"v_mul_f32 v{T}, v{G}, v{G}", 4), (f"v_fma_f32 v{T}, v{T}, v{v_k2r}, v{v_k1r}", 4),
                (f"v_mul_f32 v{T}, v{G}, v{T}", 4), (f"v_exp_f32 v{T}, v{T}", 8), (f"v_add_f32 v{T}, 1.0, v{T}", 4),
                (f"v_rcp_f32 v{T}, v{T}", 8), (f"v_mul_f32 v{T}, v{G}, v{T}", 4)]
    return [(f"v_mul_f32 v{T}, v{G}, v{G}", 4), (f"v_mul_f32 v{T}, v{T}, v{v_k2r}", 4), (f"v_add_f32 v{T}, v{T}, v{v_k1r}", 4),
            (f"v_mul_f32 v{T}, v{G}, v{T}", 4), (f"v_exp_f32 v{T}, v{T}", 8), (f"v_add_f32 v{T}, 1.0, v{T}", 4),
            (f"v_rcp_f32 v{T}, v{T}", 8), (f"v_mul_f32 v{T}, v{G}, v{T}", 4)]

TSH = 0
DSW = 'b128'
def gelu_sched(slots, nslots, caps, maxT=2, GS=4, gapP=2, gapT=3):
    NT = 8
    chains = [gelu_chain(e, V_T + ((e + TSH) % NT)) for e in range(16)]
    NOPS = len(chains[0])
    pos = [0] * 16; done_cvt = [False] * 8; last = [-10] * 16
    fill = [[] for _ in range(nslots)]; dsw = [[] for _ in range(nslots)]
    gi = 0; wrote = [False, False]
    for s in slots:
        budget = caps[s]; nT = 0; progress = True
        while budget > 0 and progress:
            progress = False
            for p in range(8):
                if not done_cvt[p] and pos[2*p] == NOPS and pos[2*p+1] == NOPS and budget >= 4 and gi - max(last[2*p], last[2*p+1]) >= 1:
                    fill[s].append(f"v_cvt_pk_bf16_f32 v{V_HP+p}, v{V_T+(2*p+TSH)%NT}, v{V_T+(2*p+1+TSH)%NT}")
                    done_cvt[p] = True; budget -= 4; gi += 1; progress = True
                    if DSW == "pl": dsw[s].append(f"ds_write_b32 v{v_hw}, v{V_HP+p} offset:{p*256}")
                    break
            if progress: continue
            best = None
            for e in range(16):
                if pos[e] >= NOPS: continue
                if e >= NT and pos[e] == 0 and not done_cvt[(e - NT) // 2]: continue
                ins, c = chains[e][pos[e]]
                if c > budget: continue
                if c == 8 and nT >= maxT: continue
                gap = gi - last[e]
                if pos[e] > 0:
                    prev_trans = chains[e][pos[e]-1][1] == 8
                    if gap < (gapT if prev_trans else gapP): continue
                key = ((e // GS) * NOPS + pos[e]) * GS + (e % GS)
                if best is None or key < best[0]: best = (key, e)
            if best is not None:
                e = best[1]
                ins, c = chains[e][pos[e]]
                fill[s].append(ins); pos[e] += 1; last[e] = gi; gi += 1; budget -= c
                if c == 8: nT += 1
                progress = True
        gi += 3
        for ks in range(2):
            if DSW == "pl":
                if all(done_cvt[4*ks:4*ks+4]): wrote[ks] = True
                continue
            if not wrote[ks] and all(done_cvt[4*ks:4*ks+4]):
                if DSW == "b64":
                    dsw[s].append(f"ds_write_b64 v{v_hw}, {vr(V_HP+4*ks,2)} offset:{ks*1024}")
                    dsw[s].append(f"ds_write_b64 v{v_hw}, {vr(V_HP+4*ks+2,2)} offset:{ks*1024+8}")
                elif DSW == "w2":
                    dsw[s].append(f"ds_write2_b64 v{v_hw}, {vr(V_HP+4*ks,2)}, {vr(V_HP+4*ks+2,2)} offset0:{ks*128} offset1:{ks*128+1}")
                elif DSW == "b32":
                    for j in range(4): dsw[s].append(f"ds_write_b32 v{v_hw}, v{V_HP+4*ks+j} offset:{ks*1024+4*j}")
                else:
                    dsw[s].append(f"ds_write_b128 v{v_hw}, {vr(V_HP+4*ks,4)} offset:{ks*1024}")
                wrote[ks] = True
    ok = all(done_cvt) and all(wrote)
    return ok, fill, dsw

def gelu_plain():
    L = []
    for q in range(4):
        T = [V_T + (q % 2) * 4 + e for e in range(4)]
        ch = [gelu_chain(4*q+e, T[e]) for e in range(4)]
        for o in range(len(ch[0])):
            for e in range(4): L.append(ch[e][o][0])
        L.append(f"v_cvt_pk_bf16_f32 v{V_HP+2*q}, v{T[0]}, v{T[1]}")
        L.append(f"v_cvt_pk_bf16_f32 v{V_HP+2*q+1}, v{T[2]}, v{T[3]}")
        if DSW == "pl":
            L.append(f"ds_write_b32 v{v_hw}, v{V_HP+2*q} offset:{(2*q)*256}")
            L.append(f"ds_write_b32 v{v_hw}, v{V_HP+2*q+1} offset:{(2*q+1)*256}")
        elif q % 2 == 1:
            L.append(f"ds_write_b128 v{v_hw}, {vr(V_HP+4*(q//2),4)} offset:{(q//2)*1024}")
    return L

def emit_epoch(g, e, nk_total, vq, lq, vm_tags, second, bregs, fill, misc, dma_tag, tagp="g", force_lgkm=None, ndma=1, end_extra=None,
               bar=True, nextbar=True, swap=False, kvalid=None, lastD=None, dma_fn=None, firstC0=True):
    a = g.a
    def put(lst):
        for ins in lst:
            if callable(ins): ins(); continue
            a(ins)
            if ins.startswith(("ds_write", "ds_read")): lq.issue("x")
            if ins.startswith(("buffer_store",)): vq.issue("st")
    def rvalid(x): return kvalid is None or (x % nk_total) < kvalid
    for k in range(4):
        s = 4 * e + k
        last_pre = (k == 3 and nextbar)
        if last_pre:
            if rvalid(s + PD): g.frag_read(lq, 3, (s + PD) % NB, second, f"{tagp}{s+PD}")
            for x in g.rd_valu(): a(x)
        tags = []
        if k % 2 == 0:
            tags = [f"{tagp}{x}" for x in (s, s + 1) if rvalid(x)]
        if k == 0 and bar:
            nl = min(15, lq.need(*tags)) if tags else 15
            if force_lgkm is not None: nl = min(nl, force_lgkm)
            nv = vq.need(*vm_tags)
            nv = max(0, nv - (g.flagval("vmx", 0) if g.inloop else 0))
            if "novm" in g.flags and g.inloop: a(f"s_waitcnt lgkmcnt({nl})")
            else: a(f"s_waitcnt vmcnt({nv}) lgkmcnt({nl})")
            if not ("nobar" in g.flags and g.inloop): a("s_barrier")
        elif tags:
            nl = min(15, lq.need(*tags))
            if k == 0 and force_lgkm is not None: nl = min(nl, force_lgkm)
            a(f"s_waitcnt lgkmcnt({nl})")
        lastk = (nk_total if kvalid is None else kvalid) - 1
        D = (V_G if lastD is None else lastD) if s == lastk else V_ACC
        C = "0" if (s == 0 and firstC0) else vr(V_ACC, 16)
        if rvalid(s):
            opA, opB = vr(V_FR+4*(s%NB),4), vr(bregs+4*s,4)
            if swap: opA, opB = opB, opA
            a(f"{MFMA} {vr(D,16)}, {opA}, {opB}, {C}")
        if not last_pre:
            put(fill[s])
            if rvalid(s + PD): g.frag_read(lq, k, (s + PD) % NB, second, f"{tagp}{s+PD}")
            if k == 3:
                for x in g.rd_valu(): a(x)
            if k == 0:
                if dma_fn is not None:
                    dma_fn(); vq.issue(dma_tag[0])
                else:
                    for d in range(ndma):
                        for x in g.dma_a(): a(x)
                        vq.issue(dma_tag[d])
                        for x in g.dma_b(): a(x)
            put(misc[s])
        else:
            assert not fill[s], (s, fill[s])
            put(misc[s])
        if k == 3 and end_extra: end_extra(s)


def touch(g, vq, srd, U, N, soff, mode, vt, vd, tag="pf"):
    a = g.a
    for u in range(U):
        a(f"s_mul_i32 s{s_tmp}, s{s_w}, {U*64}")
        a(f"s_add_u32 s{s_tmp}, s{s_tmp}, {u*64}")
        a(f"v_add_u32 v{vt}, s{s_tmp}, v{v_lane}")
        if mode[0] == 'lin':
            a(f"v_lshlrev_b32 v{vt+1}, 7, v{vt}")
        elif mode[0] == 'div':
            L, RS = mode[1], mode[2]
            magic = (65536 + L - 1) // L
            a(f"v_mul_u32_u24 v{vt+1}, {magic}, v{vt}")
            a(f"v_lshrrev_b32 v{vt+1}, 16, v{vt+1}")
            a(f"v_mul_u32_u24 v{vt+2}, {L}, v{vt+1}")
            a(f"v_sub_u32 v{vt+2}, v{vt}, v{vt+2}")
            a(f"v_lshlrev_b32 v{vt+2}, 7, v{vt+2}")
            a(f"v_mul_u32_u24 v{vt+1}, {RS}, v{vt+1}")
            a(f"v_add_u32 v{vt+1}, v{vt+1}, v{vt+2}")
        elif mode[0] == 'qkv':
            magic = (65536 + 11) // 12
            a(f"v_mul_u32_u24 v{vt+1}, {magic}, v{vt}")
            a(f"v_lshrrev_b32 v{vt+1}, 16, v{vt+1}")
            a(f"v_mul_u32_u24 v{vt+2}, 12, v{vt+1}")
            a(f"v_sub_u32 v{vt+2}, v{vt}, v{vt+2}")
            a(f"v_lshrrev_b32 v{vt+3}, 2, v{vt+2}")
            a(f"v_and_b32 v{vt+2}, 3, v{vt+2}")
            a(f"v_lshlrev_b32 v{vt+2}, 7, v{vt+2}")
            a(f"v_mul_u32_u24 v{vt+3}, 1152, v{vt+3}")
            a(f"v_add_u32 v{vt+2}, v{vt+2}, v{vt+3}")
            a(f"v_mul_u32_u24 v{vt+1}, 3456, v{vt+1}")
            a(f"v_add_u32 v{vt+1}, v{vt+1}, v{vt+2}")
        a(f"v_cmp_gt_u32 vcc, {N}, v{vt}")
        a(f"v_mov_b32 v{vt+2}, {OOB}")
        a("s_nop 0")
        a(f"v_cndmask_b32 v{vt+1}, v{vt+2}, v{vt+1}, vcc")
        a(f"buffer_load_dword v{vd}, v{vt+1}, {sr(srd,4)}, s{soff} offen")
        if vq is not None: vq.issue(tag)

def gen_mlp(g):
    global TSH, DSW
    for f in g.flags:
        if f.startswith('dsw') and f[3:] in ('b64','w2','b32','pl'): DSW = f[3:]
    a = g.a
    a.c("MLP role v2")
    a(f"v_and_b32 v{v_lane}, 63, v{v_tid}")
    a(f"v_lshrrev_b32 v{V_M}, 6, v{v_tid}")
    a("s_nop 0")
    a(f"v_readfirstlane_b32 s{s_w}, v{V_M}")
    t0, t1, t2, xo = V_T, V_T+1, V_T+2, V_T+3
    a(f"v_lshrrev_b32 v{t0}, 3, v{v_lane}")
    a(f"v_and_b32 v{t2}, 7, v{v_lane}")
    a(f"s_lshl_b32 s{s_tmp}, s{s_w}, 3")
    a(f"v_add_u32 v{t0}, s{s_tmp}, v{t0}")
    a(f"v_lshrrev_b32 v{t1}, 1, v{t0}")
    a(f"v_and_b32 v{t1}, 7, v{t1}")
    a(f"v_xor_b32 v{t1}, v{t1}, v{t2}")
    a(f"v_lshlrev_b32 v{t1}, 4, v{t1}")
    a(f"v_mul_u32_u24 v{xo}, {X_RS}, v{t0}")
    a(f"v_add_u32 v{xo}, v{xo}, v{t1}")
    a(f"s_mul_i32 s{s_xso}, s{s_t}, {128*X_RS}")
    a(f"s_lshl_b32 s{s_xw}, s{s_w}, 10")
    vq = Q()
    def x_dma(c):
        slot = c % 6
        a(f"s_add_u32 m0, s{s_xw}, {LDS_H+slot*16384}")
        a(f"s_add_u32 s{s_tmp}, s{s_xso}, {c*128}")
        a(f"buffer_load_dwordx4 v{xo}, {sr(SX,4)}, s{s_tmp} offen lds")
        vq.issue(f"x{c}")
        a(f"s_add_u32 m0, s{s_xw}, {LDS_H+slot*16384+8192}")
        a(f"s_add_u32 s{s_tmp}, s{s_xso}, {c*128+64*X_RS}")
        a(f"buffer_load_dwordx4 v{xo}, {sr(SX,4)}, s{s_tmp} offen lds")
        vq.issue(f"x{c}")
    x_dma(0)
    a(f"v_lshrrev_b32 v{t1}, 4, v{v_lane}")
    a(f"v_and_b32 v{t1}, 1, v{t1}")
    a(f"v_lshlrev_b32 v{t1}, 2, v{t1}")
    a(f"v_xor_b32 v{t1}, v{t1}, v{t2}")
    a(f"v_lshlrev_b32 v{t1}, 4, v{t1}")
    a(f"v_mul_u32_u24 v{v_doff}, {W1_RS}, v{t0}")
    a(f"v_add_u32 v{v_doff}, v{v_doff}, v{t1}")
    a(f"v_mul_u32_u24 v{v_doffB}, {W2_RS}, v{t0}")
    a(f"v_add_u32 v{v_doffB}, v{v_doffB}, v{t1}")
    a(f"s_mul_i32 s{s_F0}, s{s_js}, 384")
    a(f"s_mov_b32 s{s_wo}, s{s_xw}")
    a(f"s_mov_b32 s{s_dstep}, {64*W1_RS}")
    a(f"s_lshl_b32 s{s_tmp}, s{s_P}, 6")
    a(f"s_add_u32 s{s_tmp}, s{s_tmp}, s{s_F0}")
    a(f"s_lshl_b32 s{s_dso}, s{s_tmp}, 1")
    g.dma_full(vq, "r0")
    if "ob" in g.flags: a("s_barrier")
    m0_, m1_, m2_ = V_M, V_M+1, V_M+2
    a(f"v_mul_u32_u24 v{m0_}, 1366, v{v_tid}")
    a(f"v_lshrrev_b32 v{m0_}, 16, v{m0_}")
    a(f"v_mul_u32_u24 v{m1_}, 48, v{m0_}")
    a(f"v_sub_u32 v{m1_}, v{v_tid}, v{m1_}")
    a(f"v_mul_u32_u24 v{V_M+3}, 1536, v{m0_}")
    a(f"v_lshlrev_b32 v{m2_}, 5, v{m1_}")
    a(f"v_add_u32 v{V_M+3}, v{V_M+3}, v{m2_}")
    a(f"v_mul_u32_u24 v{m2_}, {4*W1_RS}, v{m0_}")
    a(f"v_lshlrev_b32 v{m1_}, 4, v{m1_}")
    a(f"v_add_u32 v{m2_}, v{m2_}, v{m1_}")
    a(f"v_cmp_lt_u32 vcc, 8, v{m0_}")
    a(f"v_mov_b32 v{m1_}, {OOB}")
    a(f"s_mul_i32 s{s_tmp}, s{s_t}, {36*W1_RS}")
    a(f"v_cndmask_b32 v{m2_}, v{m2_}, v{m1_}, vcc")
    a(f"s_lshl_b32 s{s_tmp2}, s{s_F0}, 1")
    a(f"s_add_u32 s{s_tmp}, s{s_tmp}, s{s_tmp2}")
    for q in range(4):
        a(f"buffer_load_dwordx4 {vr(V_CS+4*q,4)}, v{m2_}, {sr(SD,4)}, s{s_tmp} offen")
        vq.issue("cs")
        if q < 3: a(f"s_add_u32 s{s_tmp}, s{s_tmp}, {W1_RS}")
    a(f"v_min_u32 v{V_M+3}, {9*1536+47*32}, v{V_M+3}")
    if "ob" in g.flags: a("s_barrier")
    x_dma(1); g.dma_full(vq, "r1")
    if "oldpf" in g.flags:
        a(f"s_and_b32 s{s_tmp2}, s{s_t}, 3")
        a(f"s_mul_i32 s{s_tmp2}, s{s_tmp2}, {144*W1_RS}")
        a(f"s_lshl_b32 s{s_tmp3}, s{s_F0}, 1")
        a(f"s_add_u32 s52, s{s_tmp2}, s{s_tmp3}")
        touch(g, vq, SD, 2, 864, 52, ('div', 6, W1_RS), V_T+4, V_M+7)
    a(f"s_and_b32 s{s_i}, s{s_w}, 3")
    a(f"s_lshr_b32 s{s_jj}, s{s_w}, 2")
    a(f"v_and_b32 v{t0}, 15, v{v_lane}")
    a(f"v_lshrrev_b32 v{t0}, 2, v{t0}")
    a(f"v_lshrrev_b32 v{t1}, 1, v{t0}")
    a(f"v_xor_b32 v{t1}, s{s_jj}, v{t1}")
    a(f"v_lshlrev_b32 v{t1}, 6, v{t1}")
    a(f"v_lshlrev_b32 v{t0}, 7, v{t0}")
    a(f"v_add_u32 v{t0}, v{t0}, v{t1}")
    a(f"v_lshrrev_b32 v{t1}, 4, v{v_lane}")
    a(f"v_and_b32 v{t1}, 1, v{t1}")
    a(f"v_lshlrev_b32 v{t1}, 5, v{t1}")
    a(f"v_add_u32 v{t0}, v{t0}, v{t1}")
    a(f"v_and_b32 v{t1}, 3, v{v_lane}")
    a(f"v_lshlrev_b32 v{t1}, 3, v{t1}")
    a(f"v_add_u32 v{t0}, v{t0}, v{t1}")
    a(f"v_lshrrev_b32 v{t1}, 5, v{v_lane}")
    a(f"v_lshlrev_b32 v{t2}, 10, v{t1}")
    a(f"v_add_u32 v{v_abaseA}, v{t0}, v{t2}")
    a(f"v_lshlrev_b32 v{t2}, 9, v{t1}")
    a(f"v_add_u32 v{v_abaseB}, v{t0}, v{t2}")
    a(f"v_mov_b32 v{v_abase}, v{v_abaseA}")
    a(f"v_mov_b32 v{v_rd}, v{v_abaseA}")
    a(f"v_and_b32 v{t0}, 31, v{v_lane}")
    a(f"v_lshlrev_b32 v{v_l16}, 4, v{t0}")
    a(f"s_lshl_b32 s{s_tmp}, s{s_i}, 5")
    a(f"v_add_u32 v{t0}, s{s_tmp}, v{t0}")
    a(f"v_lshrrev_b32 v{t2}, 1, v{t0}")
    a(f"v_and_b32 v{t2}, 7, v{t2}")
    a(f"v_xor_b32 v{t2}, v{t2}, v{t1}")
    a(f"v_lshlrev_b32 v{t2}, 4, v{t2}")
    a(f"v_lshlrev_b32 v{t0}, 7, v{t0}")
    a(f"v_add_u32 v{v_xrd}, v{t0}, v{t2}")
    a(f"v_add_u32 v{v_xrd}, {LDS_H}, v{v_xrd}")
    a(f"v_lshlrev_b32 v{v_st}, 4, v{v_lane}")
    a(f"v_mov_b32 v{v_S}, 0")
    g.stamp()
    a(f"s_waitcnt vmcnt({vq.need('cs')})")
    acc = V_FR
    for r in range(4):
        a(f"v_lshlrev_b32 v{acc+2*r}, 16, v{V_CS+r}")
        a(f"v_and_b32 v{acc+2*r+1}, 0xffff0000, v{V_CS+r}")
    for q in range(1, 4):
        for r in range(4):
            a(f"v_lshlrev_b32 v{V_FR+8}, 16, v{V_CS+4*q+r}")
            a(f"v_and_b32 v{V_FR+9}, 0xffff0000, v{V_CS+4*q+r}")
            a(f"v_add_f32 v{acc+2*r}, v{acc+2*r}, v{V_FR+8}")
            a(f"v_add_f32 v{acc+2*r+1}, v{acc+2*r+1}, v{V_FR+9}")
    a(f"ds_write_b128 v{V_M+3}, {vr(acc,4)} offset:{LDS_SCR}")
    a(f"ds_write_b128 v{V_M+3}, {vr(acc+4,4)} offset:{LDS_SCR+16}")
    x_dma(2); g.dma_full(vq, "r2")
    x_dma(3); g.dma_full(vq, "r3")
    a("s_waitcnt lgkmcnt(0)")
    a("s_barrier")
    g.stamp()
    a(f"v_lshlrev_b32 v{V_M+4}, 2, v{v_tid}")
    a(f"v_min_u32 v{V_M+5}, {383*4}, v{V_M+4}")
    for q in range(9):
        a(f"ds_read_b32 v{V_CS+q}, v{V_M+5} offset:{LDS_SCR+q*1536}")
    a(f"v_cmp_gt_u32 vcc, 384, v{v_tid}")
    a(f"v_mov_b32 v{V_M+5}, {OOB}")
    a(f"s_mul_i32 s{s_tmp}, s{s_js}, 16")
    a(f"v_cndmask_b32 v{V_M+4}, v{V_M+5}, v{V_M+4}, vcc")
    a(f"s_add_u32 s{s_tmp}, s{s_tmp}, s{s_t}")
    a(f"s_mul_i32 s{s_tmp}, s{s_tmp}, 1536")
    a(f"s_add_u32 s{s_tmp2}, s{s_tmp}, {WS_CSP}")
    a("s_waitcnt lgkmcnt(0)")
    for q in range(1, 9):
        a(f"v_add_f32 v{V_CS}, v{V_CS}, v{V_CS+q}")
    a(f"buffer_store_dword v{V_CS}, v{V_M+4}, {sr(SW,4)}, s{s_tmp2} offen sc0 sc1")
    vq.issue("cst")
    x_dma(4); g.dma_full(vq, "r4")
    x_dma(5); g.dma_full(vq, "r5")
    if "mpf" in g.flags:
        a(f"s_mov_b32 s88, s{S_W2}")
        a(f"s_mov_b32 s89, s{S_W2+1}")
        a(f"s_mov_b32 s90, {SIZES['B_w2']}")
        a(f"s_mov_b32 s91, 0x00020000")
        a(f"s_mul_i32 s{s_tmp2}, s{s_t}, 24")
        a(f"s_add_u32 s{s_tmp2}, s{s_tmp2}, s{s_F0}")
        a(f"s_mul_i32 s{s_tmp2}, s{s_tmp2}, {W2_RS}")
        a(f"s_mul_i32 s{s_tmp3}, s{s_w}, {27*128}")
        a(f"s_add_u32 s52, s{s_tmp2}, s{s_tmp3}")
        a(f"v_lshlrev_b32 v{V_M+6}, 7, v{v_lane}")
        a(f"v_cmp_gt_u32 vcc, 27, v{v_lane}")
        a(f"v_mov_b32 v{V_M+7}, {OOB}")
        a("s_nop 0")
        a(f"v_cndmask_b32 v{V_M+6}, v{V_M+7}, v{V_M+6}, vcc")
        a(f"buffer_load_dword v{V_M+7}, v{V_M+6}, s[88:91], s52 offen")
        vq.issue("mpf")
    a(f"s_waitcnt vmcnt({vq.need('x0','r0')})")
    a("s_barrier")
    g.stamp()
    lq = Q()
    def y_read(c):
        slot = c % 6
        for s in range(4):
            reg = V_Y + (4*c + s) * 4
            tmp = V_M + 4 + (s % 2)
            off = slot * 16384
            a(f"v_xor_b32 v{tmp}, {s*32}, v{v_xrd}")
            if off >= 65536:
                a(f"v_add_u32 v{tmp}, {off}, v{tmp}")
                a(f"ds_read_b128 {vr(reg,4)}, v{tmp}")
            else:
                a(f"ds_read_b128 {vr(reg,4)}, v{tmp} offset:{off}")
            lq.issue(f"y{c}")
    def stats(c):
        lab = a.label("Lst"); lab2 = a.label("Lst2")
        a(f"s_cmp_eq_u32 s{s_jj}, 0")
        a(f"s_cbranch_scc0 {lab}")
        for r in range(16):
            a(f"v_dot2c_f32_bf16 v{v_S}, 0x3f803f80, v{V_Y+16*c+r}")
        a(f"s_branch {lab2}")
        a(f"{lab}:")
        for r in range(16):
            a(f"v_dot2c_f32_bf16 v{v_S}, v{V_Y+16*c+r}, v{V_Y+16*c+r}")
        a(f"{lab2}:")
    y_read(0)
    for s in range(4):
        g.frag_read(lq, s, s, 512, f"f{s}")
    for x in g.rd_salu() + g.rd_valu(): a(x)
    nofill = [[] for _ in range(36)]
    VB1 = V_HP + 7
    def flag_load():
        a(f"s_lshl_b32 s{s_tmp}, s{s_js}, 2")
        a(f"v_mov_b32 v{V_T+4}, s{s_tmp}")
        a(f"buffer_load_dword v{V_T+5}, v{V_T+4}, {sr(SG,4)}, 0 offen sc1")
        vq.issue("flag")
    def tab_loads():
        a(f"v_lshlrev_b32 v{V_M+3}, 2, v{v_tid}")
        a(f"v_cmp_gt_u32 vcc, 384, v{v_tid}")
        a(f"v_mov_b32 v{V_M+2}, {OOB}")
        a(f"s_mul_i32 s{s_tmp}, s{s_js}, {16*1536}")
        a(f"v_cndmask_b32 v{V_M+3}, v{V_M+2}, v{V_M+3}, vcc")
        a(f"s_add_u32 s{s_tmp}, s{s_tmp}, {WS_CSP}")
        for q in range(16):
            a(f"buffer_load_dword v{V_CS+q}, v{V_M+3}, {sr(SW,4)}, s{s_tmp} offen sc0 sc1")
            if q < 15: a(f"s_add_u32 s{s_tmp}, s{s_tmp}, 1536")
        a(f"v_lshrrev_b32 v{V_M+2}, 1, v{V_M+3}")
        a(f"s_lshl_b32 s{s_tmp}, s{s_F0}, 1")
        a(f"buffer_load_ushort v{VB1}, v{V_M+2}, {sr(SB,4)}, s{s_tmp} offen")
    def flag_check():
        a(f"v_readfirstlane_b32 s{s_tmp}, v{V_T+5}")
        a(f"s_mov_b32 s55, 0")
        a("s_nop 2")
        a(f"s_cmp_ge_u32 s{s_tmp}, 16")
        a("s_cbranch_scc0 L_notyet")
        a(f"s_mov_b32 s55, 1")
        tab_loads()
        a("L_notyet:")
    FL, FC = g.flagval("fl", 6), g.flagval("fc", 8)
    for e in range(9):
        misc = [[] for _ in range(36)]
        need = [f"r{e+1}"] + ([f"x{e+1}"] if e + 1 <= 8 else [])
        if e == 2:
            need = need + ["cst"]
            def sig():
                lab = a.label("Lsig")
                a(f"s_cmp_eq_u32 s{s_w}, 0")
                a(f"s_cbranch_scc0 {lab}")
                a(f"v_mov_b32 v{V_M}, 1")
                a(f"s_lshl_b32 s{s_tmp}, s{s_js}, 2")
                a(f"v_mov_b32 v{V_M+1}, s{s_tmp}")
                a("s_mov_b64 exec, 1")
                a(f"buffer_atomic_add v{V_M}, v{V_M+1}, {sr(SG,4)}, 0 offen sc1")
                a("s_mov_b64 exec, -1")
                a(f"{lab}:")
            misc[4*e].append(sig)
        if e == FL: misc[4*e+1].append(flag_load)
        if e == FC:
            need = need + ["flag"]
            misc[4*e+0].append(flag_check)
        if e + 1 <= 8: misc[4*e].append(lambda e=e: y_read(e + 1))
        if e < 3: misc[4*e+2].append(lambda e=e: x_dma(6 + e))
        misc[4*e+1].append(lambda e=e: stats(e))
        if e == 2:
            def sw():
                a(f"s_add_u32 s{s_Pn}, s{s_P}, 1")
                a(f"s_cmp_eq_u32 s{s_Pn}, 6")
                a(f"s_cselect_b32 s{s_Pn}, 0, s{s_Pn}")
                a(f"s_lshl_b32 s{s_tmp}, s{s_Pn}, 6")
                a(f"s_add_u32 s{s_tmp}, s{s_tmp}, s{s_F0}")
                a(f"s_lshl_b32 s{s_dso}, s{s_tmp}, 1")
            misc[4*e+2].append(sw)
        emit_epoch(g, e, 36, vq, lq, need, 512, V_Y, nofill, misc, [f"r{e+6}"], tagp="f", force_lgkm=lq.need(f"y{e}"))
    g.stamp()
    a("s_nop 3")
    a(f"v_mov_b32 v{V_M}, v{v_S}")
    a("s_nop 1")
    a(f"v_permlane32_swap_b32 v{v_S}, v{V_M}")
    a("s_nop 1")
    a(f"v_add_f32 v{v_S}, v{v_S}, v{V_M}")
    STAT = LDS_H + 1024
    a(f"s_lshl_b32 s{s_tmp}, s{s_i}, 8")
    a(f"s_lshl_b32 s{s_tmp2}, s{s_jj}, 7")
    a(f"s_add_u32 s{s_tmp}, s{s_tmp}, s{s_tmp2}")
    a(f"s_add_u32 s{s_tmp}, s{s_tmp}, {STAT}")
    a(f"v_lshrrev_b32 v{V_M+1}, 2, v{v_l16}")
    a(f"v_add_u32 v{V_M}, s{s_tmp}, v{V_M+1}")
    a(f"ds_write_b32 v{V_M}, v{v_S}")
    a(f"s_cmp_eq_u32 s55, 1")
    a("s_cbranch_scc1 L_haveflag")
    a(f"s_lshl_b32 s{s_tmp}, s{s_js}, 2")
    a(f"v_mov_b32 v{V_T+4}, s{s_tmp}")
    a("L_poll:")
    a(f"buffer_load_dword v{V_T+5}, v{V_T+4}, {sr(SG,4)}, 0 offen sc1")
    a("s_waitcnt vmcnt(0)")
    a(f"v_readfirstlane_b32 s{s_tmp}, v{V_T+5}")
    a("s_nop 3")
    a(f"s_cmp_ge_u32 s{s_tmp}, 16")
    a("s_cbranch_scc1 L_polled")
    a("s_sleep 1")
    a("s_branch L_poll")
    a("L_polled:")
    tab_loads()
    a("L_haveflag:")
    a("s_waitcnt lgkmcnt(0)")
    a("s_barrier")
    g.stamp()
    a(f"s_lshl_b32 s{s_tmp}, s{s_i}, 8")
    a(f"s_add_u32 s{s_tmp}, s{s_tmp}, {STAT}")
    a(f"v_add_u32 v{V_M}, s{s_tmp}, v{V_M+1}")
    a(f"ds_read_b32 v{V_T}, v{V_M}")
    a(f"ds_read_b32 v{V_T+1}, v{V_M} offset:128")
    a("s_waitcnt lgkmcnt(0)")
    mu, var, sd, tt = V_T, V_T+1, V_T+2, V_T+3
    a(f"v_mul_f32 v{mu}, {f2u(1.0/576):#x}, v{mu}")
    a(f"v_mul_f32 v{var}, {f2u(1.0/576):#x}, v{var}")
    a(f"v_fma_f32 v{var}, -v{mu}, v{mu}, v{var}")
    a(f"v_max_f32 v{var}, 0, v{var}")
    a(f"v_add_f32 v{var}, {f2u(1e-5):#x}, v{var}")
    a(f"v_sqrt_f32 v{sd}, v{var}")
    a("s_nop 0")
    a(f"v_rcp_f32 v{v_rstd}, v{sd}")
    a("s_nop 0")
    a(f"v_mul_f32 v{v_k1r}, {f2u(K1C):#x}, v{v_rstd}")
    a(f"v_mul_f32 v{v_k2r}, v{v_rstd}, v{v_rstd}")
    a(f"v_mul_f32 v{v_k2r}, v{v_k2r}, v{v_rstd}")
    a(f"v_mul_f32 v{v_k2r}, {f2u(K2C):#x}, v{v_k2r}")
    a("s_waitcnt vmcnt(0)")
    for q in range(1, 16):
        a(f"v_add_f32 v{V_CS}, v{V_CS}, v{V_CS+q}")
    a(f"v_cvt_pk_bf16_f32 v{V_HP}, v{V_CS}, v{V_CS}")
    a(f"v_lshlrev_b32 v{V_CS+1}, 16, v{V_HP}")
    a(f"v_sub_f32 v{V_CS+1}, v{V_CS}, v{V_CS+1}")
    a(f"v_cvt_pk_bf16_f32 v{V_CS+1}, v{V_CS+1}, v{V_CS+1}")
    a(f"v_and_b32 v{V_CS+1}, 0xffff, v{V_CS+1}")
    a(f"v_lshlrev_b32 v{V_CS+2}, 16, v{VB1}")
    a(f"v_or_b32 v{V_HP+1}, v{V_CS+1}, v{V_CS+2}")
    a(f"v_mov_b32 v{V_HP+2}, v{VB1}")
    a(f"v_mov_b32 v{V_HP+3}, 0")
    a(f"v_lshrrev_b32 v{V_M+3}, 5, v{v_tid}")
    a(f"v_lshlrev_b32 v{V_M+3}, 11, v{V_M+3}")
    a(f"v_add_u32 v{V_M+3}, v{V_M+3}, v{v_l16}")
    a(f"v_add_u32 v{V_M+3}, {LDS_H}, v{V_M+3}")
    a(f"v_cmp_gt_u32 vcc, 384, v{v_tid}")
    a("s_and_saveexec_b64 s[52:53], vcc")
    a("s_cbranch_execz L_notab")
    for i in range(4):
        if i*24576 < 65536:
            a(f"ds_write_b128 v{V_M+3}, {vr(V_HP,4)} offset:{i*24576}")
        else:
            a(f"v_add_u32 v{V_M+3}, {i*24576}, v{V_M+3}")
            a(f"ds_write_b128 v{V_M+3}, {vr(V_HP,4)}")
    a("L_notab:")
    a("s_mov_b64 exec, s[52:53]")
    nm, mh, ml, sh, sl = V_T+4, V_T+5, V_T+6, V_T+7, V_M+6
    a(f"v_sub_f32 v{nm}, 0, v{mu}")
    a(f"v_cvt_pk_bf16_f32 v{mh}, v{nm}, v{sd}")
    a(f"v_lshlrev_b32 v{ml}, 16, v{mh}")
    a(f"v_and_b32 v{sh}, 0xffff0000, v{mh}")
    a(f"v_sub_f32 v{ml}, v{nm}, v{ml}")
    a(f"v_sub_f32 v{sl}, v{sd}, v{sh}")
    a(f"v_cvt_pk_bf16_f32 v{ml}, v{ml}, v{sl}")
    a(f"v_mov_b32 v{V_AUGB+1}, v{mh}")
    a(f"v_and_b32 v{V_AUGB}, 0xffff, v{mh}")
    a(f"v_lshlrev_b32 v{tt}, 16, v{ml}")
    a(f"v_or_b32 v{V_AUGB}, v{V_AUGB}, v{tt}")
    a(f"v_lshrrev_b32 v{V_AUGB+2}, 16, v{ml}")
    a(f"v_mov_b32 v{V_AUGB+3}, 0")
    a(f"v_cmp_gt_u32 vcc, 32, v{v_lane}")
    a("s_nop 1")
    for r in range(3):
        a(f"v_cndmask_b32 v{V_AUGB+r}, 0, v{V_AUGB+r}, vcc")
    a("s_waitcnt lgkmcnt(0)")
    a("s_barrier")
    g.stamp()
    def tile_salu():
        return [f"s_lshl_b32 s{s_tmp}, s{s_P}, 1", f"s_add_u32 s{s_tmp}, s{s_tmp}, s{s_jj}", f"s_mul_i32 s{s_tmp2}, s{s_i}, 12",
                f"s_add_u32 s{s_tmp2}, s{s_tmp2}, s{s_tmp}", f"s_lshl_b32 s{s_tmp2}, s{s_tmp2}, 11", f"s_add_u32 s{s_hwn}, s{s_tmp2}, {LDS_H}"]
    for x in tile_salu(): a(x)
    a(f"v_add_u32 v{V_M}, s{s_hwn}, v{v_l16}")
    a(f"ds_read_b128 {vr(V_AUGA,4)}, v{V_M}")
    a(f"v_lshlrev_b32 v{v_abase}, 2, v{v_lane}")
    a(f"v_add_u32 v{v_hw}, s{s_hwn}, v{v_abase if DSW == 'pl' else v_st}")
    a("s_waitcnt lgkmcnt(0)")
    a(f"{MFMA} {vr(V_G,16)}, {vr(V_AUGA,4)}, {vr(V_AUGB,4)}, {vr(V_G,16)}")
    a(f"s_mov_b32 s{s_P}, s{s_Pn}")
    a(f"s_mov_b32 s{s_n}, 1")
    a(f"s_lshl_b32 s58, s{s_F0}, 1")
    a(f"s_mul_i32 s59, s{s_i}, 12")
    a(f"s_add_u32 s59, s59, s{s_jj}")
    a(f"s_lshl_b32 s59, s59, 11")
    a(f"s_add_u32 s59, s59, {LDS_H}")
    if "tpf" in g.flags:
        a(f"s_mov_b32 s88, s{S_W2}")
        a(f"s_mov_b32 s89, s{S_W2+1}")
        a(f"s_mov_b32 s90, {SIZES['B_w2']}")
        a(f"s_mov_b32 s91, 0x00020000")
        a(f"s_and_b32 s{s_tmp2}, s{s_t}, 3")
        a(f"s_mul_i32 s{s_tmp2}, s{s_tmp2}, 96")
        a(f"s_add_u32 s{s_tmp2}, s{s_tmp2}, s{s_F0}")
        a(f"s_mul_i32 s{s_tmp2}, s{s_tmp2}, {W2_RS}")
        a(f"s_mul_i32 s{s_tmp3}, s{s_w}, 13824")
        a(f"s_add_u32 s{s_tmp2}, s{s_tmp2}, s{s_tmp3}")
        a(f"v_lshlrev_b32 v{V_M+6}, 7, v{v_lane}")
        a(f"v_add_u32 v{V_M+6}, s{s_tmp2}, v{V_M+6}")
        a(f"v_cmp_gt_u32 vcc, 3, v{v_lane}")
        a(f"v_mov_b32 v{V_M+5}, {OOB}")
        a("s_nop 0")
        a(f"v_cndmask_b32 v{V_M+6}, v{V_M+5}, v{V_M+6}, vcc")
    BARA = [0, 2, 4, 6, 8]
    a(".p2align 3")
    a("L_A:")
    g.inloop = True
    vq = Q(); lq = Q()
    for e in range(-9, 0):
        vq.issue(f"r{e+6}")
        if "tpf" in g.flags and e >= -4: vq.issue("pf")
    for s in range(0, 4): lq.issue(f"g{s}"); lq.issue(f"g{s}")
    excl = [4*e - 1 for e in BARA if e > 0] + [35]
    slots = [sl for sl in range(1, 35) if sl not in excl]
    base = g.flagval("cap", 20)
    ok = False; extra = 0
    while not ok:
        dcap = g.flagval("dcap", base)
        caps = {sl: (dcap if sl % 4 == 0 else base) for sl in slots}
        nd = [sl for sl in slots if sl % 4 != 0 or dcap == base]
        for j in range(extra):
            caps[nd[(j * len(nd)) // max(extra, 1)]] = base + 4
        ok, fill, dsw = gelu_sched(slots, 36, caps, maxT=g.flagval("maxT", 2), GS=g.flagval("gs", 4), gapP=g.flagval("gp", 2), gapT=g.flagval("gt", 3))
        if not ok: extra += 1
        assert extra <= len(nd), 'gelu does not fit'
    if "nogelu" in g.flags:
        fill = [[] for _ in range(36)]; dsw = [[] for _ in range(36)]
    if "fake" in g.flags:
        nf = []
        for sl_ in fill:
            o = []
            for j, ins in enumerate(sl_):
                if ins.startswith(("v_exp", "v_rcp")): o.append(f"v_exp_f32 v{V_T+(j%4)}, v{V_M+1}")
                else: o.append(f"v_mul_f32 v{V_T+4+(j%4)}, v{V_M+1}, v{V_M+2}")
            nf.append(o)
        fill = nf
    if "notrans" in g.flags:
        fill = [[x for x in sl_ if not x.startswith(("v_exp", "v_rcp"))] for sl_ in fill]
    if "onlytrans" in g.flags:
        fill = [[x for x in sl_ if x.startswith(("v_exp", "v_rcp"))] for sl_ in fill]
    if "nodsw" in g.flags: dsw = [[] for _ in range(36)]
    g.info = f"gelu base {base} extra slots {extra}"
    if "dswrd" in g.flags:
        dsw = [[x.replace("ds_write_b128 v8, v[24:27]", "ds_read_b128 v[104:107], v8").replace("ds_write_b128 v8, v[28:31]", "ds_read_b128 v[108:111], v8") for x in sl_] for sl_ in dsw]
    if "dswconst" in g.flags:
        dsw = [[x.replace("v[24:27]", "v[104:107]").replace("v[28:31]", "v[108:111]") for x in sl_] for sl_ in dsw]
    if "dswlate" in g.flags:
        allw = [x for sl_ in dsw for x in sl_]
        dsw = [[] for _ in range(36)]
        dsw[34] = allw
    endw = []
    if "dswend" in g.flags or True:
        if "dswloop" not in g.flags:
            endw = [x for sl_ in dsw for x in sl_]
            dsw = [[] for _ in range(36)]
    misc = [list(dsw[s]) for s in range(36)]
    def sw():
        a(f"s_add_u32 s{s_Pn}, s{s_P}, 1")
        a(f"s_cmp_eq_u32 s{s_Pn}, 6")
        a(f"s_cselect_b32 s{s_Pn}, 0, s{s_Pn}")
        a(f"s_lshl_b32 s{s_tmp}, s{s_Pn}, 7")
        a(f"s_add_u32 s{s_dso}, s{s_tmp}, s58")
        a(f"s_cmp_eq_u32 s{s_n}, 5")
        a(f"s_cbranch_scc1 L_A_sw")
        a(f"L_A_swret:")
    misc[4*2+2].append(sw)
    misc[4*5+1] += [f"s_lshl_b32 s{s_tmp}, s{s_P}, 12", f"s_add_u32 s{s_hwn}, s59, s{s_tmp}"]
    def augrd():
        a(f"v_add_u32 v{V_M}, s{s_hwn}, v{v_l16}")
        a(f"ds_read_b128 {vr(V_AUGA,4)}, v{V_M}")
        lq.issue("aug")
    misc[4*8+0].append(augrd)
    V_PF = V_M + 6
    if "tpf" in g.flags:
        def pf():
            a(f"buffer_load_dword v{V_M+7}, v{V_PF}, s[88:91], 0 offen")
            vq.issue("pf")
            a(f"v_add_u32 v{V_PF}, 384, v{V_PF}")
        for e in range(9): misc[4*e+2].append(pf)
    misc[4*8+1] += [f"s_mov_b32 s{s_P}, s{s_Pn}", f"s_add_u32 s{s_n}, s{s_n}, 1", f"s_cmp_le_u32 s{s_n}, 5"]
    def endx(s):
        if s == 35:
            a(f"s_waitcnt lgkmcnt({min(15, lq.need('aug'))})")
            a(f"{MFMA} {vr(V_G,16)}, {vr(V_AUGA,4)}, {vr(V_AUGB,4)}, {vr(V_G,16)}")
            for x in endw:
                a(x); lq.issue("x")
            a(f"v_add_u32 v{v_hw}, s{s_hwn}, v{v_abase if DSW == 'pl' else v_st}")
    for e in range(9):
        if "profA" in g.flags: a(f"s_memtime s[{80+2*e}:{81+2*e}]")
        bar = e in BARA
        nb = (e + 1) in BARA or e == 8
        tags = [f"r{e+1}", f"r{e+2}"] if e < 8 else [f"r{e+1}"]
        emit_epoch(g, e, 36, vq, lq, tags, 512, V_Y, fill, misc, [f"r{e+6}"], end_extra=endx, bar=bar, nextbar=nb)
    if "profA" in g.flags: a(f"s_memtime s[98:99]")
    a(f"s_cbranch_scc1 L_A")
    a("s_branch L_A_done")
    a(f"L_A_sw:")
    a(f"s_mov_b32 s{SD}, s{S_W2}")
    a(f"s_mov_b32 s{SD+1}, s{S_W2+1}")
    a(f"s_mov_b32 s{SD+2}, {SIZES['B_w2']}")
    a(f"s_mov_b32 s{s_dstep}, {64*W2_RS}")
    a(f"s_mul_i32 s57, s{s_F0}, {W2_RS}")
    a(f"s_lshl_b32 s{s_tmp}, s{s_Pd0}, 7")
    a(f"s_add_u32 s{s_dso}, s57, s{s_tmp}")
    a(f"v_mov_b32 v{v_doff}, v{v_doffB}")
    a(f"s_branch L_A_swret")
    a("L_A_done:")
    g.stamp()
    a("s_nop 15")
    for ins in gelu_plain(): a(ins)
    a("s_waitcnt vmcnt(0) lgkmcnt(0)")
    a("s_barrier")
    a(f"s_mul_i32 s{s_tmp}, s{s_i}, {12*2048}")
    a(f"s_add_u32 s{s_tmp}, s{s_tmp}, {LDS_H}")
    if DSW == "pl":
        a(f"v_add_u32 v{V_M}, s{s_tmp}, v{v_abase}")
        for s in range(24):
            a(f"ds_read2st64_b32 {vr(V_Y+4*s,2)}, v{V_M} offset0:{4*s} offset1:{4*s+1}")
            a(f"ds_read2st64_b32 {vr(V_Y+4*s+2,2)}, v{V_M} offset0:{4*s+2} offset1:{4*s+3}")
            if s % 6 == 5: a("s_waitcnt lgkmcnt(4)")
    else:
        a(f"v_add_u32 v{V_M}, s{s_tmp}, v{v_st}")
        for s in range(24):
            a(f"ds_read_b128 {vr(V_Y+4*s,4)}, v{V_M} offset:{s*1024}")
    a(f"v_sub_u16 v{V_M+1}, v{v_rd}, v{v_abaseA}")
    a(f"v_add_u16 v{V_M+1}, v{V_M+1}, v{v_abaseB}")
    a(f"v_add_u16 v{v_rd}, 0xe000, v{V_M+1}")
    lq = Q()
    a("s_waitcnt lgkmcnt(0)")
    for s in range(4):
        g.frag_read(lq, s, s, 1024, f"g{s}")
    a(f"v_mov_b32 v{v_rd}, v{V_M+1}")
    g.stamp()
    a(f"s_lshl_b32 s{s_tmp}, s{s_t}, 2")
    a(f"s_add_u32 s{s_tmp}, s{s_tmp}, s{s_i}")
    a(f"s_mul_i32 s{s_tmp}, s{s_tmp}, {18*16}")
    a(f"s_add_u32 s{s_tmp}, s{s_tmp}, s{s_js}")
    a(f"s_lshl_b32 s{s_posbase}, s{s_tmp}, 11")
    a(f"s_add_u32 s{s_posbase}, s{s_posbase}, {WS_P}")
    a(f"s_lshl_b32 s{s_tmp}, s{s_jj}, 15")
    a(f"s_add_u32 s{s_posbase}, s{s_posbase}, s{s_tmp}")
    a(f"s_mov_b32 s{s_pos}, {OOB}")
    a(f"s_mov_b32 s{s_P}, s{s_Pd0}")
    a(f"s_add_u32 s{s_tmp}, s{s_P}, 1")
    a(f"s_cmp_eq_u32 s{s_tmp}, 9")
    a(f"s_cselect_b32 s{s_tmp}, 0, s{s_tmp}")
    a(f"s_lshl_b32 s{s_tmp}, s{s_tmp}, 7")
    a(f"s_add_u32 s{s_dso}, s57, s{s_tmp}")
    a(f"s_mov_b32 s{s_n}, 0")
    def epi_list():
        L = []
        for r in range(16): L.append(f"v_mul_f32 v{V_G+r}, v{V_G+r}, v{v_rstd}")
        for r in range(8): L.append(f"v_cvt_pk_bf16_f32 v{V_HP+r}, v{V_G+2*r}, v{V_G+2*r+1}")
        return L
    sf = " nt" if "stnt" in g.flags else (" sc0 sc1" if "stsc" in g.flags else (" sc1" if "stsc1" in g.flags else (" sc0 sc1 nt" if "stall" in g.flags else "")))
    st0 = f"buffer_store_dwordx4 {vr(V_HP,4)}, v{v_st}, {sr(SW,4)}, s{s_pos} offen{sf}"
    st1 = f"buffer_store_dwordx4 {vr(V_HP+4,4)}, v{v_st}, {sr(SW,4)}, s{s_pos} offen offset:1024{sf}"
    a(".p2align 3")
    a("L_B:")
    BARB = [0, 2, 4]
    fillB = [[] for _ in range(24)]
    miscB = [[] for _ in range(24)]
    el = epi_list()
    sl = [2, 3, 4, 5, 6, 8] if "oldB" in g.flags else [2, 3, 5, 6, 9, 10]
    for idx, ins in enumerate(el): fillB[sl[idx * len(sl) // len(el)]].append(ins)
    if "noepi" in g.flags: fillB = [[] for _ in range(24)]
    p0, p1 = g.flagval("sta", 9 if "oldB" in g.flags else 13), g.flagval("stb", 13 if "oldB" in g.flags else 14)
    if "nostore" not in g.flags:
        miscB[p0].append(st0); miscB[p1].append(st1)
    miscB[17] += [f"s_add_u32 s{s_Pn}, s{s_P}, 1", f"s_cmp_eq_u32 s{s_Pn}, 9", f"s_cselect_b32 s{s_Pn}, 0, s{s_Pn}"]
    miscB[18] += [f"s_lshl_b32 s{s_tmp}, s{s_P}, 16", f"s_add_u32 s{s_pos}, s{s_posbase}, s{s_tmp}"]
    miscB[21] += [f"s_add_u32 s{s_tmp}, s{s_Pn}, 1", f"s_cmp_eq_u32 s{s_tmp}, 9", f"s_cselect_b32 s{s_tmp}, 0, s{s_tmp}", f"s_lshl_b32 s{s_tmp}, s{s_tmp}, 7"]
    miscB[22] += [f"s_add_u32 s{s_dso}, s57, s{s_tmp}", f"s_mov_b32 s{s_P}, s{s_Pn}", f"s_add_u32 s{s_n}, s{s_n}, 1", f"s_cmp_lt_u32 s{s_n}, 9"]
    vq = Q(); lq = Q()
    for e in range(6):
        for k in range(4):
            s = 4*e + k
            if k == 0: vq.issue(f"r{e}")
            for ins in miscB[s]:
                if isinstance(ins, str) and ins.startswith("buffer_store"): vq.issue("st")
    for s in range(4): lq.issue(f"g{s}"); lq.issue(f"g{s}")
    for e in range(6):
        if "prof" in g.flags: a(f"s_memtime s[{80+2*e}:{81+2*e}]")
        bar = e in BARB
        nb = (e + 1) in BARB or e == 5
        emit_epoch(g, e, 24, vq, lq, [f"r{e+1}", f"r{e+2}"], 1024, V_Y, fillB, miscB, [f"r{e+6}"], bar=bar, nextbar=nb)
    if "prof" in g.flags: a(f"s_memtime s[92:93]")
    a(f"s_cbranch_scc1 L_B")
    g.stamp()
    a("s_nop 15")
    for ins in epi_list(): a(ins)
    a(st0); a(st1)
    a("s_waitcnt vmcnt(0) lgkmcnt(0)")
    g.stamp()
    if g.stamps:
        a("s_waitcnt lgkmcnt(0)")
        a(f"s_lshl_b32 s{s_tmp}, s2, 3")
        a(f"s_add_u32 s{s_tmp}, s{s_tmp}, s{s_w}")
        a(f"s_lshl_b32 s{s_tmp}, s{s_tmp}, 6")
        a(f"s_add_u32 s{s_tmp}, s{s_tmp}, {WS_STAMP}")
        a("s_mov_b64 exec, 1")
        a(f"v_mov_b32 v{V_M+1}, 0")
        lst = [S_ST+2*i for i in range(g.nst)]
        if "prof" in g.flags: lst = [80, 82, 84, 86, 88, 90, 92]
        if "profA" in g.flags: lst = [80, 82, 84, 86, 88, 90, 92, 94, 96, 98]
        if g.flagval("fine", -1) >= 0: lst = [80, 82, 84, 86, 88, 90, 92, 94]
        for i in range(len(lst)):
            a(f"v_mov_b32 v{V_M}, s{lst[i]}")
            a(f"buffer_store_dword v{V_M}, v{V_M+1}, {sr(SW,4)}, s{s_tmp} offen offset:{4*i}")
        a("s_waitcnt vmcnt(0)")
```

```python
import sys
from asmlib import *
from mlp3 import *
import k2_red
from attn2 import gen_attn
from fin import gen_final, gen_nonce_init
from k2_red import gen_k2

def gen_k1(stamps=False, flags=()):
    g = Gen(stamps, flags)
    a = g.a
    a("s_cmp_ge_u32 s2, 256")
    a("s_cbranch_scc1 L_end1")
    a(f"s_load_dwordx2 s[{SW}:{SW+1}], s[0:1], {KA['ws']}")
    a(f"s_load_dwordx2 s[{SG}:{SG+1}], s[0:1], {KA['dbg']}")
    g.stamp()
    if "rt" in flags or "rtf" in flags:
        a("s_memrealtime s[96:97]")
    a(f"s_and_b32 s{s_tmp}, s2, 7")
    a(f"s_lshr_b32 s{s_tmp2}, s2, 3")
    a(f"s_cmp_ge_u32 s{s_tmp2}, 24")
    a("s_cbranch_scc1 L_attn")
    a(f"s_load_dwordx2 s[{SX}:{SX+1}], s[0:1], {KA['A_x']}")
    a(f"s_load_dwordx2 s[{SD}:{SD+1}], s[0:1], {KA['B_w1']}")
    a(f"s_load_dwordx2 s[{SB}:{SB+1}], s[0:1], {KA['B_b1']}")
    a(f"s_load_dwordx2 s[{S_W2}:{S_W2+1}], s[0:1], {KA['B_w2']}")
    if "map38" in flags:
        a(f"s_lshr_b32 s{s_js}, s{s_tmp}, 1")
        a(f"s_mul_i32 s{s_js}, s{s_js}, 3")
        a(f"s_lshr_b32 s{s_tmp3}, s{s_tmp2}, 3")
        a(f"s_add_u32 s{s_js}, s{s_js}, s{s_tmp3}")
        a(f"s_and_b32 s{s_t}, s{s_tmp}, 1")
        a(f"s_lshl_b32 s{s_t}, s{s_t}, 3")
        a(f"s_and_b32 s{s_tmp3}, s{s_tmp2}, 7")
        a(f"s_add_u32 s{s_t}, s{s_t}, s{s_tmp3}")
    else:
        a(f"s_mul_i32 s{s_tmp3}, s{s_tmp2}, 43")
        a(f"s_lshr_b32 s{s_tmp3}, s{s_tmp3}, 8")
        a(f"s_mul_i32 s{s_js}, s{s_tmp3}, 6")
        a(f"s_sub_u32 s{s_js}, s{s_tmp2}, s{s_js}")
        a(f"s_and_b32 s{s_t}, s{s_tmp}, 1")
        a(f"s_mul_i32 s{s_t}, s{s_t}, 6")
        a(f"s_add_u32 s{s_js}, s{s_js}, s{s_t}")
        a(f"s_lshr_b32 s{s_t}, s{s_tmp}, 1")
        a(f"s_lshl_b32 s{s_t}, s{s_t}, 2")
        a(f"s_add_u32 s{s_t}, s{s_t}, s{s_tmp3}")
    if "norot" in flags:
        a(f"s_mov_b32 s{s_P}, 0"); a(f"s_mov_b32 s{s_Pd0}, 0")
    else:
        a(f"s_mul_i32 s{s_tmp3}, s{s_t}, 43")
        a(f"s_lshr_b32 s{s_tmp3}, s{s_tmp3}, 8")
        a(f"s_mul_i32 s{s_tmp3}, s{s_tmp3}, 6")
        a(f"s_sub_u32 s{s_P}, s{s_t}, s{s_tmp3}")
        a(f"s_cmp_ge_u32 s{s_t}, 9")
        a(f"s_cselect_b32 s{s_tmp3}, 9, 0")
        a(f"s_sub_u32 s{s_Pd0}, s{s_t}, s{s_tmp3}")
    a("s_waitcnt lgkmcnt(0)")
    for (r, n) in ((SX, "A_x"), (SD, "B_w1"), (SW, "ws"), (SG, "dbg"), (SB, "B_b1")):
        finish_srd(a, r, n)
    if "fuse" in flags: gen_nonce_init(g)
    gen_mlp(g)
    if "fuse" in flags:
        a(f"s_mov_b32 s62, s{s_js}")
        a("s_branch L_final")
    else:
        a("s_branch L_rt" if "rt" in flags else "s_branch L_end1")
    a("L_attn:")
    if "noattn" not in flags:
        a(f"s_load_dwordx2 s[{SX}:{SX+1}], s[0:1], {KA['A_x']}")
        a(f"s_load_dwordx2 s[{SD}:{SD+1}], s[0:1], {KA['A_wqkv']}")
        a(f"s_load_dwordx2 s[{S_W2}:{S_W2+1}], s[0:1], {KA['A_wo']}")
        a(f"s_load_dwordx2 s[58:59], s[0:1], {KA['gate_w']}")
        a(f"s_sub_u32 s{s_tmp2}, s{s_tmp2}, 24")
        if "map38" in flags:
            a(f"s_lshr_b32 s{s_js}, s{s_tmp}, 1")
            a(f"s_and_b32 s{s_t}, s{s_tmp}, 1")
            a(f"s_lshl_b32 s{s_t}, s{s_t}, 3")
            a(f"s_add_u32 s{s_t}, s{s_t}, s{s_tmp2}")
        else:
            a(f"s_and_b32 s{s_js}, s{s_tmp}, 1")
            a(f"s_lshl_b32 s{s_js}, s{s_js}, 1")
            a(f"s_and_b32 s{s_tmp3}, s{s_tmp2}, 1")
            a(f"s_add_u32 s{s_js}, s{s_js}, s{s_tmp3}")
            a(f"s_lshr_b32 s{s_t}, s{s_tmp}, 1")
            a(f"s_lshl_b32 s{s_t}, s{s_t}, 2")
            a(f"s_lshr_b32 s{s_tmp3}, s{s_tmp2}, 1")
            a(f"s_add_u32 s{s_t}, s{s_t}, s{s_tmp3}")
        a(f"s_cmp_ge_u32 s{s_t}, 9")
        a(f"s_cselect_b32 s{s_tmp3}, 9, 0")
        a(f"s_sub_u32 s{s_Pd0}, s{s_t}, s{s_tmp3}")
        a("s_waitcnt lgkmcnt(0)")
        for (r, n) in ((SX, "A_x"), (SD, "A_wqkv"), (SW, "ws"), (SG, "dbg")):
            finish_srd(a, r, n)
        g.inloop = False
        gen_attn(g)
        if "fuse" in flags:
            a(f"s_add_u32 s62, s{s_js}, 12")
            a("L_final:")
            gen_final(g, 62)
    if "rt" in flags:
        a("L_rt:")
        a("s_memrealtime s[100:101]")
        a("s_waitcnt lgkmcnt(0)")
        a("s_lshl_b32 s98, s2, 3")
        a("s_add_u32 s98, s98, 0x3100000")
        a("s_mov_b64 exec, 1")
        a("v_mov_b32 v1, 0")
        a("v_mov_b32 v2, s96")
        a("v_mov_b32 v3, s100")
        a(f"s_cmp_eq_u32 s{s_w}, 0")
        a("s_cbranch_scc0 L_end1")
        a(f"buffer_store_dwordx2 v[2:3], v1, {sr(SW,4)}, s98 offen")
        a("s_waitcnt vmcnt(0)")
    a("L_end1:")
    print(g.info, file=sys.stderr)
    return kernel_wrap("k1_kernel", a.text(), vgpr=256, sgpr=102, accum=256)

if __name__ == "__main__":
    out = sys.argv[1]
    stamps = "stamps" in sys.argv
    mode = "b" if "bonly" in sys.argv else "full"
    k1 = gen_k1(stamps, flags=sys.argv[2:])
    k2 = gen_k2(mode, rt=('rt' in sys.argv), xmap=('noxmap' not in sys.argv))
    if "fuse" in sys.argv:
        launches = [("k1_kernel", (256,1,1), (512,1,1), LDS_TOTAL)]
        open(out, "w").write(file_wrap(launches, [k1]))
    else:
        launches = [("k1_kernel", (256,1,1), (512,1,1), LDS_TOTAL), ("k2_kernel", (576,1,1), (256,1,1), 0)]
        open(out, "w").write(file_wrap(launches, [k1, k2]))
```

```python
import sys
from asmlib import *
from mlp3 import *
import k2_red
from attn2 import gen_attn
from fin import gen_final, gen_nonce_init
from k2_red import gen_k2

def gen_k1(stamps=False, flags=()):
    g = Gen(stamps, flags)
    a = g.a
    a("s_cmp_ge_u32 s2, 256")
    a("s_cbranch_scc1 L_end1")
    a(f"s_load_dwordx2 s[{SW}:{SW+1}], s[0:1], {KA['ws']}")
    a(f"s_load_dwordx2 s[{SG}:{SG+1}], s[0:1], {KA['dbg']}")
    g.stamp()
    if "rt" in flags or "rtf" in flags:
        a("s_memrealtime s[96:97]")
    a(f"s_and_b32 s{s_tmp}, s2, 7")
    a(f"s_lshr_b32 s{s_tmp2}, s2, 3")
    a(f"s_cmp_ge_u32 s{s_tmp2}, 24")
    a("s_cbranch_scc1 L_attn")
    a(f"s_load_dwordx2 s[{SX}:{SX+1}], s[0:1], {KA['A_x']}")
    a(f"s_load_dwordx2 s[{SD}:{SD+1}], s[0:1], {KA['B_w1']}")
    a(f"s_load_dwordx2 s[{SB}:{SB+1}], s[0:1], {KA['B_b1']}")
    a(f"s_load_dwordx2 s[{S_W2}:{S_W2+1}], s[0:1], {KA['B_w2']}")
    if "map38" in flags:
        a(f"s_lshr_b32 s{s_js}, s{s_tmp}, 1")
        a(f"s_mul_i32 s{s_js}, s{s_js}, 3")
        a(f"s_lshr_b32 s{s_tmp3}, s{s_tmp2}, 3")
        a(f"s_add_u32 s{s_js}, s{s_js}, s{s_tmp3}")
        a(f"s_and_b32 s{s_t}, s{s_tmp}, 1")
        a(f"s_lshl_b32 s{s_t}, s{s_t}, 3")
        a(f"s_and_b32 s{s_tmp3}, s{s_tmp2}, 7")
        a(f"s_add_u32 s{s_t}, s{s_t}, s{s_tmp3}")
    else:
        a(f"s_mul_i32 s{s_tmp3}, s{s_tmp2}, 43")
        a(f"s_lshr_b32 s{s_tmp3}, s{s_tmp3}, 8")
        a(f"s_mul_i32 s{s_js}, s{s_tmp3}, 6")
        a(f"s_sub_u32 s{s_js}, s{s_tmp2}, s{s_js}")
        a(f"s_and_b32 s{s_t}, s{s_tmp}, 1")
        a(f"s_mul_i32 s{s_t}, s{s_t}, 6")
        a(f"s_add_u32 s{s_js}, s{s_js}, s{s_t}")
        a(f"s_lshr_b32 s{s_t}, s{s_tmp}, 1")
        a(f"s_lshl_b32 s{s_t}, s{s_t}, 2")
        a(f"s_add_u32 s{s_t}, s{s_t}, s{s_tmp3}")
    if "norot" in flags:
        a(f"s_mov_b32 s{s_P}, 0"); a(f"s_mov_b32 s{s_Pd0}, 0")
    else:
        a(f"s_mul_i32 s{s_tmp3}, s{s_t}, 43")
        a(f"s_lshr_b32 s{s_tmp3}, s{s_tmp3}, 8")
        a(f"s_mul_i32 s{s_tmp3}, s{s_tmp3}, 6")
        a(f"s_sub_u32 s{s_P}, s{s_t}, s{s_tmp3}")
        a(f"s_cmp_ge_u32 s{s_t}, 9")
        a(f"s_cselect_b32 s{s_tmp3}, 9, 0")
        a(f"s_sub_u32 s{s_Pd0}, s{s_t}, s{s_tmp3}")
        if "norotA" in flags: a(f"s_mov_b32 s{s_P}, 0")
    a("s_waitcnt lgkmcnt(0)")
    for (r, n) in ((SX, "A_x"), (SD, "B_w1"), (SW, "ws"), (SG, "dbg"), (SB, "B_b1")):
        finish_srd(a, r, n)
    if "fuse" in flags: gen_nonce_init(g)
    gen_mlp(g)
    if "fuse" in flags:
        a(f"s_mov_b32 s62, s{s_js}")
        a("s_branch L_final")
    else:
        a("s_branch L_rt" if "rt" in flags else "s_branch L_end1")
    a("L_attn:")
    if "noattn" not in flags:
        a(f"s_load_dwordx2 s[{SX}:{SX+1}], s[0:1], {KA['A_x']}")
        a(f"s_load_dwordx2 s[{SD}:{SD+1}], s[0:1], {KA['A_wqkv']}")
        a(f"s_load_dwordx2 s[{S_W2}:{S_W2+1}], s[0:1], {KA['A_wo']}")
        a(f"s_load_dwordx2 s[58:59], s[0:1], {KA['gate_w']}")
        a(f"s_sub_u32 s{s_tmp2}, s{s_tmp2}, 24")
        if "map38" in flags:
            a(f"s_lshr_b32 s{s_js}, s{s_tmp}, 1")
            a(f"s_and_b32 s{s_t}, s{s_tmp}, 1")
            a(f"s_lshl_b32 s{s_t}, s{s_t}, 3")
            a(f"s_add_u32 s{s_t}, s{s_t}, s{s_tmp2}")
        else:
            a(f"s_and_b32 s{s_js}, s{s_tmp}, 1")
            a(f"s_lshl_b32 s{s_js}, s{s_js}, 1")
            a(f"s_and_b32 s{s_tmp3}, s{s_tmp2}, 1")
            a(f"s_add_u32 s{s_js}, s{s_js}, s{s_tmp3}")
            a(f"s_lshr_b32 s{s_t}, s{s_tmp}, 1")
            a(f"s_lshl_b32 s{s_t}, s{s_t}, 2")
            a(f"s_lshr_b32 s{s_tmp3}, s{s_tmp2}, 1")
            a(f"s_add_u32 s{s_t}, s{s_t}, s{s_tmp3}")
        a(f"s_cmp_ge_u32 s{s_t}, 9")
        a(f"s_cselect_b32 s{s_tmp3}, 9, 0")
        a(f"s_sub_u32 s{s_Pd0}, s{s_t}, s{s_tmp3}")
        a("s_waitcnt lgkmcnt(0)")
        for (r, n) in ((SX, "A_x"), (SD, "A_wqkv"), (SW, "ws"), (SG, "dbg")):
            finish_srd(a, r, n)
        g.inloop = False
        gen_attn(g)
        if "fuse" in flags:
            a(f"s_add_u32 s62, s{s_js}, 12")
            a("L_final:")
            gen_final(g, 62)
    if "rt" in flags:
        a("L_rt:")
        a("s_memrealtime s[100:101]")
        a("s_waitcnt lgkmcnt(0)")
        a("s_lshl_b32 s98, s2, 3")
        a("s_add_u32 s98, s98, 0x3100000")
        a("s_mov_b64 exec, 1")
        a("v_mov_b32 v1, 0")
        a("v_mov_b32 v2, s96")
        a("v_mov_b32 v3, s100")
        a(f"s_cmp_eq_u32 s{s_w}, 0")
        a("s_cbranch_scc0 L_end1")
        a(f"buffer_store_dwordx2 v[2:3], v1, {sr(SW,4)}, s98 offen")
        a("s_waitcnt vmcnt(0)")
    a("L_end1:")
    print(g.info, file=sys.stderr)
    return kernel_wrap("k1_kernel", a.text(), vgpr=256, sgpr=102, accum=256)

if __name__ == "__main__":
    out = sys.argv[1]
    stamps = "stamps" in sys.argv
    mode = "b" if "bonly" in sys.argv else "full"
    k1 = gen_k1(stamps, flags=sys.argv[2:])
    k2 = gen_k2(mode, rt=('rt' in sys.argv), xmap=('noxmap' not in sys.argv))
    if "fuse" in sys.argv:
        KN = "gated_mix__linear_attn_block__mixer_channel_mlp__prompt_kernel"
        k1 = k1.replace("k1_kernel", KN)
        txt = f"; @launch grid=(256,1,1) block=(512,1,1) lds={LDS_TOTAL}\n" + '.amdgcn_target "amdgcn-amd-amdhsa--gfx950"\n' + k1
        open(out, "w").write(txt)
    else:
        launches = [("k1_kernel", (256,1,1), (512,1,1), LDS_TOTAL), ("k2_kernel", (576,1,1), (256,1,1), 0)]
        open(out, "w").write(file_wrap(launches, [k1, k2]))
```

```python
from asmlib import *
from mlp3 import *

WQ_RS = 3456
TS = 272
LDS_T = LDS_H
LDS_KVA = LDS_T + 158 * TS
LDS_O2 = LDS_KVA + 16384
LDS_GW = LDS_T + 320 * TS
O2S = 304
assert LDS_O2 + 128 * O2S <= LDS_TOTAL and LDS_GW + 1152 <= LDS_TOTAL
WS_KV = WS_G + 2048 * 4
KVH = 18 * 80
DBG_Z = 16 * 4
DBG_KV = 20 * 4
s_g4 = s_js
s_mask = 56
v_row, v_cp, v_zf = 96, 97, 98
WPAIR = 144 * 128

def phi_chain(e, T, U):
    G = V_G + e
    return [(f"v_min_f32 v{T}, 0, v{G}", 4), (f"v_mul_f32 v{T}, {f2u(LOG2E):#x}, v{T}", 4), (f"v_exp_f32 v{T}, v{T}", 8),
            (f"v_max_f32 v{U}, 0, v{G}", 4), (f"v_add_f32 v{U}, {f2u(1e-6):#x}, v{U}", 4), (f"v_add_f32 v{T}, v{T}, v{U}", 4),
            (f"v_cndmask_b32 v{T}, v{G}, v{T}, s[{s_mask}:{s_mask+1}]", 4)]

def phi_groups():
    L = []
    for q in range(4):
        T = [V_T + e for e in range(4)]; U = [V_T + 4 + e for e in range(4)]
        ch = [phi_chain(4*q+e, T[e], U[e]) for e in range(4)]
        order = [0, 1, 3, 2, 4, 5, 6]
        for o in order:
            for e in range(4): L.append(ch[e][o][0])
        L.append(f"v_cvt_pk_bf16_f32 v{V_HP+2*q}, v{T[0]}, v{T[1]}")
        L.append(f"v_cvt_pk_bf16_f32 v{V_HP+2*q+1}, v{T[2]}, v{T[3]}")
        L.append(f"ds_write_b64 v{V_M+7}, {vr(V_HP+2*q,2)} offset:{16*q}")
    return L

def gen_attn(g):
    a = g.a
    stl = [60]
    def stp(reg=None):
        if g.stamps:
            r = reg if reg is not None else 64 + 2 * (len(stl) - 2)
            stl.append(r)
            a(f"s_memtime s[{r}:{r+1}]")
    a.c("attention role v2")
    a(f"v_and_b32 v{v_lane}, 63, v{v_tid}")
    a(f"v_lshrrev_b32 v{V_M}, 6, v{v_tid}")
    a("s_nop 0")
    a(f"v_readfirstlane_b32 s{s_w}, v{V_M}")
    t0, t1, t2, xo = V_T, V_T+1, V_T+2, 99
    a(f"v_lshrrev_b32 v{t0}, 3, v{v_lane}")
    a(f"v_and_b32 v{t2}, 7, v{v_lane}")
    a(f"s_lshl_b32 s{s_tmp}, s{s_w}, 3")
    a(f"v_add_u32 v{t0}, s{s_tmp}, v{t0}")
    a(f"v_lshrrev_b32 v{t1}, 1, v{t0}")
    a(f"v_and_b32 v{t1}, 7, v{t1}")
    a(f"v_xor_b32 v{t1}, v{t1}, v{t2}")
    a(f"v_lshlrev_b32 v{t1}, 4, v{t1}")
    a(f"v_mul_u32_u24 v{xo}, {X_RS}, v{t0}")
    a(f"v_add_u32 v{xo}, v{xo}, v{t1}")
    a(f"s_mul_i32 s{s_xso}, s{s_t}, {128*X_RS}")
    a(f"s_lshl_b32 s{s_xw}, s{s_w}, 10")
    vq = Q()
    def x_dma(c):
        slot = c % 6
        a(f"s_add_u32 m0, s{s_xw}, {LDS_H+slot*16384}")
        a(f"s_add_u32 s{s_tmp}, s{s_xso}, {c*128}")
        a(f"buffer_load_dwordx4 v{xo}, {sr(SX,4)}, s{s_tmp} offen lds")
        vq.issue(f"x{c}")
        a(f"s_add_u32 m0, s{s_xw}, {LDS_H+slot*16384+8192}")
        a(f"s_add_u32 s{s_tmp}, s{s_xso}, {c*128+64*X_RS}")
        a(f"buffer_load_dwordx4 v{xo}, {sr(SX,4)}, s{s_tmp} offen lds")
        vq.issue(f"x{c}")
    x_dma(0)
    a(f"v_lshrrev_b32 v{t1}, 4, v{v_lane}")
    a(f"v_and_b32 v{t1}, 1, v{t1}")
    a(f"v_lshlrev_b32 v{t1}, 2, v{t1}")
    a(f"v_xor_b32 v{v_cp}, v{t1}, v{t2}")
    a(f"v_mul_u32_u24 v{v_row}, {WQ_RS}, v{t0}")
    a(f"v_lshlrev_b32 v{t1}, 4, v{v_cp}")
    a(f"v_mul_u32_u24 v{v_doffB}, {W2_RS}, v{t0}")
    a(f"v_add_u32 v{v_doffB}, v{v_doffB}, v{t1}")
    a(f"s_mul_i32 s55, s{s_g4}, {128 if 'alignq' in g.flags else 144}")
    def set_doff_list(sP):
        m = V_M
        return [f"s_lshl_b32 s{s_tmp}, s{sP}, 6",
                f"v_lshlrev_b32 v{m}, 3, v{v_cp}",
                f"v_add_u32 v{m}, s{s_tmp}, v{m}",
                f"v_mov_b32 v{m+1}, 576",
                f"v_mov_b32 v{m+2}, 1008",
                f"v_cmp_le_u32 vcc, 144, v{m}",
                f"v_mov_b32 v{m+3}, -288",
                "s_nop 0",
                f"v_cndmask_b32 v{m+1}, v{m+1}, v{m+2}, vcc",
                f"v_cmp_le_u32 vcc, 288, v{m}",
                f"v_add_u32 v{m}, s55, v{m}",
                "s_nop 0",
                f"v_cndmask_b32 v{m+1}, v{m+1}, v{m+3}, vcc",
                f"v_add_u32 v{m}, v{m}, v{m+1}",
                f"v_lshlrev_b32 v{m}, 1, v{m}",
                f"v_add_u32 v{v_doff}, v{v_row}, v{m}"]
    a(f"s_mul_i32 s54, s{s_t}, 52")
    a(f"s_lshr_b32 s54, s54, 8")
    a(f"s_mul_i32 s54, s54, 5")
    a(f"s_sub_u32 s54, s{s_t}, s54")
    if "norot" in g.flags or "norotT" in g.flags: a("s_mov_b32 s54, 0")
    a(f"s_mov_b32 s{s_P}, s54")
    a(f"s_mov_b32 s{s_n}, 0")
    for x in set_doff_list(s_P): a(x)
    a(f"s_mov_b32 s{s_wo}, s{s_xw}")
    a(f"s_mov_b32 s{s_dstep}, {64*WQ_RS}")
    a(f"s_mov_b32 s{s_dso}, 0")
    g.dma_full(vq, "r0")
    if "ob" in g.flags: a("s_barrier")
    x_dma(1); g.dma_full(vq, "r1")
    if "ob" in g.flags: a("s_barrier")
    if "oldpf" in g.flags:
        a(f"s_and_b32 s{s_tmp2}, s{s_t}, 3")
        a(f"s_mul_i32 s{s_tmp2}, s{s_tmp2}, {144*WQ_RS}")
        a(f"s_mul_i32 s{s_tmp3}, s{s_g4}, 288")
        a(f"s_and_b32 s{s_tmp3}, s{s_tmp3}, 0xffffff80")
        a(f"s_add_u32 s52, s{s_tmp2}, s{s_tmp3}")
        touch(g, vq, SD, 4, 1728, 52, ('qkv',), V_T+4, V_M+7)
    a(f"s_cmp_eq_u32 s{s_t}, 0")
    a("s_cbranch_scc0 L_nozero")
    for r in range(4): a(f"v_mov_b32 v{V_HP+r}, 0")
    a(f"v_lshlrev_b32 v{V_M}, 4, v{v_tid}")
    a(f"s_mul_i32 s{s_tmp}, s{s_g4}, {8*KVH}")
    a(f"s_add_u32 s{s_tmp}, s{s_tmp}, {WS_KV}")
    a(f"buffer_store_dwordx4 {vr(V_HP,4)}, v{V_M}, {sr(SW,4)}, s{s_tmp} offen sc0 sc1")
    a(f"v_add_u32 v{V_M}, 8192, v{V_M}")
    a(f"v_cmp_gt_u32 vcc, 11520, v{V_M}")
    a(f"v_mov_b32 v{V_M+1}, {OOB}")
    a("s_nop 0")
    a(f"v_cndmask_b32 v{V_M}, v{V_M+1}, v{V_M}, vcc")
    a(f"buffer_store_dwordx4 {vr(V_HP,4)}, v{V_M}, {sr(SW,4)}, s{s_tmp} offen sc0 sc1")
    a("s_waitcnt vmcnt(0)")
    a("s_barrier")
    a(f"s_cmp_eq_u32 s{s_w}, 0")
    a("s_cbranch_scc0 L_nozero")
    a(f"v_mov_b32 v{V_M}, 1")
    a(f"s_lshl_b32 s{s_tmp}, s{s_g4}, 2")
    a(f"s_add_u32 s{s_tmp}, s{s_tmp}, {DBG_Z}")
    a(f"v_mov_b32 v{V_M+1}, s{s_tmp}")
    a("s_mov_b64 exec, 1")
    a(f"buffer_atomic_add v{V_M}, v{V_M+1}, {sr(SG,4)}, 0 offen sc1")
    a("s_mov_b64 exec, -1")
    a("L_nozero:")
    if "tlb" in g.flags:
        a(f"s_mov_b32 s88, s{S_W2}")
        a(f"s_mov_b32 s89, s{S_W2+1}")
        a(f"s_mov_b32 s90, {SIZES['A_wo']}")
        a(f"s_mov_b32 s91, 0x00020000")
        def so_wo(): a(f"s_mul_i32 s52, s55, {W2_RS}")
        def so_p():
            a(f"s_mul_i32 s52, s{s_t}, 2359296")
            a(f"s_add_u32 s52, s52, {WS_P}")
        def so_kv(): a(f"s_mov_b32 s52, {WS_G}")
        tlb_touch(g, vq, [(88, so_wo, 4, 65536), (SW, so_p, 37, 65536), (SW, so_kv, 2, 65536)], V_T+4, V_M+7)
    for c in range(2, 6):
        x_dma(c); g.dma_full(vq, f"r{c}")
    if "mpf" in g.flags:
        a(f"s_mul_i32 s{s_tmp2}, s{s_w}, 18")
        a(f"v_add_u32 v{V_T+4}, s{s_tmp2}, v{v_lane}")
        a(f"v_lshrrev_b32 v{V_T+5}, 2, v{V_T+4}")
        a(f"v_mul_u32_u24 v{V_T+5}, {WQ_RS}, v{V_T+5}")
        a(f"v_and_b32 v{V_T+6}, 3, v{V_T+4}")
        a(f"v_lshlrev_b32 v{V_T+6}, 7, v{V_T+6}")
        a(f"v_add_u32 v{V_T+5}, v{V_T+5}, v{V_T+6}")
        a(f"v_cmp_gt_u32 vcc, 18, v{v_lane}")
        a(f"v_mov_b32 v{V_T+6}, {OOB}")
        a(f"s_mul_i32 s{s_tmp2}, s{s_t}, {36*WQ_RS}")
        a(f"v_cndmask_b32 v{V_T+5}, v{V_T+6}, v{V_T+5}, vcc")
        a(f"s_mul_i32 s{s_tmp3}, s{s_g4}, 288")
        a(f"s_and_b32 s{s_tmp3}, s{s_tmp3}, 0xffffff80")
        a(f"s_add_u32 s52, s{s_tmp2}, s{s_tmp3}")
        a(f"buffer_load_dword v{V_T+7}, v{V_T+5}, {sr(SD,4)}, s52 offen")
        vq.issue("mpf")
        a(f"s_mov_b32 s88, s{S_W2}")
        a(f"s_mov_b32 s89, s{S_W2+1}")
        a(f"s_mov_b32 s90, {SIZES['A_wo']}")
        a(f"s_mov_b32 s91, 0x00020000")
        a(f"s_mul_i32 s{s_tmp2}, s{s_t}, 9")
        a(f"s_add_u32 s{s_tmp2}, s{s_tmp2}, s55")
        a(f"s_mul_i32 s{s_tmp2}, s{s_tmp2}, {W2_RS}")
        a(f"s_mul_i32 s{s_tmp3}, s{s_w}, {11*128}")
        a(f"s_add_u32 s52, s{s_tmp2}, s{s_tmp3}")
        a(f"v_lshlrev_b32 v{V_T+5}, 7, v{v_lane}")
        a(f"v_cmp_gt_u32 vcc, 11, v{v_lane}")
        a("s_nop 1")
        a(f"v_cndmask_b32 v{V_T+5}, v{V_T+6}, v{V_T+5}, vcc")
        a(f"buffer_load_dword v{V_T+7}, v{V_T+5}, s[88:91], s52 offen")
        vq.issue("mpf")
    a(f"s_and_b32 s{s_i}, s{s_w}, 3")
    a(f"s_lshr_b32 s{s_jj}, s{s_w}, 2")
    a(f"v_and_b32 v{t0}, 15, v{v_lane}")
    a(f"v_lshrrev_b32 v{t0}, 2, v{t0}")
    a(f"v_lshrrev_b32 v{t1}, 1, v{t0}")
    a(f"v_xor_b32 v{t1}, s{s_jj}, v{t1}")
    a(f"v_lshlrev_b32 v{t1}, 6, v{t1}")
    a(f"v_lshlrev_b32 v{t0}, 7, v{t0}")
    a(f"v_add_u32 v{t0}, v{t0}, v{t1}")
    a(f"v_lshrrev_b32 v{t1}, 4, v{v_lane}")
    a(f"v_and_b32 v{t1}, 1, v{t1}")
    a(f"v_lshlrev_b32 v{t1}, 5, v{t1}")
    a(f"v_add_u32 v{t0}, v{t0}, v{t1}")
    a(f"v_and_b32 v{t1}, 3, v{v_lane}")
    a(f"v_lshlrev_b32 v{t1}, 3, v{t1}")
    a(f"v_add_u32 v{t0}, v{t0}, v{t1}")
    a(f"v_lshrrev_b32 v{t1}, 5, v{v_lane}")
    a(f"v_lshlrev_b32 v{t2}, 10, v{t1}")
    a(f"v_add_u32 v{v_abase}, v{t0}, v{t2}")
    a(f"v_mov_b32 v{v_rd}, v{v_abase}")
    a(f"v_and_b32 v{t0}, 31, v{v_lane}")
    a(f"v_lshlrev_b32 v{v_l16}, 4, v{t0}")
    a(f"s_lshl_b32 s{s_tmp}, s{s_i}, 5")
    a(f"v_add_u32 v{t0}, s{s_tmp}, v{t0}")
    a(f"v_lshrrev_b32 v{t2}, 1, v{t0}")
    a(f"v_and_b32 v{t2}, 7, v{t2}")
    a(f"v_xor_b32 v{t2}, v{t2}, v{t1}")
    a(f"v_lshlrev_b32 v{t2}, 4, v{t2}")
    a(f"v_lshlrev_b32 v{t0}, 7, v{t0}")
    a(f"v_add_u32 v{v_xrd}, v{t0}, v{t2}")
    a(f"v_add_u32 v{v_xrd}, {LDS_H}, v{v_xrd}")
    a(f"v_lshlrev_b32 v{v_st}, 4, v{v_lane}")
    a(f"v_and_b32 v{t0}, 31, v{v_lane}")
    a(f"v_mul_u32_u24 v{v_hw}, {TS}, v{t0}")
    a(f"v_lshlrev_b32 v{t1}, 3, v{t1}")
    a(f"v_add_u32 v{v_hw}, v{v_hw}, v{t1}")
    a(f"s_lshl_b32 s{s_tmp}, s{s_i}, 6")
    a(f"s_add_u32 s{s_tmp}, s{s_tmp}, {LDS_T}")
    a(f"v_add_u32 v{v_hw}, s{s_tmp}, v{v_hw}")
    a(f"s_waitcnt vmcnt({vq.need('x0','r0')})")
    a("s_barrier")
    stp(62)
    lq = Q()
    def y_read(c):
        slot = c % 6
        for s in range(4):
            reg = V_Y + (4*c + s) * 4
            tmp = V_M + 4 + (s % 2)
            off = slot * 16384
            a(f"v_xor_b32 v{tmp}, {s*32}, v{v_xrd}")
            if off >= 65536:
                a(f"v_add_u32 v{tmp}, {off}, v{tmp}")
                a(f"ds_read_b128 {vr(reg,4)}, v{tmp}")
            else:
                a(f"ds_read_b128 {vr(reg,4)}, v{tmp} offset:{off}")
            lq.issue(f"y{c}")
    def mask_row_list(sP):
        return [f"s_lshl_b32 s{s_tmp}, s{sP}, 6",
                f"s_lshl_b32 s{s_tmp2}, s{s_jj}, 5",
                f"s_add_u32 s{s_tmp}, s{s_tmp}, s{s_tmp2}",
                f"v_lshrrev_b32 v{V_M}, 4, v{v_l16}",
                f"v_add_u32 v{V_M}, s{s_tmp}, v{V_M}",
                f"v_mov_b32 v{V_M+1}, 288",
                f"v_cmp_gt_u32 vcc, 144, v{V_M}",
                f"v_cmp_ge_u32 s[{s_mask}:{s_mask+1}], v{V_M}, v{V_M+1}",
                f"s_cmp_ge_u32 s{s_tmp}, 320",
                f"s_cselect_b32 s{s_tmp2}, 288, 0",
                f"s_sub_u32 s{s_tmp}, s{s_tmp}, s{s_tmp2}",
                f"s_mul_i32 s{s_hwn}, s{s_tmp}, {TS}",
                f"s_or_b64 s[{s_mask}:{s_mask+1}], s[{s_mask}:{s_mask+1}], vcc",
                f"v_add_u32 v{V_M+7}, s{s_hwn}, v{v_hw}",
                f"v_cmp_le_u32 vcc, 432, v{V_M}",
                f"v_add_u32 v{V_M+1}, {327*TS}, v{v_hw}",
                "s_nop 0",
                f"v_cndmask_b32 v{V_M+7}, v{V_M+7}, v{V_M+1}, vcc"]
    y_read(0)
    for s in range(4):
        g.frag_read(lq, s, s, 512, f"f{s}")
    for x in g.rd_valu(): a(x)
    nofill = [[] for _ in range(36)]
    def next_pair_list():
        return [f"s_add_u32 s{s_tmp2}, s{s_n}, 1", f"s_min_u32 s{s_tmp2}, s{s_tmp2}, 6",
                f"s_add_u32 s{s_tmp3}, s{s_tmp2}, s54",
                f"s_cmp_ge_u32 s{s_tmp3}, 5", f"s_cselect_b32 s{s_Pn}, 5, 0", f"s_sub_u32 s{s_Pn}, s{s_tmp3}, s{s_Pn}",
                f"s_add_u32 s{s_tmp3}, s{s_tmp3}, 1", f"s_and_b32 s{s_tmp3}, s{s_tmp3}, 1", f"s_add_u32 s{s_tmp3}, s{s_tmp3}, 5",
                f"s_cmp_ge_u32 s{s_tmp2}, 5", f"s_cselect_b32 s{s_Pn}, s{s_tmp3}, s{s_Pn}"] + set_doff_list(s_Pn) + [f"s_cmp_eq_u32 s{s_n}, 6", f"s_cselect_b32 s{s_dso}, {OOB}, 0"]
    V_PF = 100
    if "tpf" in g.flags:
        a(f"s_mov_b32 s88, s{S_W2}")
        a(f"s_mov_b32 s89, s{S_W2+1}")
        a(f"s_mov_b32 s90, {SIZES['A_wo']}")
        a(f"s_mov_b32 s91, 0x00020000")
        a(f"s_and_b32 s{s_tmp2}, s{s_t}, 3")
        a(f"s_mul_i32 s{s_tmp2}, s{s_tmp2}, 36")
        a(f"s_add_u32 s{s_tmp2}, s{s_tmp2}, s55")
        a(f"s_mul_i32 s{s_tmp2}, s{s_tmp2}, {W2_RS}")
        a(f"s_mul_i32 s{s_tmp3}, s{s_w}, 5184")
        a(f"s_add_u32 s{s_tmp2}, s{s_tmp2}, s{s_tmp3}")
        a(f"v_mov_b32 v{V_PF}, s{s_tmp2}")
        a(f"v_cmp_gt_u32 vcc, 1, v{v_lane}")
        a(f"v_mov_b32 v{V_PF+1}, {OOB}")
        a("s_nop 0")
        a(f"v_cndmask_b32 v{V_PF}, v{V_PF+1}, v{V_PF}, vcc")
    def pf():
        a(f"buffer_load_dword v{V_PF+2}, v{V_PF}, s[88:91], 0 offen")
        vqh[0].issue("pf")
        a(f"v_add_u32 v{V_PF}, 128, v{V_PF}")
    vqh = [vq]
    for e in range(9):
        misc = [[] for _ in range(36)]
        need = [f"r{e+1}"] + ([f"x{e+1}"] if e + 1 <= 8 else [])
        if e + 1 <= 8: misc[4*e].append(lambda e=e: y_read(e + 1))
        if e < 3: misc[4*e+2].append(lambda e=e: x_dma(6 + e))
        if e == 2: misc[4*e+1] += next_pair_list()
        if "tpf" in g.flags: misc[4*e+2].append(pf)
        emit_epoch(g, e, 36, vq, lq, need, 512, V_Y, nofill, misc, [f"r{e+6}"], tagp="f", force_lgkm=lq.need(f"y{e}"), swap=True)
    stp()
    for x in mask_row_list(s_P): a(x)
    a(f"s_mov_b32 s{s_P}, s{s_Pn}")
    a(f"s_mov_b32 s{s_n}, 1")
    BARA = [0, 2, 4, 6, 8]
    a(".p2align 3")
    a("L_T:")
    if g.stamps:
        a(f"s_cmp_eq_u32 s{s_n}, 6")
        a("s_cbranch_scc0 L_T_nost")
        a("s_memtime s[92:93]")
        a("L_T_nost:")
    g.inloop = True
    vq = Q(); lq = Q()
    vqh[0] = vq
    for e in range(-9, 0):
        vq.issue(f"r{e+6}")
        if "tpf" in g.flags: vq.issue("pf")
    for s in range(0, 4): lq.issue(f"g{s}"); lq.issue(f"g{s}")
    excl = [4*e - 1 for e in BARA if e > 0] + [35]
    slots = [sl for sl in range(3, 30) if sl not in excl]
    pl = phi_groups()
    fill = [[] for _ in range(36)]; misc = [[] for _ in range(36)]
    endw = []
    tot = sum(8 if x.startswith("v_exp") else (4 if x.startswith("v_") else 0) for x in pl)
    per = tot / len(slots); acc = 0.0; si = 0
    for ins in pl:
        c = 8 if ins.startswith("v_exp") else (4 if ins.startswith("v_") else 0)
        if ins.startswith("ds_write"):
            if "twloop" in g.flags: misc[slots[min(si, len(slots)-1)]].append(ins)
            else: endw.append(ins)
            continue
        while si < len(slots) - 1 and acc + c / 2 > per * (si + 1): si += 1
        fill[slots[si]].append(ins); acc += c
    npl = next_pair_list()
    misc[8] += npl[:11]; misc[9] += npl[11:20]; misc[10] += npl[20:]
    def kvsig():
        lab = a.label("Lkvs")
        a(f"s_cmp_eq_u32 s{s_n}, 5")
        a(f"s_cbranch_scc0 {lab}")
        a(f"s_cmp_eq_u32 s{s_w}, 0")
        a(f"s_cbranch_scc0 {lab}")
        a(f"v_mov_b32 v{V_M}, 1")
        a(f"s_lshl_b32 s{s_tmp}, s{s_g4}, 2")
        a(f"s_add_u32 s{s_tmp}, s{s_tmp}, {DBG_KV}")
        a(f"v_mov_b32 v{V_M+1}, s{s_tmp}")
        a("s_mov_b64 exec, 1")
        a(f"buffer_atomic_add v{V_M}, v{V_M+1}, {sr(SG,4)}, 0 offen sc1")
        a("s_mov_b64 exec, -1")
        a(f"{lab}:")
    misc[16].append(kvsig)
    def zload():
        a(f"s_lshl_b32 s{s_tmp}, s{s_g4}, 2")
        a(f"s_add_u32 s{s_tmp}, s{s_tmp}, {DBG_Z}")
        a(f"v_mov_b32 v{V_M+2}, s{s_tmp}")
        a(f"buffer_load_dword v{v_zf}, v{V_M+2}, {sr(SG,4)}, 0 offen sc1")
        vq.issue("zf")
    misc[13].append(zload)
    if "tpf" in g.flags:
        for e in range(9): misc[4*e+2].append(pf)
    if "oldpf" in g.flags:
        def pfwo():
            a(f"s_cmp_eq_u32 s{s_n}, 3")
            a(f"s_cbranch_scc1 L_T_pf")
            a(f"L_T_pfret:")
        misc[20].append(pfwo)
    mrl = mask_row_list(s_P)
    if endw:
        misc[31 - 1].append(f"v_mov_b32 v101, v{V_M+7}")
        endw = [x.replace(f"ds_write_b64 v{V_M+7},", "ds_write_b64 v101,") for x in endw]
    misc[32] += mrl[:7]; misc[33] += mrl[7:]
    def endx(s_):
        if s_ == 35:
            for x in endw:
                a(x); lq.issue("x")
    for e in range(9):
        bar = e in BARA
        nb = (e + 1) in BARA or e == 8
        tags = [f"r{e+1}", f"r{e+2}"] if e < 8 else [f"r{e+1}"]
        emit_epoch(g, e, 36, vq, lq, tags, 512, V_Y, fill, misc, [f"r{e+6}"], bar=bar, nextbar=nb, swap=True, end_extra=endx)
    a(f"s_cmp_eq_u32 s{s_n}, 4")
    a("s_cbranch_scc1 L_KV")
    a("L_KV_ret:")
    a(f"s_mov_b32 s{s_P}, s{s_Pn}")
    a(f"s_add_u32 s{s_n}, s{s_n}, 1")
    a(f"s_cmp_le_u32 s{s_n}, 6")
    a("s_cbranch_scc1 L_T")
    a("s_branch L_T_done")
    if "oldpf" in g.flags:
        a("L_T_pf:")
        a(f"s_mov_b32 s88, s{S_W2}")
        a(f"s_mov_b32 s89, s{S_W2+1}")
        a(f"s_mov_b32 s90, {SIZES['A_wo']}")
        a(f"s_mov_b32 s91, 0x00020000")
        a(f"s_and_b32 s{s_tmp2}, s{s_t}, 3")
        a(f"s_mul_i32 s{s_tmp2}, s{s_tmp2}, 36")
        a(f"s_mul_i32 s{s_tmp3}, s{s_g4}, 144")
        a(f"s_add_u32 s{s_tmp2}, s{s_tmp2}, s{s_tmp3}")
        a(f"s_mul_i32 s52, s{s_tmp2}, {W2_RS}")
        touch(g, None, 88, 1, 324, 52, ('lin',), V_M+2, 98+2)
        a("s_branch L_T_pfret")
    a("L_KV:")
    stp()
    a("s_nop 11")
    for ins in phi_groups(): a(ins)
    a("s_waitcnt lgkmcnt(0)")
    a("s_barrier")
    m = V_M
    a(f"s_mul_i32 s{s_tmp}, s{s_w}, {18*TS}")
    a(f"s_add_u32 s{s_tmp}, s{s_tmp}, {LDS_T}")
    a(f"v_lshrrev_b32 v{m}, 4, v{v_l16}")
    a(f"v_mul_u32_u24 v{m+1}, {TS}, v{m}")
    a(f"v_lshrrev_b32 v{m+2}, 5, v{v_lane}")
    a(f"v_lshlrev_b32 v{m+2}, 4, v{m+2}")
    a(f"v_add_u32 v{m+1}, v{m+1}, v{m+2}")
    a(f"v_add_u32 v{m+1}, s{s_tmp}, v{m+1}")
    a(f"v_add_u32 v{m+2}, {144*TS}, v{m+1}")
    a(f"v_cmp_eq_u32 vcc, 18, v{m}")
    a(f"v_mov_b32 v{m+3}, 0x3f803f80")
    BUF = [V_T, V_HP]
    def kvrd(s):
        b = BUF[s % 2]
        a(f"ds_read_b128 {vr(b,4)}, v{m+1} offset:{32*s}")
        a(f"ds_read_b128 {vr(b+4,4)}, v{m+2} offset:{32*s}")
    kvrd(0)
    for s in range(8):
        if s + 1 < 8: kvrd(s + 1)
        a(f"s_waitcnt lgkmcnt({2 if s + 1 < 8 else 0})")
        b = BUF[s % 2]
        for j in range(4):
            a(f"v_cndmask_b32 v{b+4+j}, v{b+4+j}, v{m+3}, vcc")
        a("s_nop 1")
        C = "0" if s == 0 else vr(V_ACC, 16)
        a(f"{MFMA} {vr(V_ACC,16)}, {vr(b,4)}, {vr(b+4,4)}, {C}")
        a("s_nop 3")
    a(f"s_waitcnt vmcnt(5)")
    a(f"v_readfirstlane_b32 s{s_tmp}, v{v_zf}")
    a("s_nop 3")
    a(f"s_cmp_ge_u32 s{s_tmp}, 1")
    a("s_cbranch_scc1 L_zok")
    a(f"s_lshl_b32 s{s_tmp}, s{s_g4}, 2")
    a(f"s_add_u32 s{s_tmp}, s{s_tmp}, {DBG_Z}")
    a(f"v_mov_b32 v{m+4}, s{s_tmp}")
    a("L_zpoll:")
    a(f"buffer_load_dword v{m+5}, v{m+4}, {sr(SG,4)}, 0 offen sc1")
    a("s_waitcnt vmcnt(0)")
    a(f"v_readfirstlane_b32 s{s_tmp}, v{m+5}")
    a("s_nop 3")
    a(f"s_cmp_ge_u32 s{s_tmp}, 1")
    a("s_cbranch_scc1 L_zok")
    a("s_sleep 1")
    a("s_branch L_zpoll")
    a("L_zok:")
    a(f"s_lshl_b32 s{s_tmp}, s{s_g4}, 3")
    a(f"s_add_u32 s{s_tmp}, s{s_tmp}, s{s_w}")
    a(f"s_mul_i32 s{s_tmp}, s{s_tmp}, {KVH}")
    a(f"s_add_u32 s{s_tmp}, s{s_tmp}, {WS_KV}")
    a(f"v_lshrrev_b32 v{m+2}, 5, v{v_lane}")
    a(f"v_mul_u32_u24 v{m+2}, {4*80}, v{m+2}")
    a(f"v_lshlrev_b32 v{m+3}, 2, v{m}")
    a(f"v_add_u32 v{m+2}, v{m+2}, v{m+3}")
    a(f"v_cmp_gt_u32 vcc, 19, v{m}")
    a(f"v_mov_b32 v{m+3}, {OOB}")
    a("s_nop 0")
    a(f"v_cndmask_b32 v{m+2}, v{m+3}, v{m+2}, vcc")
    a(f"v_cmp_gt_u32 vcc, 32, v{v_lane}")
    a("s_nop 1")
    a(f"v_cndmask_b32 v{m+4}, v{m+3}, v{m+2}, vcc")
    a("s_nop 7")
    for r in range(10):
        d0 = 8 * (r // 4) + (r % 4)
        vo = m + 2 if r < 8 else m + 4
        if "noatom" not in g.flags:
            a(f"buffer_atomic_add_f32 v{V_ACC+r}, v{vo}, {sr(SW,4)}, s{s_tmp} offen offset:{d0*80}")
    a("s_barrier")
    a(f"s_cmp_eq_u32 s{s_jj}, 1")
    a("s_cbranch_scc0 L_KV_nomv")
    a(f"v_add_u32 v{m+5}, {288*TS}, v{v_hw}")
    for q in range(4):
        a(f"ds_read_b64 {vr(V_T+2*q,2)}, v{m+5} offset:{16*q}")
    a("s_waitcnt lgkmcnt(0)")
    for q in range(4):
        a(f"ds_write_b64 v{v_hw}, {vr(V_T+2*q,2)} offset:{16*q}")
    a("L_KV_nomv:")
    a(f"v_add_u32 v{m+7}, {327*TS}, v{v_hw}")
    a(f"s_load_dwordx2 s[52:53], s[0:1], {KA['gate_w']}")
    a("s_waitcnt lgkmcnt(0)")
    a(f"s_mov_b32 s{SB}, s52")
    a(f"s_mov_b32 s{SB+1}, s53")
    a(f"s_mov_b32 s{SB+2}, {SIZES['gate_w']}")
    a(f"s_mov_b32 s{SB+3}, 0x00020000")
    a(f"s_cmp_lt_u32 s{s_w}, 2")
    a("s_cbranch_scc0 L_nogw")
    a(f"s_add_u32 m0, s{s_xw}, {LDS_GW}")
    a(f"v_lshlrev_b32 v{m}, 4, v{v_tid}")
    a(f"buffer_load_dwordx4 v{m}, {sr(SB,4)}, 0 offen lds")
    a("L_nogw:")
    stp()
    a("s_branch L_KV_ret")
    a("L_T_done:")
    g.inloop = False
    stp()
    m = V_M
    a(f"s_lshl_b32 s{s_tmp}, s{s_g4}, 2")
    a(f"s_add_u32 s{s_tmp}, s{s_tmp}, {DBG_KV}")
    a(f"v_mov_b32 v{m+4}, s{s_tmp}")
    a("L_kvpoll:")
    a(f"buffer_load_dword v{m+5}, v{m+4}, {sr(SG,4)}, 0 offen sc1")
    a("s_waitcnt vmcnt(0)")
    a(f"v_readfirstlane_b32 s{s_tmp}, v{m+5}")
    a("s_nop 3")
    a(f"s_cmp_ge_u32 s{s_tmp}, 16")
    a("s_cbranch_scc1 L_kvnopoll")
    a("s_sleep 2")
    a("s_branch L_kvpoll")
    a("L_kvnopoll:")
    stp()
    a(f"s_lshl_b32 s{s_tmp}, s{s_g4}, 3")
    a(f"s_add_u32 s{s_tmp}, s{s_tmp}, s{s_w}")
    a(f"s_mul_i32 s{s_tmp}, s{s_tmp}, {KVH}")
    a(f"s_add_u32 s{s_tmp}, s{s_tmp}, {WS_KV}")
    a(f"v_lshrrev_b32 v{m}, 4, v{v_l16}")
    a(f"v_lshlrev_b32 v{m+1}, 2, v{m}")
    a(f"v_mov_b32 v{m+3}, {OOB}")
    a(f"v_cmp_gt_u32 vcc, 19, v{m}")
    a("s_nop 1")
    a(f"v_cndmask_b32 v{m+1}, v{m+3}, v{m+1}, vcc")
    a(f"v_cmp_gt_u32 vcc, 32, v{v_lane}")
    a(f"v_add_u32 v{m+2}, {16*80}, v{m+1}")
    a("s_nop 0")
    a(f"v_cndmask_b32 v{m+2}, v{m+2}, v{m+1}, vcc")
    a(f"v_cndmask_b32 v{m+4}, v{m+3}, v{m+1}, vcc")
    KL = V_ACC
    for j in range(16):
        vo = m + 2 if j < 2 else m + 4
        a(f"buffer_load_dword v{KL+j}, v{vo}, {sr(SW,4)}, s{s_tmp} offen offset:{j*80} sc0 sc1")
    a("s_waitcnt lgkmcnt(0)")
    a("s_barrier")
    a(f"s_mov_b32 s{SD}, s{S_W2}")
    a(f"s_mov_b32 s{SD+1}, s{S_W2+1}")
    a(f"s_mov_b32 s{SD+2}, {SIZES['A_wo']}")
    a(f"s_mul_i32 s{s_F0}, s{s_g4}, {144*W2_RS}")
    def wo_pair_dma(j, ldsbase):
        a(f"s_add_u32 s{s_tmp}, s{s_Pd0}, {j}")
        a(f"s_cmp_ge_u32 s{s_tmp}, 9")
        a(f"s_cselect_b32 s{s_tmp2}, 9, 0")
        a(f"s_sub_u32 s{s_tmp}, s{s_tmp}, s{s_tmp2}")
        a(f"s_lshl_b32 s{s_tmp}, s{s_tmp}, 7")
        a(f"s_add_u32 s{s_dso}, s{s_F0}, s{s_tmp}")
        for mm in range(2):
            a(f"s_add_u32 m0, s{s_xw}, {ldsbase + mm*8192}")
            a(f"s_add_u32 s{s_tmp}, s{s_dso}, {mm*64*W2_RS}")
            a(f"buffer_load_dwordx4 v{v_doffB}, {sr(SD,4)}, s{s_tmp} offen lds")
        lab = a.label("Lw3")
        a(f"s_cmp_lt_u32 s{s_w}, 2")
        a(f"s_cbranch_scc0 {lab}")
        a(f"s_add_u32 m0, s{s_xw}, {ldsbase + 2*8192}")
        a(f"s_add_u32 s{s_tmp}, s{s_dso}, {2*64*W2_RS}")
        a(f"buffer_load_dwordx4 v{v_doffB}, {sr(SD,4)}, s{s_tmp} offen lds")
        a(f"{lab}:")
    for j in range(3): wo_pair_dma(j, j * WPAIR)
    for ins in phi_groups(): a(ins)
    a(f"s_cmp_eq_u32 s{s_i}, s{s_g4}")
    a("s_cbranch_scc0 L_nogate")
    a(f"v_lshrrev_b32 v{m+5}, 5, v{v_lane}")
    a(f"v_lshlrev_b32 v{m+5}, 4, v{m+5}")
    a(f"v_add_u32 v{m+5}, {LDS_GW}, v{m+5}")
    a(f"v_mov_b32 v{v_S}, 0")
    a(f"s_cmp_eq_u32 s{s_jj}, 1")
    a("s_cbranch_scc1 L_gate1")
    for half in range(2):
        if half == 1: a("L_gate1:")
        GB = [V_FR, V_FR + 4, V_FR + 8, V_FR + 12]
        ks = list(range(18 * half, 18 * half + 18))
        for idx in range(3):
            a(f"ds_read_b128 {vr(GB[idx % 4],4)}, v{m+5} offset:{32*ks[idx]}")
        for idx, s in enumerate(ks):
            if idx + 3 < 18:
                a(f"ds_read_b128 {vr(GB[(idx+3) % 4],4)}, v{m+5} offset:{32*ks[idx+3]}")
            a(f"s_waitcnt lgkmcnt({min(3, 17 - idx)})")
            for j in range(4):
                a(f"v_dot2c_f32_bf16 v{v_S}, v{GB[idx % 4]+j}, v{V_Y+4*s+j}")
        if half == 0: a("s_branch L_gate2")
    a("L_gate2:")
    a("s_nop 4")
    a(f"v_mov_b32 v{m+6}, v{v_S}")
    a("s_nop 1")
    a(f"v_permlane32_swap_b32 v{v_S}, v{m+6}")
    a("s_nop 1")
    a(f"v_add_f32 v{v_S}, v{v_S}, v{m+6}")
    a(f"s_lshl_b32 s{s_tmp2}, s{s_jj}, 7")
    a(f"s_add_u32 s{s_tmp2}, s{s_tmp2}, {LDS_GW + 1152}")
    a(f"v_lshrrev_b32 v{m+6}, 2, v{v_l16}")
    a(f"v_add_u32 v{m+6}, s{s_tmp2}, v{m+6}")
    a(f"ds_write_b32 v{m+6}, v{v_S}")
    a("L_nogate:")
    a("s_waitcnt vmcnt(6)")
    for j in range(8):
        a(f"v_cvt_pk_bf16_f32 v{V_HP+j}, v{KL+2*j}, v{KL+2*j+1}")
    a(f"s_lshl_b32 s{s_tmp}, s{s_w}, 11")
    a(f"s_add_u32 s{s_tmp}, s{s_tmp}, {LDS_KVA}")
    a(f"v_lshlrev_b32 v{m}, 2, v{v_l16}")
    a(f"v_lshrrev_b32 v{m+1}, 5, v{v_lane}")
    a(f"v_lshlrev_b32 v{m+1}, 5, v{m+1}")
    a(f"v_add_u32 v{m}, v{m}, v{m+1}")
    a(f"v_add_u32 v{m}, s{s_tmp}, v{m}")
    a(f"ds_write_b128 v{m}, {vr(V_HP,4)}")
    a(f"ds_write_b128 v{m}, {vr(V_HP+4,4)} offset:16")
    a("s_waitcnt lgkmcnt(0)")
    a("s_barrier")
    a(f"s_cmp_eq_u32 s{s_w}, s{s_g4}")
    a("s_cbranch_scc0 L_nogate2")
    a(f"v_lshrrev_b32 v{m+6}, 2, v{v_l16}")
    a(f"v_add_u32 v{m+5}, {LDS_GW + 1152}, v{m+6}")
    a(f"ds_read_b32 v{v_S}, v{m+5}")
    a(f"ds_read_b32 v{m+4}, v{m+5} offset:128")
    a("s_waitcnt lgkmcnt(0)")
    a(f"v_add_f32 v{v_S}, v{v_S}, v{m+4}")
    a(f"v_mul_f32 v{v_S}, {f2u(-LOG2E):#x}, v{v_S}")
    a(f"v_exp_f32 v{v_S}, v{v_S}")
    a("s_nop 0")
    a(f"v_add_f32 v{v_S}, 1.0, v{v_S}")
    a(f"v_rcp_f32 v{v_S}, v{v_S}")
    a(f"s_lshl_b32 s{s_tmp}, s{s_t}, 7")
    a(f"s_lshl_b32 s{s_tmp2}, s{s_g4}, 5")
    a(f"s_add_u32 s{s_tmp}, s{s_tmp}, s{s_tmp2}")
    a(f"s_lshl_b32 s{s_tmp}, s{s_tmp}, 2")
    a(f"s_add_u32 s{s_tmp}, s{s_tmp}, {WS_G}")
    a("s_mov_b32 exec_hi, 0")
    a(f"buffer_store_dword v{v_S}, v{m+6}, {sr(SW,4)}, s{s_tmp} offen sc0 sc1")
    a("s_mov_b32 exec_hi, -1")
    a("L_nogate2:")
    stp()
    a(f"v_and_b32 v{m}, 15, v{v_lane}")
    a(f"v_lshrrev_b32 v{m}, 2, v{m}")
    a(f"v_lshrrev_b32 v{m+1}, 5, v{v_lane}")
    a(f"v_lshlrev_b32 v{m+2}, 3, v{m+1}")
    a(f"v_add_u32 v{m}, v{m}, v{m+2}")
    a(f"v_mul_u32_u24 v{m}, {TS}, v{m}")
    a(f"v_lshrrev_b32 v{m+2}, 4, v{v_lane}")
    a(f"v_and_b32 v{m+2}, 1, v{m+2}")
    a(f"v_lshlrev_b32 v{m+2}, 5, v{m+2}")
    a(f"v_add_u32 v{m}, v{m}, v{m+2}")
    a(f"v_and_b32 v{m+2}, 3, v{v_lane}")
    a(f"v_lshlrev_b32 v{m+2}, 3, v{m+2}")
    a(f"v_add_u32 v{m}, v{m}, v{m+2}")
    a(f"s_lshl_b32 s{s_tmp}, s{s_i}, 6")
    a(f"s_mul_i32 s{s_tmp2}, s{s_jj}, {4*18*TS}")
    a(f"s_add_u32 s{s_tmp}, s{s_tmp}, s{s_tmp2}")
    a(f"s_add_u32 s{s_tmp}, s{s_tmp}, {LDS_T}")
    a(f"v_add_u32 v{m}, s{s_tmp}, v{m}")
    a(f"v_lshlrev_b32 v{m+2}, 2, v{v_l16}")
    a(f"v_lshlrev_b32 v{m+3}, 4, v{m+1}")
    a(f"v_add_u32 v{m+2}, v{m+2}, v{m+3}")
    a(f"s_lshl_b32 s{s_tmp}, s{s_jj}, 13")
    a(f"s_add_u32 s{s_tmp}, s{s_tmp}, {LDS_KVA}")
    a(f"v_add_u32 v{m+2}, s{s_tmp}, v{m+2}")
    a(f"v_lshrrev_b32 v{m+3}, 4, v{v_l16}")
    a(f"v_mul_u32_u24 v{m+3}, {O2S}, v{m+3}")
    a(f"v_lshlrev_b32 v{m+4}, 3, v{m+1}")
    a(f"v_add_u32 v{m+3}, v{m+3}, v{m+4}")
    a(f"s_mul_i32 s{s_tmp}, s{s_i}, {32*O2S}")
    a(f"s_mul_i32 s{s_tmp2}, s{s_jj}, {4*36}")
    a(f"s_add_u32 s{s_tmp}, s{s_tmp}, s{s_tmp2}")
    a(f"s_add_u32 s{s_tmp}, s{s_tmp}, {LDS_O2}")
    a(f"v_add_u32 v{m+3}, s{s_tmp}, v{m+3}")
    for hh in range(4):
        FA, FB = V_Y + 16*hh, V_Y + 16*hh + 8
        for s in range(2):
            a(f"ds_read_b128 {vr(FA+4*s,4)}, v{m+2} offset:{hh*2048+32*s}")
            a(f"ds_read_b64_tr_b16 {vr(FB+4*s,2)}, v{m} offset:{(18*hh+16*s)*TS}")
            a(f"ds_read_b64_tr_b16 {vr(FB+4*s+2,2)}, v{m} offset:{(18*hh+16*s+4)*TS}")
        if hh == 1: a("s_waitcnt lgkmcnt(6)") if False else None
    a("s_waitcnt lgkmcnt(0)")
    for hh in range(4):
        FA, FB, R = V_Y + 16*hh, V_Y + 16*hh + 8, V_Y + 64 + 16*hh
        a(f"{MFMA} {vr(R,16)}, {vr(FA,4)}, {vr(FB,4)}, 0")
        a(f"{MFMA} {vr(R,16)}, {vr(FA+4,4)}, {vr(FB+4,4)}, {vr(R,16)}")
    a("s_nop 7")
    for hh in range(4):
        R = V_Y + 64 + 16*hh
        if hh == 3: a("s_nop 7")
        a(f"v_mov_b32 v{V_T}, v{R+10}")
        a(f"v_mov_b32 v{V_T+1}, v{R+10}")
        a("s_nop 1")
        a(f"v_permlane32_swap_b32 v{V_T+1}, v{V_T}")
        a("s_nop 1")
        a(f"v_add_f32 v{V_T+1}, {f2u(1e-6):#x}, v{V_T+1}")
        a(f"v_rcp_f32 v{V_T+1}, v{V_T+1}")
        a("s_nop 0")
        for r in range(10): a(f"v_mul_f32 v{R+r}, v{R+r}, v{V_T+1}")
        for p in range(5): a(f"v_cvt_pk_bf16_f32 v{V_HP+p}, v{R+2*p}, v{R+2*p+1}")
        for p in range(4):
            a(f"ds_write_b32 v{m+3}, v{V_HP+p} offset:{hh*36 + (p//2)*16 + (p%2)*4}")
        a("s_mov_b32 exec_hi, 0")
        a(f"ds_write_b32 v{m+3}, v{V_HP+4} offset:{hh*36 + 32}")
        a("s_mov_b32 exec_hi, -1")
    a("s_waitcnt vmcnt(0) lgkmcnt(0)")
    a("s_barrier")
    a(f"v_lshrrev_b32 v{m}, 4, v{v_l16}")
    a(f"v_mul_u32_u24 v{m}, {O2S}, v{m}")
    a(f"v_lshrrev_b32 v{m+1}, 5, v{v_lane}")
    a(f"v_lshlrev_b32 v{m+1}, 4, v{m+1}")
    a(f"v_add_u32 v{m}, v{m}, v{m+1}")
    a(f"s_mul_i32 s{s_tmp}, s{s_i}, {32*O2S}")
    a(f"s_add_u32 s{s_tmp}, s{s_tmp}, {LDS_O2}")
    a(f"v_add_u32 v{m}, s{s_tmp}, v{m}")
    for s in range(9):
        a(f"ds_read_b128 {vr(V_Y+4*s,4)}, v{m} offset:{32*s}")
    a("s_waitcnt lgkmcnt(0)")
    a("s_barrier")
    stp()
    a(f"s_lshl_b32 s{s_tmp}, s{s_t}, 2")
    a(f"s_add_u32 s{s_tmp}, s{s_tmp}, s{s_i}")
    a(f"s_mul_i32 s{s_tmp}, s{s_tmp}, {18*16}")
    a(f"s_add_u32 s{s_tmp}, s{s_tmp}, s{s_g4}")
    a(f"s_add_u32 s{s_tmp}, s{s_tmp}, 12")
    a(f"s_lshl_b32 s{s_posbase}, s{s_tmp}, 11")
    a(f"s_add_u32 s{s_posbase}, s{s_posbase}, {WS_P}")
    a(f"s_lshl_b32 s{s_tmp}, s{s_jj}, 15")
    a(f"s_add_u32 s{s_posbase}, s{s_posbase}, s{s_tmp}")
    a(f"s_mov_b32 s{s_P}, s{s_Pd0}")
    a(f"s_mov_b32 s{s_n}, 0")
    sf = " nt" if "stnt" in g.flags else (" sc0 sc1" if "stsc" in g.flags else (" sc1" if "stsc1" in g.flags else (" sc0 sc1 nt" if "stall" in g.flags else "")))
    st0 = f"buffer_store_dwordx4 {vr(V_HP,4)}, v{v_st}, {sr(SW,4)}, s{s_pos} offen{sf}"
    st1 = f"buffer_store_dwordx4 {vr(V_HP+4,4)}, v{v_st}, {sr(SW,4)}, s{s_pos} offen offset:1024{sf}"
    a(f"s_mov_b32 s{s_pos}, {OOB}")
    FW = V_Y + 40
    def wrd(s):
        r = FW + 4 * s
        a(f"ds_read_b64_tr_b16 {vr(r,2)}, v{v_rd} offset:{s*2048}")
        a(f"ds_read_b64_tr_b16 {vr(r+2,2)}, v{v_rd} offset:{s*2048+512}")
    a(f"v_mov_b32 v{v_rd}, v{v_abase}")
    for s in range(9): wrd(s)
    a(f"s_mov_b32 s{s_ro}, {WPAIR}")
    a(".p2align 3")
    a("L_W:")
    a(f"s_cmp_le_u32 s{s_n}, 6")
    a("s_cbranch_scc1 L_W_act")
    a("L_W_go:")
    a(f"v_add_u32 v{v_rd}, s{s_ro}, v{v_abase}")
    for s in range(9):
        if s == 0:
            a(f"s_waitcnt lgkmcnt(15)") if False else None
        n_younger = 2 * (8 - s) + 2 * s
        if s % 3 == 0:
            ny = 2 * (8 - (s + 2)) + 2 * s
            a(f"s_waitcnt lgkmcnt({min(15, ny)})")
        D = V_G if s == 8 else V_ACC
        C = "0" if s == 0 else vr(V_ACC, 16)
        a(f"{MFMA} {vr(D,16)}, {vr(FW+4*s,4)}, {vr(V_Y+4*s,4)}, {C}")
        if s == 1:
            for r in range(4): a(f"v_cvt_pk_bf16_f32 v{V_HP+r}, v{V_G+2*r}, v{V_G+2*r+1}")
        if s == 2:
            for r in range(4, 8): a(f"v_cvt_pk_bf16_f32 v{V_HP+r}, v{V_G+2*r}, v{V_G+2*r+1}")
        wrd(s)
        if s == 3: a(st0)
        if s == 5: a(st1)
        if s == 6:
            a(f"s_lshl_b32 s{s_tmp}, s{s_P}, 16")
            a(f"s_add_u32 s{s_pos}, s{s_posbase}, s{s_tmp}")
            a(f"s_add_u32 s{s_P}, s{s_P}, 1")
            a(f"s_cmp_eq_u32 s{s_P}, 9")
            a(f"s_cselect_b32 s{s_P}, 0, s{s_P}")
        if s == 7:
            a(f"s_add_u32 s{s_n}, s{s_n}, 1")
            a(f"s_add_u32 s{s_tmp}, s{s_n}, 1")
            a(f"s_mul_i32 s{s_ro}, s{s_tmp}, {WPAIR}")
            a(f"s_cmp_ge_u32 s{s_tmp}, 3")
            a(f"s_cselect_b32 s{s_tmp2}, {LDS_H - 3*WPAIR}, 0")
            a(f"s_add_u32 s{s_ro}, s{s_ro}, s{s_tmp2}")
            a(f"s_cmp_ge_u32 s{s_tmp}, 8")
            a(f"s_cselect_b32 s{s_ro}, 0, s{s_ro}")
    a(f"s_cmp_lt_u32 s{s_n}, 9")
    a("s_cbranch_scc1 L_W")
    a("s_branch L_W_done")
    a("L_W_act:")
    for n in range(7):
        a(f"s_cmp_eq_u32 s{s_n}, {n}")
        a(f"s_cbranch_scc1 L_W_a{n}")
    a("s_branch L_W_go")
    a("L_W_a0:")
    wo_pair_dma(3, LDS_H + 0 * WPAIR); wo_pair_dma(4, LDS_H + 1 * WPAIR)
    a("s_branch L_W_go")
    a("L_W_a1:")
    wo_pair_dma(5, LDS_H + 2 * WPAIR); wo_pair_dma(6, LDS_H + 3 * WPAIR)
    a("s_branch L_W_go")
    a("L_W_a2:")
    a("s_waitcnt vmcnt(8)")
    a("s_barrier")
    wo_pair_dma(7, LDS_H + 4 * WPAIR)
    wo_pair_dma(8, 0)
    a("s_branch L_W_go")
    a("L_W_a3:")
    a("s_branch L_W_go")
    a("L_W_a4:")
    a("s_waitcnt vmcnt(10)")
    a("s_barrier")
    a("s_branch L_W_go")
    a("L_W_a5:")
    a("s_branch L_W_go")
    a("L_W_a6:")
    a("s_waitcnt vmcnt(8)")
    a("s_barrier")
    a("s_branch L_W_go")
    a("L_W_done:")
    a("s_nop 15")
    for r in range(8): a(f"v_cvt_pk_bf16_f32 v{V_HP+r}, v{V_G+2*r}, v{V_G+2*r+1}")
    a(st0); a(st1)
    a("s_waitcnt vmcnt(0) lgkmcnt(0)")
    stp()
    if g.stamps:
        a("s_waitcnt lgkmcnt(0)")
        a(f"s_lshl_b32 s{s_tmp}, s2, 3")
        a(f"s_add_u32 s{s_tmp}, s{s_tmp}, s{s_w}")
        a(f"s_lshl_b32 s{s_tmp}, s{s_tmp}, 6")
        a(f"s_add_u32 s{s_tmp}, s{s_tmp}, {WS_STAMP}")
        a("s_mov_b64 exec, 1")
        a(f"v_mov_b32 v{V_M+1}, 0")
        stl.append(92)
        for i, r in enumerate(stl):
            a(f"v_mov_b32 v{V_M}, s{r}")
            a(f"buffer_store_dword v{V_M}, v{V_M+1}, {sr(SW,4)}, s{s_tmp} offen offset:{4*i}")
        a("s_waitcnt vmcnt(0)")
```

```python
from asmlib import *
import struct

NS = 8
SLOT = 8192
RINGSZ = NS * SLOT
LDS_RING = 0
LDS_H = 65536
LDS_TOTAL = 163840
LDS_SCR = 6 * SLOT
LDS_STAT = LDS_H
import sys as _s
WS_BASE = 0
for _f in _s.argv:
    if _f.startswith('wsb'): WS_BASE = int(_f[3:]) << 20
WS_P = WS_BASE
WS_CSP = WS_BASE + 37748736
WS_G = WS_CSP + 12*16*384*4
WS_STAMP = 0x3000000 if WS_BASE == 0 else 0
W1_RS = 9216
W2_RS = 1152
X_RS = 1152
LOG2E = 1.4426950408889634
K1C = -2.0 * 0.7978845608028654 * LOG2E
K2C = -2.0 * 0.7978845608028654 * 0.044715 * LOG2E
def f2u(x): return struct.unpack("<I", struct.pack("<f", x))[0]
OOB = 0x40000000

SX, SD, SW, SG, SB = 4, 8, 12, 16, 20
S_W2 = 24
s_t, s_js, s_w, s_i, s_jj, s_F0 = 28, 29, 30, 31, 32, 33
s_n = 34
s_ro, s_wo, s_wbase = 35, 36, 37
s_dso, s_dstep = 38, 39
s_P, s_Pn = 40, 41
s_tmp, s_tmp2, s_tmp3 = 42, 43, 44
s_pos, s_posbase, s_xso, s_xw, s_Pd0 = 45, 46, 47, 48, 49
s_hwn = 50
S_ST = 60
v_tid, v_lane, v_doff, v_doffB, v_abaseA, v_abase, v_rd = 0, 1, 2, 3, 4, 5, 6
v_abaseB = 7
v_hw, v_l16 = 8, 9
v_k1r, v_k2r, v_rstd = 10, 11, 12
v_S, v_xrd, v_st = 13, 14, 15
V_T, V_HP, V_FR, V_M = 16, 24, 32, 56
V_ACC, V_G, V_CS, V_Y = 64, 80, 96, 112
V_AUGA, V_AUGB = 96, 100
NB, PD = 6, 4
MFMA = "v_mfma_f32_32x32x16_bf16"
def vr(a, n): return f"v[{a}:{a+n-1}]"
def sr(a, n): return f"s[{a}:{a+n-1}]"

class Q:
    def __init__(self): self.q = []
    def issue(self, tag): self.q.append(tag)
    def need(self, *tags):
        last = -1
        for idx, tg in enumerate(self.q):
            if tg in tags: last = idx
        assert last >= 0, f"{tags} not in queue"
        return len(self.q) - 1 - last

class Gen:
    def __init__(self, stamps=False, flags=()):
        self.flags = set(flags)
        self.a = Asm()
        self.stamps = stamps
        self.nst = 0
        self.inloop = False
    def stamp(self):
        if self.stamps:
            i = self.nst; self.nst += 1
            self.a(f"{'s_memrealtime' if 'stampRT' in self.flags else 's_memtime'} s[{S_ST+2*i}:{S_ST+2*i+1}]")
    def flagval(self, pre, default):
        for f in self.flags:
            if f.startswith(pre) and f[len(pre):].isdigit(): return int(f[len(pre):])
        return default
    def dma_a(self):
        L = [f"s_and_b32 m0, s{s_wo}, {RINGSZ-1}", f"s_add_u32 s{s_wo}, s{s_wo}, {SLOT}"]
        if not ("nodma" in self.flags and self.inloop):
            L.append(f"buffer_load_dwordx4 v{v_doff}, {sr(SD,4)}, s{s_dso} offen lds")
        return L
    def dma_b(self):
        return [f"s_add_u32 s{s_dso}, s{s_dso}, s{s_dstep}"]
    def rd_salu(self):
        return []
    def rd_valu(self):
        return [f"v_add_u16 v{v_rd}, {SLOT}, v{v_rd}"]
    def dma_full(self, vq, tag):
        for x in self.dma_a(): self.a(x)
        vq.issue(tag)
        for x in self.dma_b(): self.a(x)
    def frag_read(self, lq, kslot, buf, second, tag):
        a = self.a
        r = V_FR + 4 * buf
        a(f"ds_read_b64_tr_b16 {vr(r,2)}, v{v_rd} offset:{kslot*2048}")
        a(f"ds_read_b64_tr_b16 {vr(r+2,2)}, v{v_rd} offset:{kslot*2048+second}")
        lq.issue(tag); lq.issue(tag)

USE_FMA = True
def gelu_chain(e, T):
    G = V_G + e
    if USE_FMA:
        return [(f"v_mul_f32 v{T}, v{G}, v{G}", 4), (f"v_fma_f32 v{T}, v{T}, v{v_k2r}, v{v_k1r}", 4),
                (f"v_mul_f32 v{T}, v{G}, v{T}", 4), (f"v_exp_f32 v{T}, v{T}", 8), (f"v_add_f32 v{T}, 1.0, v{T}", 4),
                (f"v_rcp_f32 v{T}, v{T}", 8), (f"v_mul_f32 v{T}, v{G}, v{T}", 4)]
    return [(f"v_mul_f32 v{T}, v{G}, v{G}", 4), (f"v_mul_f32 v{T}, v{T}, v{v_k2r}", 4), (f"v_add_f32 v{T}, v{T}, v{v_k1r}", 4),
            (f"v_mul_f32 v{T}, v{G}, v{T}", 4), (f"v_exp_f32 v{T}, v{T}", 8), (f"v_add_f32 v{T}, 1.0, v{T}", 4),
            (f"v_rcp_f32 v{T}, v{T}", 8), (f"v_mul_f32 v{T}, v{G}, v{T}", 4)]

TSH = 0
DSW = 'b128'
def gelu_sched(slots, nslots, caps, maxT=2, GS=4, gapP=2, gapT=3):
    NT = 8
    chains = [gelu_chain(e, V_T + ((e + TSH) % NT)) for e in range(16)]
    NOPS = len(chains[0])
    pos = [0] * 16; done_cvt = [False] * 8; last = [-10] * 16
    fill = [[] for _ in range(nslots)]; dsw = [[] for _ in range(nslots)]
    gi = 0; wrote = [False, False]
    for s in slots:
        budget = caps[s]; nT = 0; progress = True
        while budget > 0 and progress:
            progress = False
            for p in range(8):
                if not done_cvt[p] and pos[2*p] == NOPS and pos[2*p+1] == NOPS and budget >= 4 and gi - max(last[2*p], last[2*p+1]) >= 1:
                    fill[s].append(f"v_cvt_pk_bf16_f32 v{V_HP+p}, v{V_T+(2*p+TSH)%NT}, v{V_T+(2*p+1+TSH)%NT}")
                    done_cvt[p] = True; budget -= 4; gi += 1; progress = True
                    if DSW == "pl": dsw[s].append(f"ds_write_b32 v{v_hw}, v{V_HP+p} offset:{p*256}")
                    break
            if progress: continue
            best = None
            for e in range(16):
                if pos[e] >= NOPS: continue
                if e >= NT and pos[e] == 0 and not done_cvt[(e - NT) // 2]: continue
                ins, c = chains[e][pos[e]]
                if c > budget: continue
                if c == 8 and nT >= maxT: continue
                gap = gi - last[e]
                if pos[e] > 0:
                    prev_trans = chains[e][pos[e]-1][1] == 8
                    if gap < (gapT if prev_trans else gapP): continue
                key = ((e // GS) * NOPS + pos[e]) * GS + (e % GS)
                if best is None or key < best[0]: best = (key, e)
            if best is not None:
                e = best[1]
                ins, c = chains[e][pos[e]]
                fill[s].append(ins); pos[e] += 1; last[e] = gi; gi += 1; budget -= c
                if c == 8: nT += 1
                progress = True
        gi += 3
        for ks in range(2):
            if DSW == "pl":
                if all(done_cvt[4*ks:4*ks+4]): wrote[ks] = True
                continue
            if not wrote[ks] and all(done_cvt[4*ks:4*ks+4]):
                if DSW == "b64":
                    dsw[s].append(f"ds_write_b64 v{v_hw}, {vr(V_HP+4*ks,2)} offset:{ks*1024}")
                    dsw[s].append(f"ds_write_b64 v{v_hw}, {vr(V_HP+4*ks+2,2)} offset:{ks*1024+8}")
                elif DSW == "w2":
                    dsw[s].append(f"ds_write2_b64 v{v_hw}, {vr(V_HP+4*ks,2)}, {vr(V_HP+4*ks+2,2)} offset0:{ks*128} offset1:{ks*128+1}")
                elif DSW == "b32":
                    for j in range(4): dsw[s].append(f"ds_write_b32 v{v_hw}, v{V_HP+4*ks+j} offset:{ks*1024+4*j}")
                else:
                    dsw[s].append(f"ds_write_b128 v{v_hw}, {vr(V_HP+4*ks,4)} offset:{ks*1024}")
                wrote[ks] = True
    ok = all(done_cvt) and all(wrote)
    return ok, fill, dsw

def gelu_plain():
    L = []
    for q in range(4):
        T = [V_T + (q % 2) * 4 + e for e in range(4)]
        ch = [gelu_chain(4*q+e, T[e]) for e in range(4)]
        for o in range(len(ch[0])):
            for e in range(4): L.append(ch[e][o][0])
        L.append(f"v_cvt_pk_bf16_f32 v{V_HP+2*q}, v{T[0]}, v{T[1]}")
        L.append(f"v_cvt_pk_bf16_f32 v{V_HP+2*q+1}, v{T[2]}, v{T[3]}")
        if DSW == "pl":
            L.append(f"ds_write_b32 v{v_hw}, v{V_HP+2*q} offset:{(2*q)*256}")
            L.append(f"ds_write_b32 v{v_hw}, v{V_HP+2*q+1} offset:{(2*q+1)*256}")
        elif q % 2 == 1:
            L.append(f"ds_write_b128 v{v_hw}, {vr(V_HP+4*(q//2),4)} offset:{(q//2)*1024}")
    return L

def emit_epoch(g, e, nk_total, vq, lq, vm_tags, second, bregs, fill, misc, dma_tag, tagp="g", force_lgkm=None, ndma=1, end_extra=None,
               bar=True, nextbar=True, swap=False, kvalid=None, lastD=None, dma_fn=None, firstC0=True):
    a = g.a
    def put(lst):
        for ins in lst:
            if callable(ins): ins(); continue
            a(ins)
            if ins.startswith(("ds_write", "ds_read")): lq.issue("x")
            if ins.startswith(("buffer_store",)): vq.issue("st")
    def rvalid(x): return kvalid is None or (x % nk_total) < kvalid
    for k in range(4):
        s = 4 * e + k
        last_pre = (k == 3 and nextbar)
        if last_pre:
            if rvalid(s + PD): g.frag_read(lq, 3, (s + PD) % NB, second, f"{tagp}{s+PD}")
            for x in g.rd_valu(): a(x)
        tags = []
        if k % 2 == 0:
            tags = [f"{tagp}{x}" for x in (s, s + 1) if rvalid(x)]
        if k == 0 and bar:
            nl = min(15, lq.need(*tags)) if tags else 15
            if force_lgkm is not None: nl = min(nl, force_lgkm)
            nv = vq.need(*vm_tags)
            nv = max(0, nv - (g.flagval("vmx", 0) if g.inloop else 0))
            if "novm" in g.flags and g.inloop: a(f"s_waitcnt lgkmcnt({nl})")
            else: a(f"s_waitcnt vmcnt({nv}) lgkmcnt({nl})")
            if not ("nobar" in g.flags and g.inloop): a("s_barrier")
        elif tags:
            nl = min(15, lq.need(*tags))
            if k == 0 and force_lgkm is not None: nl = min(nl, force_lgkm)
            a(f"s_waitcnt lgkmcnt({nl})")
        lastk = (nk_total if kvalid is None else kvalid) - 1
        D = (V_G if lastD is None else lastD) if s == lastk else V_ACC
        C = "0" if (s == 0 and firstC0) else vr(V_ACC, 16)
        if rvalid(s):
            opA, opB = vr(V_FR+4*(s%NB),4), vr(bregs+4*s,4)
            if swap: opA, opB = opB, opA
            a(f"{MFMA} {vr(D,16)}, {opA}, {opB}, {C}")
        if not last_pre:
            put(fill[s])
            if rvalid(s + PD): g.frag_read(lq, k, (s + PD) % NB, second, f"{tagp}{s+PD}")
            if k == 3:
                for x in g.rd_valu(): a(x)
            if k == 0:
                if dma_fn is not None:
                    dma_fn(); vq.issue(dma_tag[0])
                else:
                    for d in range(ndma):
                        for x in g.dma_a(): a(x)
                        vq.issue(dma_tag[d])
                        for x in g.dma_b(): a(x)
            put(misc[s])
        else:
            assert not fill[s], (s, fill[s])
            put(misc[s])
        if k == 3 and end_extra: end_extra(s)


def touch(g, vq, srd, U, N, soff, mode, vt, vd, tag="pf"):
    a = g.a
    for u in range(U):
        a(f"s_mul_i32 s{s_tmp}, s{s_w}, {U*64}")
        a(f"s_add_u32 s{s_tmp}, s{s_tmp}, {u*64}")
        a(f"v_add_u32 v{vt}, s{s_tmp}, v{v_lane}")
        if mode[0] == 'lin':
            a(f"v_lshlrev_b32 v{vt+1}, 7, v{vt}")
        elif mode[0] == 'div':
            L, RS = mode[1], mode[2]
            magic = (65536 + L - 1) // L
            a(f"v_mul_u32_u24 v{vt+1}, {magic}, v{vt}")
            a(f"v_lshrrev_b32 v{vt+1}, 16, v{vt+1}")
            a(f"v_mul_u32_u24 v{vt+2}, {L}, v{vt+1}")
            a(f"v_sub_u32 v{vt+2}, v{vt}, v{vt+2}")
            a(f"v_lshlrev_b32 v{vt+2}, 7, v{vt+2}")
            a(f"v_mul_u32_u24 v{vt+1}, {RS}, v{vt+1}")
            a(f"v_add_u32 v{vt+1}, v{vt+1}, v{vt+2}")
        elif mode[0] == 'qkv':
            magic = (65536 + 11) // 12
            a(f"v_mul_u32_u24 v{vt+1}, {magic}, v{vt}")
            a(f"v_lshrrev_b32 v{vt+1}, 16, v{vt+1}")
            a(f"v_mul_u32_u24 v{vt+2}, 12, v{vt+1}")
            a(f"v_sub_u32 v{vt+2}, v{vt}, v{vt+2}")
            a(f"v_lshrrev_b32 v{vt+3}, 2, v{vt+2}")
            a(f"v_and_b32 v{vt+2}, 3, v{vt+2}")
            a(f"v_lshlrev_b32 v{vt+2}, 7, v{vt+2}")
            a(f"v_mul_u32_u24 v{vt+3}, 1152, v{vt+3}")
            a(f"v_add_u32 v{vt+2}, v{vt+2}, v{vt+3}")
            a(f"v_mul_u32_u24 v{vt+1}, 3456, v{vt+1}")
            a(f"v_add_u32 v{vt+1}, v{vt+1}, v{vt+2}")
        a(f"v_cmp_gt_u32 vcc, {N}, v{vt}")
        a(f"v_mov_b32 v{vt+2}, {OOB}")
        a("s_nop 0")
        a(f"v_cndmask_b32 v{vt+1}, v{vt+2}, v{vt+1}, vcc")
        a(f"buffer_load_dword v{vd}, v{vt+1}, {sr(srd,4)}, s{soff} offen")
        if vq is not None: vq.issue(tag)


def tlb_touch(g, vq, items, vt, vd):
    a = g.a
    for (srd, so_fn, n, stride) in items:
        so_fn()
        a(f"v_mul_u32_u24 v{vt}, {stride}, v{v_lane}")
        a(f"v_cmp_gt_u32 vcc, {n}, v{v_lane}")
        a(f"v_mov_b32 v{vt+1}, {OOB}")
        a("s_nop 0")
        a(f"v_cndmask_b32 v{vt}, v{vt+1}, v{vt}, vcc")
        a(f"buffer_load_dword v{vd}, v{vt}, {sr(srd,4)}, s52 offen")
        if vq is not None: vq.issue("tlb")

def gen_mlp(g):
    global TSH, DSW
    for f in g.flags:
        if f.startswith('dsw') and f[3:] in ('b64','w2','b32','pl'): DSW = f[3:]
    a = g.a
    a.c("MLP role v2")
    a(f"v_and_b32 v{v_lane}, 63, v{v_tid}")
    a(f"v_lshrrev_b32 v{V_M}, 6, v{v_tid}")
    a("s_nop 0")
    a(f"v_readfirstlane_b32 s{s_w}, v{V_M}")
    t0, t1, t2, xo = V_T, V_T+1, V_T+2, V_T+3
    a(f"v_lshrrev_b32 v{t0}, 3, v{v_lane}")
    a(f"v_and_b32 v{t2}, 7, v{v_lane}")
    a(f"s_lshl_b32 s{s_tmp}, s{s_w}, 3")
    a(f"v_add_u32 v{t0}, s{s_tmp}, v{t0}")
    a(f"v_lshrrev_b32 v{t1}, 1, v{t0}")
    a(f"v_and_b32 v{t1}, 7, v{t1}")
    a(f"v_xor_b32 v{t1}, v{t1}, v{t2}")
    a(f"v_lshlrev_b32 v{t1}, 4, v{t1}")
    a(f"v_mul_u32_u24 v{xo}, {X_RS}, v{t0}")
    a(f"v_add_u32 v{xo}, v{xo}, v{t1}")
    a(f"s_mul_i32 s{s_xso}, s{s_t}, {128*X_RS}")
    a(f"s_lshl_b32 s{s_xw}, s{s_w}, 10")
    vq = Q()
    def x_dma(c):
        slot = c % 6
        a(f"s_add_u32 m0, s{s_xw}, {LDS_H+slot*16384}")
        a(f"s_add_u32 s{s_tmp}, s{s_xso}, {c*128}")
        a(f"buffer_load_dwordx4 v{xo}, {sr(SX,4)}, s{s_tmp} offen lds")
        vq.issue(f"x{c}")
        a(f"s_add_u32 m0, s{s_xw}, {LDS_H+slot*16384+8192}")
        a(f"s_add_u32 s{s_tmp}, s{s_xso}, {c*128+64*X_RS}")
        a(f"buffer_load_dwordx4 v{xo}, {sr(SX,4)}, s{s_tmp} offen lds")
        vq.issue(f"x{c}")
    a(f"v_lshrrev_b32 v{t1}, 4, v{v_lane}")
    a(f"v_and_b32 v{t1}, 1, v{t1}")
    a(f"v_lshlrev_b32 v{t1}, 2, v{t1}")
    a(f"v_xor_b32 v{t1}, v{t1}, v{t2}")
    a(f"v_lshlrev_b32 v{t1}, 4, v{t1}")
    a(f"v_mul_u32_u24 v{v_doff}, {W1_RS}, v{t0}")
    a(f"v_add_u32 v{v_doff}, v{v_doff}, v{t1}")
    a(f"v_mul_u32_u24 v{v_doffB}, {W2_RS}, v{t0}")
    a(f"v_add_u32 v{v_doffB}, v{v_doffB}, v{t1}")
    a(f"s_mul_i32 s{s_F0}, s{s_js}, 384")
    a(f"s_mov_b32 s{s_wo}, s{s_xw}")
    a(f"s_mov_b32 s{s_dstep}, {64*W1_RS}")
    a(f"s_lshl_b32 s{s_tmp}, s{s_P}, 6")
    a(f"s_add_u32 s{s_tmp}, s{s_tmp}, s{s_F0}")
    a(f"s_lshl_b32 s{s_dso}, s{s_tmp}, 1")
    m0_, m1_, m2_ = V_M, V_M+1, V_M+2
    a(f"v_mul_u32_u24 v{m0_}, 1366, v{v_tid}")
    a(f"v_lshrrev_b32 v{m0_}, 16, v{m0_}")
    a(f"v_mul_u32_u24 v{m1_}, 48, v{m0_}")
    a(f"v_sub_u32 v{m1_}, v{v_tid}, v{m1_}")
    a(f"v_mul_u32_u24 v{V_M+3}, 1536, v{m0_}")
    a(f"v_lshlrev_b32 v{m2_}, 5, v{m1_}")
    a(f"v_add_u32 v{V_M+3}, v{V_M+3}, v{m2_}")
    a(f"v_mul_u32_u24 v{m2_}, {4*W1_RS}, v{m0_}")
    a(f"v_lshlrev_b32 v{m1_}, 4, v{m1_}")
    a(f"v_add_u32 v{m2_}, v{m2_}, v{m1_}")
    a(f"v_cmp_lt_u32 vcc, 8, v{m0_}")
    a(f"v_mov_b32 v{m1_}, {OOB}")
    a(f"s_mul_i32 s{s_tmp}, s{s_t}, {36*W1_RS}")
    a(f"v_cndmask_b32 v{m2_}, v{m2_}, v{m1_}, vcc")
    a(f"s_lshl_b32 s{s_tmp2}, s{s_F0}, 1")
    a(f"s_add_u32 s{s_tmp}, s{s_tmp}, s{s_tmp2}")
    for q in range(4):
        a(f"buffer_load_dwordx4 {vr(V_CS+4*q,4)}, v{m2_}, {sr(SD,4)}, s{s_tmp} offen")
        vq.issue("cs")
        if q < 3: a(f"s_add_u32 s{s_tmp}, s{s_tmp}, {W1_RS}")
    a(f"v_min_u32 v{V_M+3}, {9*1536+47*32}, v{V_M+3}")
    x_dma(0); g.dma_full(vq, "r0")
    x_dma(1); g.dma_full(vq, "r1")
    x_dma(2); g.dma_full(vq, "r2")
    if "oldpf" in g.flags:
        a(f"s_and_b32 s{s_tmp2}, s{s_t}, 3")
        a(f"s_mul_i32 s{s_tmp2}, s{s_tmp2}, {144*W1_RS}")
        a(f"s_lshl_b32 s{s_tmp3}, s{s_F0}, 1")
        a(f"s_add_u32 s52, s{s_tmp2}, s{s_tmp3}")
        touch(g, vq, SD, 2, 864, 52, ('div', 6, W1_RS), V_T+4, V_M+7)
    a(f"s_and_b32 s{s_i}, s{s_w}, 3")
    a(f"s_lshr_b32 s{s_jj}, s{s_w}, 2")
    a(f"v_and_b32 v{t0}, 15, v{v_lane}")
    a(f"v_lshrrev_b32 v{t0}, 2, v{t0}")
    a(f"v_lshrrev_b32 v{t1}, 1, v{t0}")
    a(f"v_xor_b32 v{t1}, s{s_jj}, v{t1}")
    a(f"v_lshlrev_b32 v{t1}, 6, v{t1}")
    a(f"v_lshlrev_b32 v{t0}, 7, v{t0}")
    a(f"v_add_u32 v{t0}, v{t0}, v{t1}")
    a(f"v_lshrrev_b32 v{t1}, 4, v{v_lane}")
    a(f"v_and_b32 v{t1}, 1, v{t1}")
    a(f"v_lshlrev_b32 v{t1}, 5, v{t1}")
    a(f"v_add_u32 v{t0}, v{t0}, v{t1}")
    a(f"v_and_b32 v{t1}, 3, v{v_lane}")
    a(f"v_lshlrev_b32 v{t1}, 3, v{t1}")
    a(f"v_add_u32 v{t0}, v{t0}, v{t1}")
    a(f"v_lshrrev_b32 v{t1}, 5, v{v_lane}")
    a(f"v_lshlrev_b32 v{t2}, 10, v{t1}")
    a(f"v_add_u32 v{v_abaseA}, v{t0}, v{t2}")
    a(f"v_lshlrev_b32 v{t2}, 9, v{t1}")
    a(f"v_add_u32 v{v_abaseB}, v{t0}, v{t2}")
    a(f"v_mov_b32 v{v_abase}, v{v_abaseA}")
    a(f"v_mov_b32 v{v_rd}, v{v_abaseA}")
    a(f"v_and_b32 v{t0}, 31, v{v_lane}")
    a(f"v_lshlrev_b32 v{v_l16}, 4, v{t0}")
    a(f"s_lshl_b32 s{s_tmp}, s{s_i}, 5")
    a(f"v_add_u32 v{t0}, s{s_tmp}, v{t0}")
    a(f"v_lshrrev_b32 v{t2}, 1, v{t0}")
    a(f"v_and_b32 v{t2}, 7, v{t2}")
    a(f"v_xor_b32 v{t2}, v{t2}, v{t1}")
    a(f"v_lshlrev_b32 v{t2}, 4, v{t2}")
    a(f"v_lshlrev_b32 v{t0}, 7, v{t0}")
    a(f"v_add_u32 v{v_xrd}, v{t0}, v{t2}")
    a(f"v_add_u32 v{v_xrd}, {LDS_H}, v{v_xrd}")
    a(f"v_lshlrev_b32 v{v_st}, 4, v{v_lane}")
    a(f"v_mov_b32 v{v_S}, 0")
    g.stamp()
    SCR = LDS_SCR
    def cs_sum():
        a(f"s_waitcnt vmcnt({vq.need('cs')})")
        acc = V_HP
        for r in range(4):
            a(f"v_lshlrev_b32 v{acc+2*r}, 16, v{V_CS+r}")
            a(f"v_and_b32 v{acc+2*r+1}, 0xffff0000, v{V_CS+r}")
        for q in range(1, 4):
            for r in range(4):
                a(f"v_lshlrev_b32 v{V_T}, 16, v{V_CS+4*q+r}")
                a(f"v_and_b32 v{V_T+1}, 0xffff0000, v{V_CS+4*q+r}")
                a(f"v_add_f32 v{acc+2*r}, v{acc+2*r}, v{V_T}")
                a(f"v_add_f32 v{acc+2*r+1}, v{acc+2*r+1}, v{V_T+1}")
        a(f"v_add_u32 v{V_M+3}, {SCR}, v{V_M+3}")
        a(f"ds_write_b128 v{V_M+3}, {vr(acc,4)}")
        a(f"ds_write_b128 v{V_M+3}, {vr(acc+4,4)} offset:16")
        lq.issue("csw"); lq.issue("csw")
    def cs_pub():
        a(f"v_lshlrev_b32 v{V_T+4}, 2, v{v_tid}")
        a(f"v_min_u32 v{V_T+5}, {383*4}, v{V_T+4}")
        a(f"v_add_u32 v{V_T+5}, {SCR}, v{V_T+5}")
        for q in range(9):
            a(f"ds_read_b32 v{V_CS+q}, v{V_T+5} offset:{q*1536}")
            lq.issue("csr")
        a(f"v_cmp_gt_u32 vcc, 384, v{v_tid}")
        a(f"v_mov_b32 v{V_T+5}, {OOB}")
        a(f"s_mul_i32 s{s_tmp}, s{s_js}, 16")
        a(f"v_cndmask_b32 v{V_T+4}, v{V_T+5}, v{V_T+4}, vcc")
        a(f"s_add_u32 s{s_tmp}, s{s_tmp}, s{s_t}")
        a(f"s_mul_i32 s{s_tmp}, s{s_tmp}, 1536")
        a(f"s_add_u32 s{s_tmp2}, s{s_tmp}, {WS_CSP}")
        a("s_waitcnt lgkmcnt(0)")
        for q in range(1, 9):
            a(f"v_add_f32 v{V_CS}, v{V_CS}, v{V_CS+q}")
        a(f"buffer_store_dword v{V_CS}, v{V_T+4}, {sr(SW,4)}, s{s_tmp2} offen sc0 sc1")
        vq.issue("cst")
    lq = Q()
    cs_sum()
    g.stamp()
    a(f"s_waitcnt vmcnt({vq.need('x0','r0')}) lgkmcnt(0)")
    a("s_barrier")
    g.stamp()
    def y_read(c):
        slot = c % 6
        for s in range(4):
            reg = V_Y + (4*c + s) * 4
            tmp = V_M + 4 + (s % 2)
            off = slot * 16384
            a(f"v_xor_b32 v{tmp}, {s*32}, v{v_xrd}")
            if off >= 65536:
                a(f"v_add_u32 v{tmp}, {off}, v{tmp}")
                a(f"ds_read_b128 {vr(reg,4)}, v{tmp}")
            else:
                a(f"ds_read_b128 {vr(reg,4)}, v{tmp} offset:{off}")
            lq.issue(f"y{c}")
    def stats(c):
        lab = a.label("Lst"); lab2 = a.label("Lst2")
        a(f"s_cmp_eq_u32 s{s_jj}, 0")
        a(f"s_cbranch_scc0 {lab}")
        for r in range(16):
            a(f"v_dot2c_f32_bf16 v{v_S}, 0x3f803f80, v{V_Y+16*c+r}")
        a(f"s_branch {lab2}")
        a(f"{lab}:")
        for r in range(16):
            a(f"v_dot2c_f32_bf16 v{v_S}, v{V_Y+16*c+r}, v{V_Y+16*c+r}")
        a(f"{lab2}:")
    y_read(0)
    for s in range(4):
        g.frag_read(lq, s, s, 512, f"f{s}")
    for x in g.rd_salu() + g.rd_valu(): a(x)
    nofill = [[] for _ in range(36)]
    VB1 = V_HP + 7
    def flag_load():
        a(f"s_lshl_b32 s{s_tmp}, s{s_js}, 2")
        a(f"v_mov_b32 v{V_T+4}, s{s_tmp}")
        a(f"buffer_load_dword v{V_T+5}, v{V_T+4}, {sr(SG,4)}, 0 offen sc1")
        vq.issue("flag")
    TSCR = LDS_H + 32768
    def tab_loads():
        a(f"v_lshlrev_b32 v{V_M+3}, 4, v{v_tid}")
        a(f"s_mul_i32 s{s_tmp}, s{s_js}, {16*1536}")
        a(f"s_add_u32 s{s_tmp}, s{s_tmp}, {WS_CSP}")
        for u in range(3):
            a(f"buffer_load_dwordx4 {vr(V_CS+4*u,4)}, v{V_M+3}, {sr(SW,4)}, s{s_tmp} offen sc0 sc1")
            if u < 2: a(f"s_add_u32 s{s_tmp}, s{s_tmp}, 8192")
        a(f"v_lshlrev_b32 v{V_M+2}, 1, v{v_tid}")
        a(f"v_cmp_gt_u32 vcc, 384, v{v_tid}")
        a(f"v_mov_b32 v{V_CS+12}, {OOB}")
        a(f"s_lshl_b32 s{s_tmp}, s{s_F0}, 1")
        a(f"v_cndmask_b32 v{V_M+2}, v{V_CS+12}, v{V_M+2}, vcc")
        a(f"buffer_load_ushort v{VB1}, v{V_M+2}, {sr(SB,4)}, s{s_tmp} offen")
    def flag_check():
        a(f"v_readfirstlane_b32 s{s_tmp}, v{V_T+5}")
        a(f"s_mov_b32 s55, 0")
        a("s_nop 2")
        a(f"s_cmp_ge_u32 s{s_tmp}, 16")
        a("s_cbranch_scc0 L_notyet")
        a(f"s_mov_b32 s55, 1")
        tab_loads()
        a("L_notyet:")
    FL, FC = g.flagval("fl", 5), g.flagval("fc", 7)
    for e in range(9):
        misc = [[] for _ in range(36)]
        fill0 = [[] for _ in range(36)]
        need = [f"r{e+1}"] + ([f"x{e+1}"] if e + 1 <= 8 else [])
        if e == 0: fill0[0].append(cs_pub)
        if e == 1:
            need = need + ["cst"]
            def sig():
                lab = a.label("Lsig")
                a(f"s_cmp_eq_u32 s{s_w}, 0")
                a(f"s_cbranch_scc0 {lab}")
                a(f"v_mov_b32 v{V_M}, 1")
                a(f"s_lshl_b32 s{s_tmp}, s{s_js}, 2")
                a(f"v_mov_b32 v{V_M+1}, s{s_tmp}")
                a("s_mov_b64 exec, 1")
                a(f"buffer_atomic_add v{V_M}, v{V_M+1}, {sr(SG,4)}, 0 offen sc1")
                a("s_mov_b64 exec, -1")
                a(f"{lab}:")
            fill0[4*e].append(sig)
        if e == FL: fill0[4*e].append(flag_load)
        if e == FC:
            need = need + ["flag"]
            fill0[4*e].append(flag_check)
        if e + 1 <= 8: misc[4*e].append(lambda e=e: y_read(e + 1))
        if e + 3 <= 8: misc[4*e].insert(0, lambda e=e: x_dma(e + 3))
        misc[4*e+1].append(lambda e=e: stats(e))
        if e == 5:
            def sw():
                a(f"s_add_u32 s{s_Pn}, s{s_P}, 1")
                a(f"s_cmp_eq_u32 s{s_Pn}, 6")
                a(f"s_cselect_b32 s{s_Pn}, 0, s{s_Pn}")
                a(f"s_lshl_b32 s{s_tmp}, s{s_Pn}, 6")
                a(f"s_add_u32 s{s_tmp}, s{s_tmp}, s{s_F0}")
                a(f"s_lshl_b32 s{s_dso}, s{s_tmp}, 1")
            misc[4*e+2].append(sw)
        if e <= 5: tags = [f"r{e+3}"]
        else: tags = [f"r{9+2*(e-6)}", f"r{10+2*(e-6)}"]
        if "prof0" in g.flags: a(f"s_memtime s[{80+2*e}:{81+2*e}]")
        emit_epoch(g, e, 36, vq, lq, need, 512, V_Y, fill0, misc, tags, tagp="f", force_lgkm=lq.need(f"y{e}"), ndma=len(tags))
    if "prof0" in g.flags: a(f"s_memtime s[98:99]")
    g.stamp()
    a("s_nop 3")
    a(f"v_mov_b32 v{V_M}, v{v_S}")
    a("s_nop 1")
    a(f"v_permlane32_swap_b32 v{v_S}, v{V_M}")
    a("s_nop 1")
    a(f"v_add_f32 v{v_S}, v{v_S}, v{V_M}")
    STAT = LDS_H + 1024
    a(f"s_lshl_b32 s{s_tmp}, s{s_i}, 8")
    a(f"s_lshl_b32 s{s_tmp2}, s{s_jj}, 7")
    a(f"s_add_u32 s{s_tmp}, s{s_tmp}, s{s_tmp2}")
    a(f"s_add_u32 s{s_tmp}, s{s_tmp}, {STAT}")
    a(f"v_lshrrev_b32 v{V_M+1}, 2, v{v_l16}")
    a(f"v_add_u32 v{V_M}, s{s_tmp}, v{V_M+1}")
    a(f"ds_write_b32 v{V_M}, v{v_S}")
    a(f"s_cmp_eq_u32 s55, 1")
    a("s_cbranch_scc1 L_haveflag")
    a(f"s_lshl_b32 s{s_tmp}, s{s_js}, 2")
    a(f"v_mov_b32 v{V_T+4}, s{s_tmp}")
    a("L_poll:")
    a(f"buffer_load_dword v{V_T+5}, v{V_T+4}, {sr(SG,4)}, 0 offen sc1")
    a("s_waitcnt vmcnt(0)")
    a(f"v_readfirstlane_b32 s{s_tmp}, v{V_T+5}")
    a("s_nop 3")
    a(f"s_cmp_ge_u32 s{s_tmp}, 16")
    a("s_cbranch_scc1 L_polled")
    a("s_sleep 1")
    a("s_branch L_poll")
    a("L_polled:")
    tab_loads()
    a("L_haveflag:")
    a("s_waitcnt vmcnt(0)")
    a(f"v_lshlrev_b32 v{V_M+3}, 4, v{v_tid}")
    a(f"v_add_u32 v{V_M+3}, {TSCR}, v{V_M+3}")
    for u in range(3):
        a(f"ds_write_b128 v{V_M+3}, {vr(V_CS+4*u,4)} offset:{u*8192}")
    a("s_waitcnt lgkmcnt(0)")
    a("s_barrier")
    g.stamp()
    a(f"v_lshlrev_b32 v{V_M+3}, 2, v{v_tid}")
    a(f"v_min_u32 v{V_M+3}, {383*4}, v{V_M+3}")
    a(f"v_add_u32 v{V_M+3}, {TSCR}, v{V_M+3}")
    for q in range(16):
        a(f"ds_read_b32 v{V_CS+q}, v{V_M+3} offset:{q*1536}")
    a(f"s_lshl_b32 s{s_tmp}, s{s_i}, 8")
    a(f"s_add_u32 s{s_tmp}, s{s_tmp}, {STAT}")
    a(f"v_add_u32 v{V_M}, s{s_tmp}, v{V_M+1}")
    a(f"ds_read_b32 v{V_T}, v{V_M}")
    a(f"ds_read_b32 v{V_T+1}, v{V_M} offset:128")
    a("s_waitcnt lgkmcnt(0)")
    mu, var, sd, tt = V_T, V_T+1, V_T+2, V_T+3
    a(f"v_mul_f32 v{mu}, {f2u(1.0/576):#x}, v{mu}")
    a(f"v_mul_f32 v{var}, {f2u(1.0/576):#x}, v{var}")
    a(f"v_fma_f32 v{var}, -v{mu}, v{mu}, v{var}")
    a(f"v_max_f32 v{var}, 0, v{var}")
    a(f"v_add_f32 v{var}, {f2u(1e-5):#x}, v{var}")
    a(f"v_sqrt_f32 v{sd}, v{var}")
    a("s_nop 0")
    a(f"v_rcp_f32 v{v_rstd}, v{sd}")
    a("s_nop 0")
    a(f"v_mul_f32 v{v_k1r}, {f2u(K1C):#x}, v{v_rstd}")
    a(f"v_mul_f32 v{v_k2r}, v{v_rstd}, v{v_rstd}")
    a(f"v_mul_f32 v{v_k2r}, v{v_k2r}, v{v_rstd}")
    a(f"v_mul_f32 v{v_k2r}, {f2u(K2C):#x}, v{v_k2r}")
    for q in range(1, 16):
        a(f"v_add_f32 v{V_CS}, v{V_CS}, v{V_CS+q}")
    a("s_barrier")
    a(f"v_cvt_pk_bf16_f32 v{V_HP}, v{V_CS}, v{V_CS}")
    a(f"v_lshlrev_b32 v{V_CS+1}, 16, v{V_HP}")
    a(f"v_sub_f32 v{V_CS+1}, v{V_CS}, v{V_CS+1}")
    a(f"v_cvt_pk_bf16_f32 v{V_CS+1}, v{V_CS+1}, v{V_CS+1}")
    a(f"v_and_b32 v{V_CS+1}, 0xffff, v{V_CS+1}")
    a(f"v_lshlrev_b32 v{V_CS+2}, 16, v{VB1}")
    a(f"v_or_b32 v{V_HP+1}, v{V_CS+1}, v{V_CS+2}")
    a(f"v_mov_b32 v{V_HP+2}, v{VB1}")
    a(f"v_mov_b32 v{V_HP+3}, 0")
    a(f"v_lshrrev_b32 v{V_M+3}, 5, v{v_tid}")
    a(f"v_lshlrev_b32 v{V_M+3}, 11, v{V_M+3}")
    a(f"v_add_u32 v{V_M+3}, v{V_M+3}, v{v_l16}")
    a(f"v_add_u32 v{V_M+3}, {LDS_H}, v{V_M+3}")
    a(f"v_cmp_gt_u32 vcc, 384, v{v_tid}")
    a("s_and_saveexec_b64 s[52:53], vcc")
    a("s_cbranch_execz L_notab")
    for i in range(4):
        if i*24576 < 65536:
            a(f"ds_write_b128 v{V_M+3}, {vr(V_HP,4)} offset:{i*24576}")
        else:
            a(f"v_add_u32 v{V_M+3}, {i*24576}, v{V_M+3}")
            a(f"ds_write_b128 v{V_M+3}, {vr(V_HP,4)}")
    a("L_notab:")
    a("s_mov_b64 exec, s[52:53]")
    nm, mh, ml, sh, sl = V_T+4, V_T+5, V_T+6, V_T+7, V_M+6
    a(f"v_sub_f32 v{nm}, 0, v{mu}")
    a(f"v_cvt_pk_bf16_f32 v{mh}, v{nm}, v{sd}")
    a(f"v_lshlrev_b32 v{ml}, 16, v{mh}")
    a(f"v_and_b32 v{sh}, 0xffff0000, v{mh}")
    a(f"v_sub_f32 v{ml}, v{nm}, v{ml}")
    a(f"v_sub_f32 v{sl}, v{sd}, v{sh}")
    a(f"v_cvt_pk_bf16_f32 v{ml}, v{ml}, v{sl}")
    a(f"v_mov_b32 v{V_AUGB+1}, v{mh}")
    a(f"v_and_b32 v{V_AUGB}, 0xffff, v{mh}")
    a(f"v_lshlrev_b32 v{tt}, 16, v{ml}")
    a(f"v_or_b32 v{V_AUGB}, v{V_AUGB}, v{tt}")
    a(f"v_lshrrev_b32 v{V_AUGB+2}, 16, v{ml}")
    a(f"v_mov_b32 v{V_AUGB+3}, 0")
    a(f"v_cmp_gt_u32 vcc, 32, v{v_lane}")
    a("s_nop 1")
    for r in range(3):
        a(f"v_cndmask_b32 v{V_AUGB+r}, 0, v{V_AUGB+r}, vcc")
    a("s_waitcnt lgkmcnt(0)")
    a("s_barrier")
    g.stamp()
    def tile_salu():
        return [f"s_lshl_b32 s{s_tmp}, s{s_P}, 1", f"s_add_u32 s{s_tmp}, s{s_tmp}, s{s_jj}", f"s_mul_i32 s{s_tmp2}, s{s_i}, 12",
                f"s_add_u32 s{s_tmp2}, s{s_tmp2}, s{s_tmp}", f"s_lshl_b32 s{s_tmp2}, s{s_tmp2}, 11", f"s_add_u32 s{s_hwn}, s{s_tmp2}, {LDS_H}"]
    for x in tile_salu(): a(x)
    a(f"v_add_u32 v{V_M}, s{s_hwn}, v{v_l16}")
    a(f"ds_read_b128 {vr(V_AUGA,4)}, v{V_M}")
    a(f"v_lshlrev_b32 v{v_abase}, 2, v{v_lane}")
    a(f"v_add_u32 v{v_hw}, s{s_hwn}, v{v_abase if DSW == 'pl' else v_st}")
    a("s_waitcnt lgkmcnt(0)")
    a(f"{MFMA} {vr(V_G,16)}, {vr(V_AUGA,4)}, {vr(V_AUGB,4)}, {vr(V_G,16)}")
    a(f"s_mov_b32 s{s_P}, s{s_Pn}")
    a(f"s_mov_b32 s{s_n}, 1")
    a(f"s_lshl_b32 s58, s{s_F0}, 1")
    a(f"s_mul_i32 s59, s{s_i}, 12")
    a(f"s_add_u32 s59, s59, s{s_jj}")
    a(f"s_lshl_b32 s59, s59, 11")
    a(f"s_add_u32 s59, s59, {LDS_H}")
    if "tpf" in g.flags:
        a(f"s_mov_b32 s88, s{S_W2}")
        a(f"s_mov_b32 s89, s{S_W2+1}")
        a(f"s_mov_b32 s90, {SIZES['B_w2']}")
        a(f"s_mov_b32 s91, 0x00020000")
        a(f"s_and_b32 s{s_tmp2}, s{s_t}, 3")
        a(f"s_mul_i32 s{s_tmp2}, s{s_tmp2}, 96")
        a(f"s_add_u32 s{s_tmp2}, s{s_tmp2}, s{s_F0}")
        a(f"s_mul_i32 s{s_tmp2}, s{s_tmp2}, {W2_RS}")
        a(f"s_mul_i32 s{s_tmp3}, s{s_w}, 13824")
        a(f"s_add_u32 s{s_tmp2}, s{s_tmp2}, s{s_tmp3}")
        a(f"v_lshlrev_b32 v{V_M+6}, 7, v{v_lane}")
        a(f"v_add_u32 v{V_M+6}, s{s_tmp2}, v{V_M+6}")
        a(f"v_cmp_gt_u32 vcc, 3, v{v_lane}")
        a(f"v_mov_b32 v{V_M+5}, {OOB}")
        a("s_nop 0")
        a(f"v_cndmask_b32 v{V_M+6}, v{V_M+5}, v{V_M+6}, vcc")
    BARA = [0, 2, 4, 6, 8]
    a(".p2align 3")
    a("L_A:")
    g.inloop = True
    vq = Q(); lq = Q()
    for e in range(-9, 0):
        vq.issue(f"r{e+6}")
        if "tpf" in g.flags and e >= -4: vq.issue("pf")
    for s in range(0, 4): lq.issue(f"g{s}"); lq.issue(f"g{s}")
    excl = [4*e - 1 for e in BARA if e > 0] + [35]
    slots = [sl for sl in range(1, 35) if sl not in excl]
    base = g.flagval("cap", 20)
    ok = False; extra = 0
    while not ok:
        dcap = g.flagval("dcap", base)
        caps = {sl: (dcap if sl % 4 == 0 else base) for sl in slots}
        nd = [sl for sl in slots if sl % 4 != 0 or dcap == base]
        for j in range(extra):
            caps[nd[(j * len(nd)) // max(extra, 1)]] = base + 4
        ok, fill, dsw = gelu_sched(slots, 36, caps, maxT=g.flagval("maxT", 2), GS=g.flagval("gs", 4), gapP=g.flagval("gp", 2), gapT=g.flagval("gt", 3))
        if not ok: extra += 1
        assert extra <= len(nd), 'gelu does not fit'
    if "nogelu" in g.flags:
        fill = [[] for _ in range(36)]; dsw = [[] for _ in range(36)]
    if "fake" in g.flags:
        nf = []
        for sl_ in fill:
            o = []
            for j, ins in enumerate(sl_):
                if ins.startswith(("v_exp", "v_rcp")): o.append(f"v_exp_f32 v{V_T+(j%4)}, v{V_M+1}")
                else: o.append(f"v_mul_f32 v{V_T+4+(j%4)}, v{V_M+1}, v{V_M+2}")
            nf.append(o)
        fill = nf
    if "notrans" in g.flags:
        fill = [[x for x in sl_ if not x.startswith(("v_exp", "v_rcp"))] for sl_ in fill]
    if "onlytrans" in g.flags:
        fill = [[x for x in sl_ if x.startswith(("v_exp", "v_rcp"))] for sl_ in fill]
    if "nodsw" in g.flags: dsw = [[] for _ in range(36)]
    g.info = f"gelu base {base} extra slots {extra}"
    if "dswrd" in g.flags:
        dsw = [[x.replace("ds_write_b128 v8, v[24:27]", "ds_read_b128 v[104:107], v8").replace("ds_write_b128 v8, v[28:31]", "ds_read_b128 v[108:111], v8") for x in sl_] for sl_ in dsw]
    if "dswconst" in g.flags:
        dsw = [[x.replace("v[24:27]", "v[104:107]").replace("v[28:31]", "v[108:111]") for x in sl_] for sl_ in dsw]
    if "dswlate" in g.flags:
        allw = [x for sl_ in dsw for x in sl_]
        dsw = [[] for _ in range(36)]
        dsw[34] = allw
    endw = []
    if "dswend" in g.flags or True:
        if "dswloop" not in g.flags:
            endw = [x for sl_ in dsw for x in sl_]
            dsw = [[] for _ in range(36)]
    misc = [list(dsw[s]) for s in range(36)]
    def sw():
        a(f"s_add_u32 s{s_Pn}, s{s_P}, 1")
        a(f"s_cmp_eq_u32 s{s_Pn}, 6")
        a(f"s_cselect_b32 s{s_Pn}, 0, s{s_Pn}")
        a(f"s_lshl_b32 s{s_tmp}, s{s_Pn}, 7")
        a(f"s_add_u32 s{s_dso}, s{s_tmp}, s58")
        a(f"s_cmp_eq_u32 s{s_n}, 5")
        a(f"s_cbranch_scc1 L_A_sw")
        a(f"L_A_swret:")
    misc[4*2+2].append(sw)
    misc[4*5+1] += [f"s_lshl_b32 s{s_tmp}, s{s_P}, 12", f"s_add_u32 s{s_hwn}, s59, s{s_tmp}"]
    def augrd():
        a(f"v_add_u32 v{V_M}, s{s_hwn}, v{v_l16}")
        a(f"ds_read_b128 {vr(V_AUGA,4)}, v{V_M}")
        lq.issue("aug")
    misc[4*8+0].append(augrd)
    V_PF = V_M + 6
    if "tpf" in g.flags:
        def pf():
            a(f"buffer_load_dword v{V_M+7}, v{V_PF}, s[88:91], 0 offen")
            vq.issue("pf")
            a(f"v_add_u32 v{V_PF}, 384, v{V_PF}")
        for e in range(9): misc[4*e+2].append(pf)
    misc[4*8+1] += [f"s_mov_b32 s{s_P}, s{s_Pn}", f"s_add_u32 s{s_n}, s{s_n}, 1", f"s_cmp_le_u32 s{s_n}, 5"]
    def endx(s):
        if s == 35:
            a(f"s_waitcnt lgkmcnt({min(15, lq.need('aug'))})")
            a(f"{MFMA} {vr(V_G,16)}, {vr(V_AUGA,4)}, {vr(V_AUGB,4)}, {vr(V_G,16)}")
            for x in endw:
                a(x); lq.issue("x")
            a(f"v_add_u32 v{v_hw}, s{s_hwn}, v{v_abase if DSW == 'pl' else v_st}")
    for e in range(9):
        if "profA" in g.flags: a(f"s_memtime s[{80+2*e}:{81+2*e}]")
        bar = e in BARA
        nb = (e + 1) in BARA or e == 8
        tags = [f"r{e+1}", f"r{e+2}"] if e < 8 else [f"r{e+1}"]
        emit_epoch(g, e, 36, vq, lq, tags, 512, V_Y, fill, misc, [f"r{e+6}"], end_extra=endx, bar=bar, nextbar=nb)
    if "profA" in g.flags: a(f"s_memtime s[98:99]")
    a(f"s_cbranch_scc1 L_A")
    a("s_branch L_A_done")
    a(f"L_A_sw:")
    a(f"s_mov_b32 s{SD}, s{S_W2}")
    a(f"s_mov_b32 s{SD+1}, s{S_W2+1}")
    a(f"s_mov_b32 s{SD+2}, {SIZES['B_w2']}")
    a(f"s_mov_b32 s{s_dstep}, {64*W2_RS}")
    a(f"s_mul_i32 s57, s{s_F0}, {W2_RS}")
    a(f"s_lshl_b32 s{s_tmp}, s{s_Pd0}, 7")
    a(f"s_add_u32 s{s_dso}, s57, s{s_tmp}")
    a(f"v_mov_b32 v{v_doff}, v{v_doffB}")
    a(f"s_branch L_A_swret")
    a("L_A_done:")
    g.stamp()
    a("s_nop 15")
    for ins in gelu_plain(): a(ins)
    a("s_waitcnt vmcnt(0) lgkmcnt(0)")
    a("s_barrier")
    a(f"s_mul_i32 s{s_tmp}, s{s_i}, {12*2048}")
    a(f"s_add_u32 s{s_tmp}, s{s_tmp}, {LDS_H}")
    if DSW == "pl":
        a(f"v_add_u32 v{V_M}, s{s_tmp}, v{v_abase}")
        for s in range(24):
            a(f"ds_read2st64_b32 {vr(V_Y+4*s,2)}, v{V_M} offset0:{4*s} offset1:{4*s+1}")
            a(f"ds_read2st64_b32 {vr(V_Y+4*s+2,2)}, v{V_M} offset0:{4*s+2} offset1:{4*s+3}")
            if s % 6 == 5: a("s_waitcnt lgkmcnt(4)")
    else:
        a(f"v_add_u32 v{V_M}, s{s_tmp}, v{v_st}")
        for s in range(24):
            a(f"ds_read_b128 {vr(V_Y+4*s,4)}, v{V_M} offset:{s*1024}")
    a(f"v_sub_u16 v{V_M+1}, v{v_rd}, v{v_abaseA}")
    a(f"v_add_u16 v{V_M+1}, v{V_M+1}, v{v_abaseB}")
    a(f"v_add_u16 v{v_rd}, 0xe000, v{V_M+1}")
    lq = Q()
    a("s_waitcnt lgkmcnt(0)")
    for s in range(4):
        g.frag_read(lq, s, s, 1024, f"g{s}")
    a(f"v_mov_b32 v{v_rd}, v{V_M+1}")
    g.stamp()
    a(f"s_lshl_b32 s{s_tmp}, s{s_t}, 2")
    a(f"s_add_u32 s{s_tmp}, s{s_tmp}, s{s_i}")
    a(f"s_mul_i32 s{s_tmp}, s{s_tmp}, {18*16}")
    a(f"s_add_u32 s{s_tmp}, s{s_tmp}, s{s_js}")
    a(f"s_lshl_b32 s{s_posbase}, s{s_tmp}, 11")
    a(f"s_add_u32 s{s_posbase}, s{s_posbase}, {WS_P}")
    a(f"s_lshl_b32 s{s_tmp}, s{s_jj}, 15")
    a(f"s_add_u32 s{s_posbase}, s{s_posbase}, s{s_tmp}")
    a(f"s_mov_b32 s{s_pos}, {OOB}")
    a(f"s_mov_b32 s{s_P}, s{s_Pd0}")
    a(f"s_add_u32 s{s_tmp}, s{s_P}, 1")
    a(f"s_cmp_eq_u32 s{s_tmp}, 9")
    a(f"s_cselect_b32 s{s_tmp}, 0, s{s_tmp}")
    a(f"s_lshl_b32 s{s_tmp}, s{s_tmp}, 7")
    a(f"s_add_u32 s{s_dso}, s57, s{s_tmp}")
    a(f"s_mov_b32 s{s_n}, 0")
    def epi_list():
        L = []
        for r in range(16): L.append(f"v_mul_f32 v{V_G+r}, v{V_G+r}, v{v_rstd}")
        for r in range(8): L.append(f"v_cvt_pk_bf16_f32 v{V_HP+r}, v{V_G+2*r}, v{V_G+2*r+1}")
        return L
    sf = " nt" if "stnt" in g.flags else (" sc0 sc1" if "stsc" in g.flags else (" sc1" if "stsc1" in g.flags else (" sc0 sc1 nt" if "stall" in g.flags else "")))
    st0 = f"buffer_store_dwordx4 {vr(V_HP,4)}, v{v_st}, {sr(SW,4)}, s{s_pos} offen{sf}"
    st1 = f"buffer_store_dwordx4 {vr(V_HP+4,4)}, v{v_st}, {sr(SW,4)}, s{s_pos} offen offset:1024{sf}"
    a(".p2align 3")
    a("L_B:")
    BARB = [0, 2, 4]
    fillB = [[] for _ in range(24)]
    miscB = [[] for _ in range(24)]
    el = epi_list()
    sl = [2, 3, 4, 5, 6, 8] if "oldB" in g.flags else [2, 3, 5, 6, 9, 10]
    for idx, ins in enumerate(el): fillB[sl[idx * len(sl) // len(el)]].append(ins)
    if "noepi" in g.flags: fillB = [[] for _ in range(24)]
    p0, p1 = g.flagval("sta", 9 if "oldB" in g.flags else 13), g.flagval("stb", 13 if "oldB" in g.flags else 14)
    if "nostore" not in g.flags:
        miscB[p0].append(st0); miscB[p1].append(st1)
    miscB[17] += [f"s_add_u32 s{s_Pn}, s{s_P}, 1", f"s_cmp_eq_u32 s{s_Pn}, 9", f"s_cselect_b32 s{s_Pn}, 0, s{s_Pn}"]
    miscB[18] += [f"s_lshl_b32 s{s_tmp}, s{s_P}, 16", f"s_add_u32 s{s_pos}, s{s_posbase}, s{s_tmp}"]
    miscB[21] += [f"s_add_u32 s{s_tmp}, s{s_Pn}, 1", f"s_cmp_eq_u32 s{s_tmp}, 9", f"s_cselect_b32 s{s_tmp}, 0, s{s_tmp}", f"s_lshl_b32 s{s_tmp}, s{s_tmp}, 7"]
    miscB[22] += [f"s_add_u32 s{s_dso}, s57, s{s_tmp}", f"s_mov_b32 s{s_P}, s{s_Pn}", f"s_add_u32 s{s_n}, s{s_n}, 1", f"s_cmp_lt_u32 s{s_n}, 9"]
    vq = Q(); lq = Q()
    for e in range(6):
        for k in range(4):
            s = 4*e + k
            if k == 0: vq.issue(f"r{e}")
            for ins in miscB[s]:
                if isinstance(ins, str) and ins.startswith("buffer_store"): vq.issue("st")
    for s in range(4): lq.issue(f"g{s}"); lq.issue(f"g{s}")
    for e in range(6):
        if "prof" in g.flags: a(f"s_memtime s[{80+2*e}:{81+2*e}]")
        bar = e in BARB
        nb = (e + 1) in BARB or e == 5
        emit_epoch(g, e, 24, vq, lq, [f"r{e+1}", f"r{e+2}"], 1024, V_Y, fillB, miscB, [f"r{e+6}"], bar=bar, nextbar=nb)
    if "prof" in g.flags: a(f"s_memtime s[92:93]")
    a(f"s_cbranch_scc1 L_B")
    g.stamp()
    a("s_nop 15")
    for ins in epi_list(): a(ins)
    a(st0); a(st1)
    a("s_waitcnt vmcnt(0) lgkmcnt(0)")
    g.stamp()
    if g.stamps:
        a("s_waitcnt lgkmcnt(0)")
        a(f"s_lshl_b32 s{s_tmp}, s2, 3")
        a(f"s_add_u32 s{s_tmp}, s{s_tmp}, s{s_w}")
        a(f"s_lshl_b32 s{s_tmp}, s{s_tmp}, 6")
        a(f"s_add_u32 s{s_tmp}, s{s_tmp}, {WS_STAMP}")
        a("s_mov_b64 exec, 1")
        a(f"v_mov_b32 v{V_M+1}, 0")
        lst = [S_ST+2*i for i in range(g.nst)]
        if "prof" in g.flags: lst = [80, 82, 84, 86, 88, 90, 92]
        if "profA" in g.flags: lst = [80, 82, 84, 86, 88, 90, 92, 94, 96, 98]
        if "profS" in g.flags: lst = [60, 80, 82, 84, 86, 62, 66]
        if "prof0" in g.flags: lst = [60, 80, 82, 84, 86, 88, 90, 92, 94, 96, 98]
        if g.flagval("fine", -1) >= 0: lst = [80, 82, 84, 86, 88, 90, 92, 94]
        for i in range(len(lst)):
            a(f"v_mov_b32 v{V_M}, s{lst[i]}")
            a(f"buffer_store_dword v{V_M}, v{V_M+1}, {sr(SW,4)}, s{s_tmp} offen offset:{4*i}")
        a("s_waitcnt vmcnt(0)")
```

```python
from asmlib import *
from mlp3 import *
from fin import WS_FLAG, DBG_NONCE, gen_nonce_init

def gen_signal(g, jreg, pre):
    a = g.a
    m = V_M
    a("s_mov_b64 exec, -1")
    a(f"v_mov_b32 v{m}, {DBG_NONCE}")
    a(f"{pre}_poll:")
    a(f"buffer_load_dword v{m+1}, v{m}, {sr(SG,4)}, 0 offen sc1")
    a("s_waitcnt vmcnt(0)")
    a(f"v_readfirstlane_b32 s52, v{m+1}")
    a("s_nop 3")
    a("s_cmp_eq_u32 s52, 0")
    a(f"s_cbranch_scc1 {pre}_poll")
    a("s_barrier")
    a(f"s_lshl_b32 s53, s{s_t}, 7")
    a(f"s_add_u32 s53, s53, {WS_FLAG}")
    a(f"s_cmp_eq_u32 s{s_w}, 0")
    a(f"s_cbranch_scc0 {pre}_nosig")
    a(f"s_lshl_b32 s{s_tmp}, s{jreg}, 2")
    a(f"v_mov_b32 v{m}, s{s_tmp}")
    a(f"v_mov_b32 v{m+1}, s52")
    a("s_mov_b64 exec, 1")
    a(f"buffer_store_dword v{m+1}, v{m}, {sr(SW,4)}, s53 offen sc0 sc1")
    a("s_mov_b64 exec, -1")
    a(f"{pre}_nosig:")

def wait_flags(g, lo, n, pre):
    a = g.a
    m = V_M
    a(f"s_cmp_eq_u32 s{s_w}, 0")
    a(f"s_cbranch_scc0 {pre}_done")
    a(f"v_min_u32 v{m}, {n-1}, v{v_lane}")
    a(f"v_add_u32 v{m}, {lo}, v{m}")
    a(f"v_lshlrev_b32 v{m}, 2, v{m}")
    a(f"{pre}_wait:")
    a(f"buffer_load_dword v{m+1}, v{m}, {sr(SW,4)}, s53 offen sc0 sc1")
    a("s_waitcnt vmcnt(0)")
    a(f"v_cmp_ne_u32 vcc, s52, v{m+1}")
    a("s_nop 4")
    a("s_cmp_eq_u64 vcc, 0")
    a(f"s_cbranch_scc1 {pre}_done")
    a("s_sleep 1")
    a(f"s_branch {pre}_wait")
    a(f"{pre}_done:")
    a("s_barrier")

def gen_final_att(g, jreg):
    gen_signal(g, jreg, "L_fa")
    g.a("s_waitcnt vmcnt(0)")

def gen_final_mlp(g, jreg):
    a = g.a
    SO, SB2 = 4, 20
    RT = "rtf" in g.flags
    a.c("final reduce (MLP WGs)")
    if RT: a("s_memrealtime s[64:65]")
    a(f"s_load_dwordx2 s[{SO}:{SO+1}], s[0:1], {KA['out']}")
    a(f"s_load_dwordx2 s[{SB2}:{SB2+1}], s[0:1], {KA['B_b2']}")
    gen_signal(g, jreg, "L_fm")
    a("s_waitcnt lgkmcnt(0)")
    a(f"s_mov_b32 s{SO+2}, {SIZES['out']}")
    a(f"s_mov_b32 s{SO+3}, 0x00020000")
    a(f"s_mov_b32 s{SB2+2}, {SIZES['B_b2']}")
    a(f"s_mov_b32 s{SB2+3}, 0x00020000")
    wait_flags(g, 0, 12, "L_f1")
    if RT: a("s_memrealtime s[66:67]")
    def unit_addr(ureg, sbase):
        a(f"s_lshr_b32 s54, s{ureg}, 1")
        a(f"s_and_b32 s55, s{ureg}, 1")
        a(f"s_mul_i32 s56, s{s_t}, 72")
        a(f"s_add_u32 s56, s56, s54")
        a(f"s_lshl_b32 s57, s56, 15")
        a(f"s_lshl_b32 s58, s55, 10")
        a(f"s_add_u32 s57, s57, s58")
        a(f"s_add_u32 s{sbase}, s57, {WS_P}")
        a(f"s_mul_i32 s58, s54, 3641")
        a(f"s_lshr_b32 s{sbase+2}, s58, 16")
        a(f"s_mul_i32 s59, s{sbase+2}, 18")
        a(f"s_sub_u32 s59, s54, s59")
        a(f"s_lshl_b32 s59, s59, 5")
        a(f"s_lshl_b32 s55, s55, 4")
        a(f"s_add_u32 s{sbase+1}, s59, s55")
    def unit_loads1(V, sbase):
        a(f"s_mov_b32 s57, s{sbase}")
        for sl in range(12):
            a(f"buffer_load_dwordx4 {vr(V+4*sl,4)}, v{v_st}, {sr(SW,4)}, s57 offen sc0 sc1")
            if sl < 11: a(f"s_add_u32 s57, s57, 2048")
        A0 = V + 48
        a(f"v_lshrrev_b32 v{A0}, 5, v{v_lane}")
        a(f"v_lshlrev_b32 v{A0+1}, 2, v{A0}")
        a(f"v_add_u32 v{A0+1}, s{sbase+1}, v{A0+1}")
        a(f"v_lshlrev_b32 v{A0+1}, 1, v{A0+1}")
        a(f"buffer_load_dwordx2 {vr(A0+2,2)}, v{A0+1}, {sr(SB2,4)}, 0 offen")
        a(f"buffer_load_dwordx2 {vr(A0+4,2)}, v{A0+1}, {sr(SB2,4)}, 0 offen offset:16")
        a(f"v_lshrrev_b32 v{A0+6}, 4, v{v_l16}")
        a(f"s_lshl_b32 s56, s{s_t}, 7")
        a(f"s_lshl_b32 s58, s{sbase+2}, 5")
        a(f"s_add_u32 s56, s56, s58")
        a(f"v_add_u32 v{A0+6}, s56, v{A0+6}")
        a(f"v_mul_u32_u24 v{A0+9}, 1152, v{A0+6}")
        a(f"v_lshlrev_b32 v{A0+7}, 4, v{A0}")
        a(f"v_add_u32 v{A0+9}, v{A0+9}, v{A0+7}")
        a(f"s_lshl_b32 s59, s{sbase+1}, 1")
        a(f"v_add_u32 v{A0+9}, s59, v{A0+9}")
        a(f"v_lshlrev_b32 v{A0+7}, 2, v{A0+6}")
    def sum1(V, younger):
        A = V + 60; T0, T1 = 32, 33
        for sl in range(12):
            a(f"s_waitcnt vmcnt({min(63, 11 - sl + 2 + younger)})")
            for r in range(4):
                src = V + 4*sl + r
                if sl == 0:
                    a(f"v_lshlrev_b32 v{A+2*r}, 16, v{src}")
                    a(f"v_and_b32 v{A+2*r+1}, 0xffff0000, v{src}")
                else:
                    a(f"v_lshlrev_b32 v{T0}, 16, v{src}")
                    a(f"v_and_b32 v{T1}, 0xffff0000, v{src}")
                    a(f"v_add_f32 v{A+2*r}, v{A+2*r}, v{T0}")
                    a(f"v_add_f32 v{A+2*r+1}, v{A+2*r+1}, v{T1}")
        a(f"s_waitcnt vmcnt({younger})")
        A0 = V + 48
        for r in range(4):
            a(f"v_lshlrev_b32 v{T0}, 16, v{A0+2+r}")
            a(f"v_and_b32 v{T1}, 0xffff0000, v{A0+2+r}")
            a(f"v_add_f32 v{A+2*r}, v{A+2*r}, v{T0}")
            a(f"v_add_f32 v{A+2*r+1}, v{A+2*r+1}, v{T1}")
    def unit_loads2(V, sbase):
        a(f"s_add_u32 s57, s{sbase}, {12*2048}")
        for sl in range(4):
            a(f"buffer_load_dwordx4 {vr(V+4*sl,4)}, v{v_st}, {sr(SW,4)}, s57 offen sc0 sc1")
            if sl < 3: a(f"s_add_u32 s57, s57, 2048")
        a(f"s_mov_b32 s58, {WS_G}")
        a(f"buffer_load_dword v{V+48+8}, v{V+48+7}, {sr(SW,4)}, s58 offen sc0 sc1")
    def fin2(V, younger):
        A = V + 60; B = V + 16; T0, T1 = 32, 33; A0 = V + 48
        for sl in range(4):
            a(f"s_waitcnt vmcnt({3 - sl + 1 + younger})")
            for r in range(4):
                src = V + 4*sl + r
                if sl == 0:
                    a(f"v_lshlrev_b32 v{B+2*r}, 16, v{src}")
                    a(f"v_and_b32 v{B+2*r+1}, 0xffff0000, v{src}")
                else:
                    a(f"v_lshlrev_b32 v{T0}, 16, v{src}")
                    a(f"v_and_b32 v{T1}, 0xffff0000, v{src}")
                    a(f"v_add_f32 v{B+2*r}, v{B+2*r}, v{T0}")
                    a(f"v_add_f32 v{B+2*r+1}, v{B+2*r+1}, v{T1}")
        a(f"s_waitcnt vmcnt({younger})")
        for e in range(8):
            a(f"v_sub_f32 v{B+e}, v{B+e}, v{A+e}")
            a(f"v_fma_f32 v{A+e}, v{A0+8}, v{B+e}, v{A+e}")
        for r in range(4):
            a(f"v_cvt_pk_bf16_f32 v{36+r}, v{A+2*r}, v{A+2*r+1}")
        a("s_nop 1")
        a("v_permlane32_swap_b32 v36, v38")
        a("v_permlane32_swap_b32 v37, v39")
        a("s_nop 1")
        a(f"buffer_store_dwordx4 v[36:39], v{A0+9}, {sr(SO,4)}, 0 offen")
    V1, V2 = 64, 140
    a(f"s_mul_i32 s60, s{jreg}, 12")
    a(f"s_add_u32 s61, s60, s{s_w}")
    unit_addr(61, 70)
    unit_loads1(V1, 70)
    a(f"s_cmp_lt_u32 s{s_w}, 4")
    a("s_cbranch_scc0 L_f_one")
    a(f"s_add_u32 s61, s61, 8")
    unit_addr(61, 74)
    unit_loads1(V2, 74)
    sum1(V1, 14)
    sum1(V2, 0)
    wait_flags(g, 12, 4, "L_f2a")
    unit_loads2(V1, 70)
    unit_loads2(V2, 74)
    fin2(V1, 5)
    fin2(V2, 1)
    a("s_branch L_f_end")
    a("L_f_one:")
    sum1(V1, 0)
    wait_flags(g, 12, 4, "L_f2b")
    unit_loads2(V1, 70)
    fin2(V1, 0)
    a("L_f_end:")
    a("s_waitcnt vmcnt(0)")
    if RT:
        a("s_memrealtime s[68:69]")
        a("s_waitcnt lgkmcnt(0)")
        a("s_lshl_b32 s80, s2, 4")
        a("s_add_u32 s80, s80, 0x3100000")
        a("s_mov_b64 exec, 1")
        a("v_mov_b32 v1, 0")
        a("v_mov_b32 v2, s96"); a("v_mov_b32 v3, s64"); a("v_mov_b32 v4, s66"); a("v_mov_b32 v5, s68")
        a(f"s_cmp_eq_u32 s{s_w}, 0")
        a("s_cbranch_scc0 L_fn_x")
        a(f"buffer_store_dwordx4 v[2:5], v1, {sr(SW,4)}, s80 offen")
        a("s_waitcnt vmcnt(0)")
        a("L_fn_x:")
```

```python
import sys
from asmlib import *
from mlp3 import *
import k2_red
from attn2 import gen_attn
from fin import gen_final, gen_nonce_init
from fin2 import gen_final_mlp, gen_final_att
from k2_red import gen_k2

def gen_k1(stamps=False, flags=()):
    g = Gen(stamps, flags)
    a = g.a
    a("s_cmp_ge_u32 s2, 256")
    a("s_cbranch_scc1 L_end1")
    a(f"s_load_dwordx2 s[{SW}:{SW+1}], s[0:1], {KA['ws']}")
    a(f"s_load_dwordx2 s[{SG}:{SG+1}], s[0:1], {KA['dbg']}")
    g.stamp()
    if "rt" in flags or "rtf" in flags:
        a("s_memrealtime s[96:97]")
    a(f"s_and_b32 s{s_tmp}, s2, 7")
    a(f"s_lshr_b32 s{s_tmp2}, s2, 3")
    a(f"s_cmp_ge_u32 s{s_tmp2}, 24")
    a("s_cbranch_scc1 L_attn")
    a(f"s_load_dwordx2 s[{SX}:{SX+1}], s[0:1], {KA['A_x']}")
    a(f"s_load_dwordx2 s[{SD}:{SD+1}], s[0:1], {KA['B_w1']}")
    a(f"s_load_dwordx2 s[{SB}:{SB+1}], s[0:1], {KA['B_b1']}")
    a(f"s_load_dwordx2 s[{S_W2}:{S_W2+1}], s[0:1], {KA['B_w2']}")
    if "map38" in flags:
        a(f"s_lshr_b32 s{s_js}, s{s_tmp}, 1")
        a(f"s_mul_i32 s{s_js}, s{s_js}, 3")
        a(f"s_lshr_b32 s{s_tmp3}, s{s_tmp2}, 3")
        a(f"s_add_u32 s{s_js}, s{s_js}, s{s_tmp3}")
        a(f"s_and_b32 s{s_t}, s{s_tmp}, 1")
        a(f"s_lshl_b32 s{s_t}, s{s_t}, 3")
        a(f"s_and_b32 s{s_tmp3}, s{s_tmp2}, 7")
        a(f"s_add_u32 s{s_t}, s{s_t}, s{s_tmp3}")
    else:
        a(f"s_mul_i32 s{s_tmp3}, s{s_tmp2}, 43")
        a(f"s_lshr_b32 s{s_tmp3}, s{s_tmp3}, 8")
        a(f"s_mul_i32 s{s_js}, s{s_tmp3}, 6")
        a(f"s_sub_u32 s{s_js}, s{s_tmp2}, s{s_js}")
        a(f"s_and_b32 s{s_t}, s{s_tmp}, 1")
        a(f"s_mul_i32 s{s_t}, s{s_t}, 6")
        a(f"s_add_u32 s{s_js}, s{s_js}, s{s_t}")
        a(f"s_lshr_b32 s{s_t}, s{s_tmp}, 1")
        a(f"s_lshl_b32 s{s_t}, s{s_t}, 2")
        a(f"s_add_u32 s{s_t}, s{s_t}, s{s_tmp3}")
    if "norot" in flags:
        a(f"s_mov_b32 s{s_P}, 0"); a(f"s_mov_b32 s{s_Pd0}, 0")
    else:
        a(f"s_mul_i32 s{s_tmp3}, s{s_t}, 43")
        a(f"s_lshr_b32 s{s_tmp3}, s{s_tmp3}, 8")
        a(f"s_mul_i32 s{s_tmp3}, s{s_tmp3}, 6")
        a(f"s_sub_u32 s{s_P}, s{s_t}, s{s_tmp3}")
        a(f"s_cmp_ge_u32 s{s_t}, 9")
        a(f"s_cselect_b32 s{s_tmp3}, 9, 0")
        a(f"s_sub_u32 s{s_Pd0}, s{s_t}, s{s_tmp3}")
        if "norotA" in flags: a(f"s_mov_b32 s{s_P}, 0")
    a("s_waitcnt lgkmcnt(0)")
    for (r, n) in ((SX, "A_x"), (SD, "B_w1"), (SW, "ws"), (SG, "dbg"), (SB, "B_b1")):
        finish_srd(a, r, n)
    if "fuse" in flags or "fuse2" in flags: gen_nonce_init(g)
    gen_mlp(g)
    if "fuse2" in flags:
        a(f"s_mov_b32 s62, s{s_js}")
        gen_final_mlp(g, 62)
        a("s_branch L_end1")
    elif "fuse" in flags:
        a(f"s_mov_b32 s62, s{s_js}")
        a("s_branch L_final")
    else:
        a("s_branch L_rt" if "rt" in flags else "s_branch L_end1")
    a("L_attn:")
    if "noattn" not in flags:
        a(f"s_load_dwordx2 s[{SX}:{SX+1}], s[0:1], {KA['A_x']}")
        a(f"s_load_dwordx2 s[{SD}:{SD+1}], s[0:1], {KA['A_wqkv']}")
        a(f"s_load_dwordx2 s[{S_W2}:{S_W2+1}], s[0:1], {KA['A_wo']}")
        a(f"s_load_dwordx2 s[58:59], s[0:1], {KA['gate_w']}")
        a(f"s_sub_u32 s{s_tmp2}, s{s_tmp2}, 24")
        if "map38" in flags:
            a(f"s_lshr_b32 s{s_js}, s{s_tmp}, 1")
            a(f"s_and_b32 s{s_t}, s{s_tmp}, 1")
            a(f"s_lshl_b32 s{s_t}, s{s_t}, 3")
            a(f"s_add_u32 s{s_t}, s{s_t}, s{s_tmp2}")
        else:
            a(f"s_and_b32 s{s_js}, s{s_tmp}, 1")
            a(f"s_lshl_b32 s{s_js}, s{s_js}, 1")
            a(f"s_and_b32 s{s_tmp3}, s{s_tmp2}, 1")
            a(f"s_add_u32 s{s_js}, s{s_js}, s{s_tmp3}")
            a(f"s_lshr_b32 s{s_t}, s{s_tmp}, 1")
            a(f"s_lshl_b32 s{s_t}, s{s_t}, 2")
            a(f"s_lshr_b32 s{s_tmp3}, s{s_tmp2}, 1")
            a(f"s_add_u32 s{s_t}, s{s_t}, s{s_tmp3}")
        a(f"s_cmp_ge_u32 s{s_t}, 9")
        a(f"s_cselect_b32 s{s_tmp3}, 9, 0")
        a(f"s_sub_u32 s{s_Pd0}, s{s_t}, s{s_tmp3}")
        a("s_waitcnt lgkmcnt(0)")
        for (r, n) in ((SX, "A_x"), (SD, "A_wqkv"), (SW, "ws"), (SG, "dbg")):
            finish_srd(a, r, n)
        g.inloop = False
        gen_attn(g)
        if "fuse2" in flags:
            a(f"s_add_u32 s62, s{s_js}, 12")
            gen_final_att(g, 62)
        elif "fuse" in flags:
            a(f"s_add_u32 s62, s{s_js}, 12")
            a("L_final:")
            gen_final(g, 62)
    if "rt" in flags:
        a("L_rt:")
        a("s_memrealtime s[100:101]")
        a("s_waitcnt lgkmcnt(0)")
        a("s_lshl_b32 s98, s2, 3")
        a("s_add_u32 s98, s98, 0x3100000")
        a("s_mov_b64 exec, 1")
        a("v_mov_b32 v1, 0")
        a("v_mov_b32 v2, s96")
        a("v_mov_b32 v3, s100")
        a(f"s_cmp_eq_u32 s{s_w}, 0")
        a("s_cbranch_scc0 L_end1")
        a(f"buffer_store_dwordx2 v[2:3], v1, {sr(SW,4)}, s98 offen")
        a("s_waitcnt vmcnt(0)")
    a("L_end1:")
    print(g.info, file=sys.stderr)
    return kernel_wrap("k1_kernel", a.text(), vgpr=256, sgpr=102, accum=256)

if __name__ == "__main__":
    out = sys.argv[1]
    stamps = "stamps" in sys.argv
    mode = "b" if "bonly" in sys.argv else "full"
    k1 = gen_k1(stamps, flags=sys.argv[2:])
    k2 = gen_k2(mode, rt=('rt' in sys.argv), xmap=('noxmap' not in sys.argv))
    if "fuse" in sys.argv or "fuse2" in sys.argv:
        KN = "gated_mix__linear_attn_block__mixer_channel_mlp__prompt_kernel"
        k1 = k1.replace("k1_kernel", KN)
        txt = f"; @launch grid=(256,1,1) block=(512,1,1) lds={LDS_TOTAL}\n" + '.amdgcn_target "amdgcn-amd-amdhsa--gfx950"\n' + k1
        open(out, "w").write(txt)
    else:
        launches = [("k1_kernel", (256,1,1), (512,1,1), LDS_TOTAL), ("k2_kernel", (576,1,1), (256,1,1), 0)]
        open(out, "w").write(file_wrap(launches, [k1, k2]))
```

```python
from asmlib import *
from mlp3 import *

WQ_RS = 3456
TS = 272
LDS_T = LDS_H
LDS_KVA = LDS_T + 158 * TS
LDS_O2 = LDS_KVA + 16384
LDS_GW = LDS_T + 320 * TS
O2S = 304
assert LDS_O2 + 128 * O2S <= LDS_TOTAL and LDS_GW + 1152 <= LDS_TOTAL
WS_KV = WS_G + 2048 * 4
KVH = 18 * 80
DBG_Z = 16 * 4
DBG_KV = 20 * 4
s_g4 = s_js
s_mask = 56
v_row, v_cp, v_zf = 96, 97, 98
WPAIR = 144 * 128

def phi_chain(e, T, U):
    G = V_G + e
    return [(f"v_min_f32 v{T}, 0, v{G}", 4), (f"v_mul_f32 v{T}, s82, v{T}", 4), (f"v_exp_f32 v{T}, v{T}", 8),
            (f"v_max_f32 v{U}, 0, v{G}", 4), (f"v_add_f32 v{U}, s83, v{U}", 4), (f"v_add_f32 v{T}, v{T}, v{U}", 4),
            (f"v_cndmask_b32 v{T}, v{G}, v{T}, s[{s_mask}:{s_mask+1}]", 4)]

def phi_groups():
    L = []
    for q in range(4):
        T = [V_T + e for e in range(4)]; U = [V_T + 4 + e for e in range(4)]
        ch = [phi_chain(4*q+e, T[e], U[e]) for e in range(4)]
        order = [0, 1, 3, 2, 4, 5, 6]
        for o in order:
            for e in range(4): L.append(ch[e][o][0])
        L.append(f"v_cvt_pk_bf16_f32 v{V_HP+2*q}, v{T[0]}, v{T[1]}")
        L.append(f"v_cvt_pk_bf16_f32 v{V_HP+2*q+1}, v{T[2]}, v{T[3]}")
        L.append(f"ds_write_b64 v{V_M+7}, {vr(V_HP+2*q,2)} offset:{16*q}")
    return L

def gen_attn(g):
    a = g.a
    stl = [60]
    def stp(reg=None):
        if g.stamps:
            r = reg if reg is not None else 64 + 2 * (len(stl) - 2)
            stl.append(r)
            a(f"s_memtime s[{r}:{r+1}]")
    a.c("attention role v2")
    a(f"s_mov_b32 s82, {f2u(LOG2E):#x}")
    a(f"s_mov_b32 s83, {f2u(1e-6):#x}")
    a(f"v_and_b32 v{v_lane}, 63, v{v_tid}")
    a(f"v_lshrrev_b32 v{V_M}, 6, v{v_tid}")
    a("s_nop 0")
    a(f"v_readfirstlane_b32 s{s_w}, v{V_M}")
    t0, t1, t2, xo = V_T, V_T+1, V_T+2, 99
    a(f"v_lshrrev_b32 v{t0}, 3, v{v_lane}")
    a(f"v_and_b32 v{t2}, 7, v{v_lane}")
    a(f"s_lshl_b32 s{s_tmp}, s{s_w}, 3")
    a(f"v_add_u32 v{t0}, s{s_tmp}, v{t0}")
    a(f"v_lshrrev_b32 v{t1}, 1, v{t0}")
    a(f"v_and_b32 v{t1}, 7, v{t1}")
    a(f"v_xor_b32 v{t1}, v{t1}, v{t2}")
    a(f"v_lshlrev_b32 v{t1}, 4, v{t1}")
    a(f"v_mul_u32_u24 v{xo}, {X_RS}, v{t0}")
    a(f"v_add_u32 v{xo}, v{xo}, v{t1}")
    a(f"s_mul_i32 s{s_xso}, s{s_t}, {128*X_RS}")
    a(f"s_lshl_b32 s{s_xw}, s{s_w}, 10")
    vq = Q()
    def x_dma(c):
        slot = c % 6
        a(f"s_add_u32 m0, s{s_xw}, {LDS_H+slot*16384}")
        a(f"s_add_u32 s{s_tmp}, s{s_xso}, {c*128}")
        a(f"buffer_load_dwordx4 v{xo}, {sr(SX,4)}, s{s_tmp} offen lds")
        vq.issue(f"x{c}")
        a(f"s_add_u32 m0, s{s_xw}, {LDS_H+slot*16384+8192}")
        a(f"s_add_u32 s{s_tmp}, s{s_xso}, {c*128+64*X_RS}")
        a(f"buffer_load_dwordx4 v{xo}, {sr(SX,4)}, s{s_tmp} offen lds")
        vq.issue(f"x{c}")
    x_dma(0)
    a(f"v_lshrrev_b32 v{t1}, 4, v{v_lane}")
    a(f"v_and_b32 v{t1}, 1, v{t1}")
    a(f"v_lshlrev_b32 v{t1}, 2, v{t1}")
    a(f"v_xor_b32 v{v_cp}, v{t1}, v{t2}")
    a(f"v_mul_u32_u24 v{v_row}, {WQ_RS}, v{t0}")
    a(f"v_lshlrev_b32 v{t1}, 4, v{v_cp}")
    a(f"v_mul_u32_u24 v{v_doffB}, {W2_RS}, v{t0}")
    a(f"v_add_u32 v{v_doffB}, v{v_doffB}, v{t1}")
    a(f"s_mul_i32 s55, s{s_g4}, {128 if 'alignq' in g.flags else 144}")
    def set_doff_list(sP):
        m = V_M
        return [f"s_lshl_b32 s{s_tmp}, s{sP}, 6",
                f"v_lshlrev_b32 v{m}, 3, v{v_cp}",
                f"v_add_u32 v{m}, s{s_tmp}, v{m}",
                f"v_mov_b32 v{m+1}, 576",
                f"v_mov_b32 v{m+2}, 1008",
                f"v_cmp_le_u32 vcc, 144, v{m}",
                f"v_mov_b32 v{m+3}, -288",
                "s_nop 0",
                f"v_cndmask_b32 v{m+1}, v{m+1}, v{m+2}, vcc",
                f"v_cmp_le_u32 vcc, 288, v{m}",
                f"v_add_u32 v{m}, s55, v{m}",
                "s_nop 0",
                f"v_cndmask_b32 v{m+1}, v{m+1}, v{m+3}, vcc",
                f"v_add_u32 v{m}, v{m}, v{m+1}",
                f"v_lshlrev_b32 v{m}, 1, v{m}",
                f"v_add_u32 v{v_doff}, v{v_row}, v{m}"]
    a(f"s_mul_i32 s54, s{s_t}, 52")
    a(f"s_lshr_b32 s54, s54, 8")
    a(f"s_mul_i32 s54, s54, 5")
    a(f"s_sub_u32 s54, s{s_t}, s54")
    if "norot" in g.flags or "norotT" in g.flags: a("s_mov_b32 s54, 0")
    a(f"s_mov_b32 s{s_P}, s54")
    a(f"s_mov_b32 s{s_n}, 0")
    for x in set_doff_list(s_P): a(x)
    a(f"s_mov_b32 s{s_wo}, s{s_xw}")
    a(f"s_mov_b32 s{s_dstep}, {64*WQ_RS}")
    a(f"s_mov_b32 s{s_dso}, 0")
    g.dma_full(vq, "r0")
    if "ob" in g.flags: a("s_barrier")
    x_dma(1); g.dma_full(vq, "r1")
    if "ob" in g.flags: a("s_barrier")
    if "oldpf" in g.flags:
        a(f"s_and_b32 s{s_tmp2}, s{s_t}, 3")
        a(f"s_mul_i32 s{s_tmp2}, s{s_tmp2}, {144*WQ_RS}")
        a(f"s_mul_i32 s{s_tmp3}, s{s_g4}, 288")
        a(f"s_and_b32 s{s_tmp3}, s{s_tmp3}, 0xffffff80")
        a(f"s_add_u32 s52, s{s_tmp2}, s{s_tmp3}")
        touch(g, vq, SD, 4, 1728, 52, ('qkv',), V_T+4, V_M+7)
    a(f"s_cmp_eq_u32 s{s_t}, 0")
    a("s_cbranch_scc0 L_nozero")
    for r in range(4): a(f"v_mov_b32 v{V_HP+r}, 0")
    a(f"v_lshlrev_b32 v{V_M}, 4, v{v_tid}")
    a(f"s_mul_i32 s{s_tmp}, s{s_g4}, {8*KVH}")
    a(f"s_add_u32 s{s_tmp}, s{s_tmp}, {WS_KV}")
    a(f"buffer_store_dwordx4 {vr(V_HP,4)}, v{V_M}, {sr(SW,4)}, s{s_tmp} offen sc0 sc1")
    a(f"v_add_u32 v{V_M}, 8192, v{V_M}")
    a(f"v_cmp_gt_u32 vcc, 11520, v{V_M}")
    a(f"v_mov_b32 v{V_M+1}, {OOB}")
    a("s_nop 0")
    a(f"v_cndmask_b32 v{V_M}, v{V_M+1}, v{V_M}, vcc")
    a(f"buffer_store_dwordx4 {vr(V_HP,4)}, v{V_M}, {sr(SW,4)}, s{s_tmp} offen sc0 sc1")
    a("s_waitcnt vmcnt(0)")
    a("s_barrier")
    a(f"s_cmp_eq_u32 s{s_w}, 0")
    a("s_cbranch_scc0 L_nozero")
    a(f"v_mov_b32 v{V_M}, 1")
    a(f"s_lshl_b32 s{s_tmp}, s{s_g4}, 2")
    a(f"s_add_u32 s{s_tmp}, s{s_tmp}, {DBG_Z}")
    a(f"v_mov_b32 v{V_M+1}, s{s_tmp}")
    a("s_mov_b64 exec, 1")
    a(f"buffer_atomic_add v{V_M}, v{V_M+1}, {sr(SG,4)}, 0 offen sc1")
    a("s_mov_b64 exec, -1")
    a("L_nozero:")
    if "tlb" in g.flags:
        a(f"s_mov_b32 s88, s{S_W2}")
        a(f"s_mov_b32 s89, s{S_W2+1}")
        a(f"s_mov_b32 s90, {SIZES['A_wo']}")
        a(f"s_mov_b32 s91, 0x00020000")
        def so_wo(): a(f"s_mul_i32 s52, s55, {W2_RS}")
        def so_p():
            a(f"s_mul_i32 s52, s{s_t}, 2359296")
            a(f"s_add_u32 s52, s52, {WS_P}")
        def so_kv(): a(f"s_mov_b32 s52, {WS_G}")
        tlb_touch(g, vq, [(88, so_wo, 4, 65536), (SW, so_p, 37, 65536), (SW, so_kv, 2, 65536)], V_T+4, V_M+7)
    for c in range(2, 6):
        x_dma(c); g.dma_full(vq, f"r{c}")
    if "mpf" in g.flags:
        a(f"s_mul_i32 s{s_tmp2}, s{s_w}, 18")
        a(f"v_add_u32 v{V_T+4}, s{s_tmp2}, v{v_lane}")
        a(f"v_lshrrev_b32 v{V_T+5}, 2, v{V_T+4}")
        a(f"v_mul_u32_u24 v{V_T+5}, {WQ_RS}, v{V_T+5}")
        a(f"v_and_b32 v{V_T+6}, 3, v{V_T+4}")
        a(f"v_lshlrev_b32 v{V_T+6}, 7, v{V_T+6}")
        a(f"v_add_u32 v{V_T+5}, v{V_T+5}, v{V_T+6}")
        a(f"v_cmp_gt_u32 vcc, 18, v{v_lane}")
        a(f"v_mov_b32 v{V_T+6}, {OOB}")
        a(f"s_mul_i32 s{s_tmp2}, s{s_t}, {36*WQ_RS}")
        a(f"v_cndmask_b32 v{V_T+5}, v{V_T+6}, v{V_T+5}, vcc")
        a(f"s_mul_i32 s{s_tmp3}, s{s_g4}, 288")
        a(f"s_and_b32 s{s_tmp3}, s{s_tmp3}, 0xffffff80")
        a(f"s_add_u32 s52, s{s_tmp2}, s{s_tmp3}")
        a(f"buffer_load_dword v{V_T+7}, v{V_T+5}, {sr(SD,4)}, s52 offen")
        vq.issue("mpf")
        a(f"s_mov_b32 s88, s{S_W2}")
        a(f"s_mov_b32 s89, s{S_W2+1}")
        a(f"s_mov_b32 s90, {SIZES['A_wo']}")
        a(f"s_mov_b32 s91, 0x00020000")
        a(f"s_mul_i32 s{s_tmp2}, s{s_t}, 9")
        a(f"s_add_u32 s{s_tmp2}, s{s_tmp2}, s55")
        a(f"s_mul_i32 s{s_tmp2}, s{s_tmp2}, {W2_RS}")
        a(f"s_mul_i32 s{s_tmp3}, s{s_w}, {11*128}")
        a(f"s_add_u32 s52, s{s_tmp2}, s{s_tmp3}")
        a(f"v_lshlrev_b32 v{V_T+5}, 7, v{v_lane}")
        a(f"v_cmp_gt_u32 vcc, 11, v{v_lane}")
        a("s_nop 1")
        a(f"v_cndmask_b32 v{V_T+5}, v{V_T+6}, v{V_T+5}, vcc")
        a(f"buffer_load_dword v{V_T+7}, v{V_T+5}, s[88:91], s52 offen")
        vq.issue("mpf")
    a(f"s_and_b32 s{s_i}, s{s_w}, 3")
    a(f"s_lshr_b32 s{s_jj}, s{s_w}, 2")
    a(f"v_and_b32 v{t0}, 15, v{v_lane}")
    a(f"v_lshrrev_b32 v{t0}, 2, v{t0}")
    a(f"v_lshrrev_b32 v{t1}, 1, v{t0}")
    a(f"v_xor_b32 v{t1}, s{s_jj}, v{t1}")
    a(f"v_lshlrev_b32 v{t1}, 6, v{t1}")
    a(f"v_lshlrev_b32 v{t0}, 7, v{t0}")
    a(f"v_add_u32 v{t0}, v{t0}, v{t1}")
    a(f"v_lshrrev_b32 v{t1}, 4, v{v_lane}")
    a(f"v_and_b32 v{t1}, 1, v{t1}")
    a(f"v_lshlrev_b32 v{t1}, 5, v{t1}")
    a(f"v_add_u32 v{t0}, v{t0}, v{t1}")
    a(f"v_and_b32 v{t1}, 3, v{v_lane}")
    a(f"v_lshlrev_b32 v{t1}, 3, v{t1}")
    a(f"v_add_u32 v{t0}, v{t0}, v{t1}")
    a(f"v_lshrrev_b32 v{t1}, 5, v{v_lane}")
    a(f"v_lshlrev_b32 v{t2}, 10, v{t1}")
    a(f"v_add_u32 v{v_abase}, v{t0}, v{t2}")
    a(f"v_mov_b32 v{v_rd}, v{v_abase}")
    a(f"v_and_b32 v{t0}, 31, v{v_lane}")
    a(f"v_lshlrev_b32 v{v_l16}, 4, v{t0}")
    a(f"s_lshl_b32 s{s_tmp}, s{s_i}, 5")
    a(f"v_add_u32 v{t0}, s{s_tmp}, v{t0}")
    a(f"v_lshrrev_b32 v{t2}, 1, v{t0}")
    a(f"v_and_b32 v{t2}, 7, v{t2}")
    a(f"v_xor_b32 v{t2}, v{t2}, v{t1}")
    a(f"v_lshlrev_b32 v{t2}, 4, v{t2}")
    a(f"v_lshlrev_b32 v{t0}, 7, v{t0}")
    a(f"v_add_u32 v{v_xrd}, v{t0}, v{t2}")
    a(f"v_add_u32 v{v_xrd}, {LDS_H}, v{v_xrd}")
    a(f"v_lshlrev_b32 v{v_st}, 4, v{v_lane}")
    a(f"v_and_b32 v{t0}, 31, v{v_lane}")
    a(f"v_mul_u32_u24 v{v_hw}, {TS}, v{t0}")
    a(f"v_lshlrev_b32 v{t1}, 3, v{t1}")
    a(f"v_add_u32 v{v_hw}, v{v_hw}, v{t1}")
    a(f"s_lshl_b32 s{s_tmp}, s{s_i}, 6")
    a(f"s_add_u32 s{s_tmp}, s{s_tmp}, {LDS_T}")
    a(f"v_add_u32 v{v_hw}, s{s_tmp}, v{v_hw}")
    a(f"s_waitcnt vmcnt({vq.need('x0','r0')})")
    a("s_barrier")
    stp(62)
    lq = Q()
    def y_read(c):
        slot = c % 6
        for s in range(4):
            reg = V_Y + (4*c + s) * 4
            tmp = V_M + 4 + (s % 2)
            off = slot * 16384
            a(f"v_xor_b32 v{tmp}, {s*32}, v{v_xrd}")
            if off >= 65536:
                a(f"v_add_u32 v{tmp}, {off}, v{tmp}")
                a(f"ds_read_b128 {vr(reg,4)}, v{tmp}")
            else:
                a(f"ds_read_b128 {vr(reg,4)}, v{tmp} offset:{off}")
            lq.issue(f"y{c}")
    def mask_row_list(sP):
        return [f"s_lshl_b32 s{s_tmp}, s{sP}, 6",
                f"s_lshl_b32 s{s_tmp2}, s{s_jj}, 5",
                f"s_add_u32 s{s_tmp}, s{s_tmp}, s{s_tmp2}",
                f"v_lshrrev_b32 v{V_M}, 4, v{v_l16}",
                f"v_add_u32 v{V_M}, s{s_tmp}, v{V_M}",
                f"v_mov_b32 v{V_M+1}, 288",
                f"v_cmp_gt_u32 vcc, 144, v{V_M}",
                f"v_cmp_ge_u32 s[{s_mask}:{s_mask+1}], v{V_M}, v{V_M+1}",
                f"s_cmp_ge_u32 s{s_tmp}, 320",
                f"s_cselect_b32 s{s_tmp2}, 288, 0",
                f"s_sub_u32 s{s_tmp}, s{s_tmp}, s{s_tmp2}",
                f"s_mul_i32 s{s_hwn}, s{s_tmp}, {TS}",
                f"s_or_b64 s[{s_mask}:{s_mask+1}], s[{s_mask}:{s_mask+1}], vcc",
                f"v_add_u32 v{V_M+7}, s{s_hwn}, v{v_hw}",
                f"v_cmp_le_u32 vcc, 432, v{V_M}",
                f"v_add_u32 v{V_M+1}, {327*TS}, v{v_hw}",
                "s_nop 0",
                f"v_cndmask_b32 v{V_M+7}, v{V_M+7}, v{V_M+1}, vcc"]
    y_read(0)
    for s in range(4):
        g.frag_read(lq, s, s, 512, f"f{s}")
    for x in g.rd_valu(): a(x)
    nofill = [[] for _ in range(36)]
    def next_pair_list():
        return [f"s_add_u32 s{s_tmp2}, s{s_n}, 1", f"s_min_u32 s{s_tmp2}, s{s_tmp2}, 6",
                f"s_add_u32 s{s_tmp3}, s{s_tmp2}, s54",
                f"s_cmp_ge_u32 s{s_tmp3}, 5", f"s_cselect_b32 s{s_Pn}, 5, 0", f"s_sub_u32 s{s_Pn}, s{s_tmp3}, s{s_Pn}",
                f"s_add_u32 s{s_tmp3}, s{s_tmp3}, 1", f"s_and_b32 s{s_tmp3}, s{s_tmp3}, 1", f"s_add_u32 s{s_tmp3}, s{s_tmp3}, 5",
                f"s_cmp_ge_u32 s{s_tmp2}, 5", f"s_cselect_b32 s{s_Pn}, s{s_tmp3}, s{s_Pn}"] + set_doff_list(s_Pn) + [f"s_cmp_eq_u32 s{s_n}, 6", f"s_cselect_b32 s{s_dso}, {OOB}, 0"]
    V_PF = 100
    if "tpf" in g.flags:
        a(f"s_mov_b32 s88, s{S_W2}")
        a(f"s_mov_b32 s89, s{S_W2+1}")
        a(f"s_mov_b32 s90, {SIZES['A_wo']}")
        a(f"s_mov_b32 s91, 0x00020000")
        a(f"s_and_b32 s{s_tmp2}, s{s_t}, 3")
        a(f"s_mul_i32 s{s_tmp2}, s{s_tmp2}, 36")
        a(f"s_add_u32 s{s_tmp2}, s{s_tmp2}, s55")
        a(f"s_mul_i32 s{s_tmp2}, s{s_tmp2}, {W2_RS}")
        a(f"s_mul_i32 s{s_tmp3}, s{s_w}, 5184")
        a(f"s_add_u32 s{s_tmp2}, s{s_tmp2}, s{s_tmp3}")
        a(f"v_mov_b32 v{V_PF}, s{s_tmp2}")
        a(f"v_cmp_gt_u32 vcc, 1, v{v_lane}")
        a(f"v_mov_b32 v{V_PF+1}, {OOB}")
        a("s_nop 0")
        a(f"v_cndmask_b32 v{V_PF}, v{V_PF+1}, v{V_PF}, vcc")
    def pf():
        a(f"buffer_load_dword v{V_PF+2}, v{V_PF}, s[88:91], 0 offen")
        vqh[0].issue("pf")
        a(f"v_add_u32 v{V_PF}, 128, v{V_PF}")
    vqh = [vq]
    for e in range(9):
        misc = [[] for _ in range(36)]
        need = [f"r{e+1}"] + ([f"x{e+1}"] if e + 1 <= 8 else [])
        if e + 1 <= 8: misc[4*e].append(lambda e=e: y_read(e + 1))
        if e < 3: misc[4*e+2].append(lambda e=e: x_dma(6 + e))
        if e == 2: misc[4*e+1] += next_pair_list()
        if "tpf" in g.flags: misc[4*e+2].append(pf)
        emit_epoch(g, e, 36, vq, lq, need, 512, V_Y, nofill, misc, [f"r{e+6}"], tagp="f", force_lgkm=lq.need(f"y{e}"), swap=True)
    stp()
    for x in mask_row_list(s_P): a(x)
    a(f"s_mov_b32 s{s_P}, s{s_Pn}")
    a(f"s_mov_b32 s{s_n}, 1")
    BARA = [0, 2, 4, 6, 8]
    a(".p2align 3")
    a("L_T:")
    if g.stamps:
        a(f"s_cmp_eq_u32 s{s_n}, 6")
        a("s_cbranch_scc0 L_T_nost")
        a("s_memtime s[92:93]")
        a("L_T_nost:")
    g.inloop = True
    vq = Q(); lq = Q()
    vqh[0] = vq
    for e in range(-9, 0):
        vq.issue(f"r{e+6}")
        if "tpf" in g.flags: vq.issue("pf")
    for s in range(0, 4): lq.issue(f"g{s}"); lq.issue(f"g{s}")
    excl = [4*e - 1 for e in BARA if e > 0] + [35]
    slots = [sl for sl in range(3, 30) if sl not in excl]
    pl = phi_groups()
    fill = [[] for _ in range(36)]; misc = [[] for _ in range(36)]
    endw = []
    tot = sum(8 if x.startswith("v_exp") else (4 if x.startswith("v_") else 0) for x in pl)
    per = tot / len(slots); acc = 0.0; si = 0
    for ins in pl:
        c = 8 if ins.startswith("v_exp") else (4 if ins.startswith("v_") else 0)
        if ins.startswith("ds_write"):
            if "twloop" in g.flags: misc[slots[min(si, len(slots)-1)]].append(ins)
            else: endw.append(ins)
            continue
        while si < len(slots) - 1 and acc + c / 2 > per * (si + 1): si += 1
        fill[slots[si]].append(ins); acc += c
    npl = next_pair_list()
    misc[8] += npl[:11]; misc[9] += npl[11:20]; misc[10] += npl[20:]
    def kvsig():
        lab = a.label("Lkvs")
        a(f"s_cmp_eq_u32 s{s_n}, 5")
        a(f"s_cbranch_scc0 {lab}")
        a(f"s_cmp_eq_u32 s{s_w}, 0")
        a(f"s_cbranch_scc0 {lab}")
        a(f"v_mov_b32 v{V_M}, 1")
        a(f"s_lshl_b32 s{s_tmp}, s{s_g4}, 2")
        a(f"s_add_u32 s{s_tmp}, s{s_tmp}, {DBG_KV}")
        a(f"v_mov_b32 v{V_M+1}, s{s_tmp}")
        a("s_mov_b64 exec, 1")
        a(f"buffer_atomic_add v{V_M}, v{V_M+1}, {sr(SG,4)}, 0 offen sc1")
        a("s_mov_b64 exec, -1")
        a(f"{lab}:")
    misc[16].append(kvsig)
    def zload():
        lab = a.label("Lzl")
        a(f"s_cmp_eq_u32 s{s_n}, 4")
        a(f"s_cbranch_scc0 {lab}")
        a(f"s_lshl_b32 s{s_tmp}, s{s_g4}, 2")
        a(f"s_add_u32 s{s_tmp}, s{s_tmp}, {DBG_Z}")
        a(f"v_mov_b32 v{V_M+2}, s{s_tmp}")
        a(f"buffer_load_dword v{v_zf}, v{V_M+2}, {sr(SG,4)}, 0 offen sc1")
        a(f"{lab}:")
    misc[13].append(zload)
    if "tpf" in g.flags:
        for e in range(9): misc[4*e+2].append(pf)
    if "oldpf" in g.flags:
        def pfwo():
            a(f"s_cmp_eq_u32 s{s_n}, 3")
            a(f"s_cbranch_scc1 L_T_pf")
            a(f"L_T_pfret:")
        misc[20].append(pfwo)
    mrl = mask_row_list(s_P)
    if endw:
        misc[31 - 1].append(f"v_mov_b32 v101, v{V_M+7}")
        endw = [x.replace(f"ds_write_b64 v{V_M+7},", "ds_write_b64 v101,") for x in endw]
    misc[32] += mrl[:7]; misc[33] += mrl[7:]
    def endx(s_):
        if s_ == 35:
            for x in endw:
                a(x); lq.issue("x")
    for e in range(9):
        bar = e in BARA
        nb = (e + 1) in BARA or e == 8
        tags = [f"r{e+1}", f"r{e+2}"] if e < 8 else [f"r{e+1}"]
        emit_epoch(g, e, 36, vq, lq, tags, 512, V_Y, fill, misc, [f"r{e+6}"], bar=bar, nextbar=nb, swap=True, end_extra=endx)
    a(f"s_cmp_eq_u32 s{s_n}, 4")
    a("s_cbranch_scc1 L_KV")
    a("L_KV_ret:")
    a(f"s_mov_b32 s{s_P}, s{s_Pn}")
    a(f"s_add_u32 s{s_n}, s{s_n}, 1")
    a(f"s_cmp_le_u32 s{s_n}, 6")
    a("s_cbranch_scc1 L_T")
    a("s_branch L_T_done")
    if "oldpf" in g.flags:
        a("L_T_pf:")
        a(f"s_mov_b32 s88, s{S_W2}")
        a(f"s_mov_b32 s89, s{S_W2+1}")
        a(f"s_mov_b32 s90, {SIZES['A_wo']}")
        a(f"s_mov_b32 s91, 0x00020000")
        a(f"s_and_b32 s{s_tmp2}, s{s_t}, 3")
        a(f"s_mul_i32 s{s_tmp2}, s{s_tmp2}, 36")
        a(f"s_mul_i32 s{s_tmp3}, s{s_g4}, 144")
        a(f"s_add_u32 s{s_tmp2}, s{s_tmp2}, s{s_tmp3}")
        a(f"s_mul_i32 s52, s{s_tmp2}, {W2_RS}")
        touch(g, None, 88, 1, 324, 52, ('lin',), V_M+2, 98+2)
        a("s_branch L_T_pfret")
    a("L_KV:")
    stp()
    a("s_nop 11")
    for ins in phi_groups(): a(ins)
    a("s_waitcnt lgkmcnt(0)")
    a("s_barrier")
    m = V_M
    a(f"s_mul_i32 s{s_tmp}, s{s_w}, {18*TS}")
    a(f"s_add_u32 s{s_tmp}, s{s_tmp}, {LDS_T}")
    a(f"v_lshrrev_b32 v{m}, 4, v{v_l16}")
    a(f"v_mul_u32_u24 v{m+1}, {TS}, v{m}")
    a(f"v_lshrrev_b32 v{m+2}, 5, v{v_lane}")
    a(f"v_lshlrev_b32 v{m+2}, 4, v{m+2}")
    a(f"v_add_u32 v{m+1}, v{m+1}, v{m+2}")
    a(f"v_add_u32 v{m+1}, s{s_tmp}, v{m+1}")
    a(f"v_add_u32 v{m+2}, {144*TS}, v{m+1}")
    a(f"v_cmp_eq_u32 vcc, 18, v{m}")
    a(f"v_mov_b32 v{m+3}, 0x3f803f80")
    BUF = [V_T, V_HP]
    def kvrd(s):
        b = BUF[s % 2]
        a(f"ds_read_b128 {vr(b,4)}, v{m+1} offset:{32*s}")
        a(f"ds_read_b128 {vr(b+4,4)}, v{m+2} offset:{32*s}")
    kvrd(0)
    for s in range(8):
        if s + 1 < 8: kvrd(s + 1)
        a(f"s_waitcnt lgkmcnt({2 if s + 1 < 8 else 0})")
        b = BUF[s % 2]
        for j in range(4):
            a(f"v_cndmask_b32 v{b+4+j}, v{b+4+j}, v{m+3}, vcc")
        a("s_nop 1")
        C = "0" if s == 0 else vr(V_ACC, 16)
        a(f"{MFMA} {vr(V_ACC,16)}, {vr(b,4)}, {vr(b+4,4)}, {C}")
        a("s_nop 3")
    a(f"s_waitcnt vmcnt(5)")
    a(f"v_readfirstlane_b32 s{s_tmp}, v{v_zf}")
    a("s_nop 3")
    a(f"s_cmp_ge_u32 s{s_tmp}, 1")
    a("s_cbranch_scc1 L_zok")
    a(f"s_lshl_b32 s{s_tmp}, s{s_g4}, 2")
    a(f"s_add_u32 s{s_tmp}, s{s_tmp}, {DBG_Z}")
    a(f"v_mov_b32 v{m+4}, s{s_tmp}")
    a("L_zpoll:")
    a(f"buffer_load_dword v{m+5}, v{m+4}, {sr(SG,4)}, 0 offen sc1")
    a("s_waitcnt vmcnt(0)")
    a(f"v_readfirstlane_b32 s{s_tmp}, v{m+5}")
    a("s_nop 3")
    a(f"s_cmp_ge_u32 s{s_tmp}, 1")
    a("s_cbranch_scc1 L_zok")
    a("s_sleep 1")
    a("s_branch L_zpoll")
    a("L_zok:")
    a(f"s_lshl_b32 s{s_tmp}, s{s_g4}, 3")
    a(f"s_add_u32 s{s_tmp}, s{s_tmp}, s{s_w}")
    a(f"s_mul_i32 s{s_tmp}, s{s_tmp}, {KVH}")
    a(f"s_add_u32 s{s_tmp}, s{s_tmp}, {WS_KV}")
    a(f"v_lshrrev_b32 v{m+2}, 5, v{v_lane}")
    a(f"v_mul_u32_u24 v{m+2}, {4*80}, v{m+2}")
    a(f"v_lshlrev_b32 v{m+3}, 2, v{m}")
    a(f"v_add_u32 v{m+2}, v{m+2}, v{m+3}")
    a(f"v_cmp_gt_u32 vcc, 19, v{m}")
    a(f"v_mov_b32 v{m+3}, {OOB}")
    a("s_nop 0")
    a(f"v_cndmask_b32 v{m+2}, v{m+3}, v{m+2}, vcc")
    a(f"v_cmp_gt_u32 vcc, 32, v{v_lane}")
    a("s_nop 1")
    a(f"v_cndmask_b32 v{m+4}, v{m+3}, v{m+2}, vcc")
    a("s_nop 7")
    for r in range(10):
        d0 = 8 * (r // 4) + (r % 4)
        vo = m + 2 if r < 8 else m + 4
        if "noatom" not in g.flags:
            a(f"buffer_atomic_add_f32 v{V_ACC+r}, v{vo}, {sr(SW,4)}, s{s_tmp} offen offset:{d0*80}")
    a("s_barrier")
    a(f"s_cmp_eq_u32 s{s_jj}, 1")
    a("s_cbranch_scc0 L_KV_nomv")
    a(f"v_add_u32 v{m+5}, {288*TS}, v{v_hw}")
    for q in range(4):
        a(f"ds_read_b64 {vr(V_T+2*q,2)}, v{m+5} offset:{16*q}")
    a("s_waitcnt lgkmcnt(0)")
    for q in range(4):
        a(f"ds_write_b64 v{v_hw}, {vr(V_T+2*q,2)} offset:{16*q}")
    a("L_KV_nomv:")
    a(f"v_add_u32 v{m+7}, {327*TS}, v{v_hw}")
    a(f"s_load_dwordx2 s[52:53], s[0:1], {KA['gate_w']}")
    a("s_waitcnt lgkmcnt(0)")
    a(f"s_mov_b32 s{SB}, s52")
    a(f"s_mov_b32 s{SB+1}, s53")
    a(f"s_mov_b32 s{SB+2}, {SIZES['gate_w']}")
    a(f"s_mov_b32 s{SB+3}, 0x00020000")
    a(f"s_cmp_lt_u32 s{s_w}, 2")
    a("s_cbranch_scc0 L_nogw")
    a(f"s_add_u32 m0, s{s_xw}, {LDS_GW}")
    a(f"v_lshlrev_b32 v{m}, 4, v{v_tid}")
    a(f"buffer_load_dwordx4 v{m}, {sr(SB,4)}, 0 offen lds")
    a("L_nogw:")
    stp()
    a("s_branch L_KV_ret")
    a("L_T_done:")
    g.inloop = False
    stp()
    m = V_M
    a(f"s_lshl_b32 s{s_tmp}, s{s_g4}, 2")
    a(f"s_add_u32 s{s_tmp}, s{s_tmp}, {DBG_KV}")
    a(f"v_mov_b32 v{m+4}, s{s_tmp}")
    a("L_kvpoll:")
    a(f"buffer_load_dword v{m+5}, v{m+4}, {sr(SG,4)}, 0 offen sc1")
    a("s_waitcnt vmcnt(0)")
    a(f"v_readfirstlane_b32 s{s_tmp}, v{m+5}")
    a("s_nop 3")
    a(f"s_cmp_ge_u32 s{s_tmp}, 16")
    a("s_cbranch_scc1 L_kvnopoll")
    a("s_sleep 2")
    a("s_branch L_kvpoll")
    a("L_kvnopoll:")
    stp()
    a(f"s_mul_i32 s{s_tmp}, s{s_g4}, {8*KVH}")
    a(f"s_add_u32 s{s_tmp}, s{s_tmp}, {WS_KV}")
    a(f"v_lshlrev_b32 v{m}, 4, v{v_tid}")
    a(f"buffer_load_dwordx4 {vr(V_ACC,4)}, v{m}, {sr(SW,4)}, s{s_tmp} offen sc0 sc1")
    a(f"v_add_u32 v{m+1}, 8192, v{m}")
    a(f"v_cmp_gt_u32 vcc, 11520, v{m+1}")
    a(f"v_mov_b32 v{m+2}, {OOB}")
    a("s_nop 0")
    a(f"v_cndmask_b32 v{m+1}, v{m+2}, v{m+1}, vcc")
    a(f"buffer_load_dwordx4 {vr(V_ACC+4,4)}, v{m+1}, {sr(SW,4)}, s{s_tmp} offen sc0 sc1")
    a("s_waitcnt lgkmcnt(0)")
    a("s_barrier")
    a(f"s_mov_b32 s{SD}, s{S_W2}")
    a(f"s_mov_b32 s{SD+1}, s{S_W2+1}")
    a(f"s_mov_b32 s{SD+2}, {SIZES['A_wo']}")
    a(f"s_mul_i32 s{s_F0}, s{s_g4}, {144*W2_RS}")
    def wo_pair_dma(j, ldsbase):
        a(f"s_add_u32 s{s_tmp}, s{s_Pd0}, {j}")
        a(f"s_cmp_ge_u32 s{s_tmp}, 9")
        a(f"s_cselect_b32 s{s_tmp2}, 9, 0")
        a(f"s_sub_u32 s{s_tmp}, s{s_tmp}, s{s_tmp2}")
        a(f"s_lshl_b32 s{s_tmp}, s{s_tmp}, 7")
        a(f"s_add_u32 s{s_dso}, s{s_F0}, s{s_tmp}")
        for mm in range(2):
            a(f"s_add_u32 m0, s{s_xw}, {ldsbase + mm*8192}")
            a(f"s_add_u32 s{s_tmp}, s{s_dso}, {mm*64*W2_RS}")
            a(f"buffer_load_dwordx4 v{v_doffB}, {sr(SD,4)}, s{s_tmp} offen lds")
        lab = a.label("Lw3")
        a(f"s_cmp_lt_u32 s{s_w}, 2")
        a(f"s_cbranch_scc0 {lab}")
        a(f"s_add_u32 m0, s{s_xw}, {ldsbase + 2*8192}")
        a(f"s_add_u32 s{s_tmp}, s{s_dso}, {2*64*W2_RS}")
        a(f"buffer_load_dwordx4 v{v_doffB}, {sr(SD,4)}, s{s_tmp} offen lds")
        a(f"{lab}:")
    for j in range(3): wo_pair_dma(j, j * WPAIR)
    if "profT" in g.flags: a("s_memtime s[80:81]")
    for ins in phi_groups(): a(ins)
    if "profT" in g.flags: a("s_memtime s[82:83]")
    a(f"s_cmp_eq_u32 s{s_i}, s{s_g4}")
    a("s_cbranch_scc0 L_nogate")
    a(f"v_lshrrev_b32 v{m+5}, 5, v{v_lane}")
    a(f"v_lshlrev_b32 v{m+5}, 4, v{m+5}")
    a(f"v_add_u32 v{m+5}, {LDS_GW}, v{m+5}")
    a(f"v_mov_b32 v{v_S}, 0")
    a(f"s_cmp_eq_u32 s{s_jj}, 1")
    a("s_cbranch_scc1 L_gate1")
    for half in range(2):
        if half == 1: a("L_gate1:")
        GB = [V_FR, V_FR + 4, V_FR + 8, V_FR + 12]
        ks = list(range(18 * half, 18 * half + 18))
        for idx in range(3):
            a(f"ds_read_b128 {vr(GB[idx % 4],4)}, v{m+5} offset:{32*ks[idx]}")
        for idx, s in enumerate(ks):
            if idx + 3 < 18:
                a(f"ds_read_b128 {vr(GB[(idx+3) % 4],4)}, v{m+5} offset:{32*ks[idx+3]}")
            a(f"s_waitcnt lgkmcnt({min(3, 17 - idx)})")
            for j in range(4):
                a(f"v_dot2c_f32_bf16 v{v_S}, v{GB[idx % 4]+j}, v{V_Y+4*s+j}")
        if half == 0: a("s_branch L_gate2")
    a("L_gate2:")
    a("s_nop 4")
    a(f"v_mov_b32 v{m+6}, v{v_S}")
    a("s_nop 1")
    a(f"v_permlane32_swap_b32 v{v_S}, v{m+6}")
    a("s_nop 1")
    a(f"v_add_f32 v{v_S}, v{v_S}, v{m+6}")
    a(f"s_lshl_b32 s{s_tmp2}, s{s_jj}, 7")
    a(f"s_add_u32 s{s_tmp2}, s{s_tmp2}, {LDS_GW + 1152}")
    a(f"v_lshrrev_b32 v{m+6}, 2, v{v_l16}")
    a(f"v_add_u32 v{m+6}, s{s_tmp2}, v{m+6}")
    a(f"ds_write_b32 v{m+6}, v{v_S}")
    a("L_nogate:")
    if "profT" in g.flags: a("s_memtime s[84:85]")
    a("s_waitcnt vmcnt(6)")
    a(f"v_lshlrev_b32 v{m}, 4, v{v_tid}")
    a(f"v_add_u32 v{m}, {LDS_O2}, v{m}")
    a(f"ds_write_b128 v{m}, {vr(V_ACC,4)}")
    a(f"ds_write_b128 v{m}, {vr(V_ACC+4,4)} offset:8192")
    a("s_waitcnt lgkmcnt(0)")
    a("s_barrier")
    a(f"v_lshrrev_b32 v{m}, 4, v{v_l16}")
    a(f"v_lshrrev_b32 v{m+1}, 5, v{v_lane}")
    a(f"v_mul_u32_u24 v{m+2}, {16*80}, v{m+1}")
    a(f"v_min_u32 v{m+3}, 19, v{m}")
    a(f"v_lshlrev_b32 v{m+3}, 2, v{m+3}")
    a(f"v_add_u32 v{m+2}, v{m+2}, v{m+3}")
    a(f"s_mul_i32 s{s_tmp}, s{s_w}, {KVH}")
    a(f"s_add_u32 s{s_tmp}, s{s_tmp}, {LDS_O2}")
    a(f"v_add_u32 v{m+2}, s{s_tmp}, v{m+2}")
    KL = V_G
    for j in range(16):
        a(f"ds_read_b32 v{KL+j}, v{m+2} offset:{j*80}")
    a(f"v_cmp_gt_u32 vcc, 19, v{m}")
    a(f"v_cmp_gt_u32 s[{s_mask}:{s_mask+1}], 32, v{v_lane}") if False else None
    a(f"v_mov_b32 v{m+3}, 32")
    a(f"v_cmp_lt_u32 s[{s_mask}:{s_mask+1}], v{v_lane}, v{m+3}")
    a("s_nop 3")
    a(f"s_and_b64 s[{s_mask}:{s_mask+1}], s[{s_mask}:{s_mask+1}], vcc")
    a("s_waitcnt lgkmcnt(0)")
    for j in range(16):
        msk = "vcc" if j < 2 else f"s[{s_mask}:{s_mask+1}]"
        a(f"v_cndmask_b32 v{KL+j}, 0, v{KL+j}, {msk}")
    for j in range(8):
        a(f"v_cvt_pk_bf16_f32 v{V_HP+j}, v{KL+2*j}, v{KL+2*j+1}")
    a(f"s_lshl_b32 s{s_tmp}, s{s_w}, 11")
    a(f"s_add_u32 s{s_tmp}, s{s_tmp}, {LDS_KVA}")
    a(f"v_lshlrev_b32 v{m}, 2, v{v_l16}")
    a(f"v_lshrrev_b32 v{m+1}, 5, v{v_lane}")
    a(f"v_lshlrev_b32 v{m+1}, 5, v{m+1}")
    a(f"v_add_u32 v{m}, v{m}, v{m+1}")
    a(f"v_add_u32 v{m}, s{s_tmp}, v{m}")
    a(f"ds_write_b128 v{m}, {vr(V_HP,4)}")
    a(f"ds_write_b128 v{m}, {vr(V_HP+4,4)} offset:16")
    a("s_waitcnt lgkmcnt(0)")
    a("s_barrier")
    a(f"s_cmp_eq_u32 s{s_w}, s{s_g4}")
    a("s_cbranch_scc0 L_nogate2")
    a(f"v_lshrrev_b32 v{m+6}, 2, v{v_l16}")
    a(f"v_add_u32 v{m+5}, {LDS_GW + 1152}, v{m+6}")
    a(f"ds_read_b32 v{v_S}, v{m+5}")
    a(f"ds_read_b32 v{m+4}, v{m+5} offset:128")
    a("s_waitcnt lgkmcnt(0)")
    a(f"v_add_f32 v{v_S}, v{v_S}, v{m+4}")
    a(f"v_mul_f32 v{v_S}, {f2u(-LOG2E):#x}, v{v_S}")
    a(f"v_exp_f32 v{v_S}, v{v_S}")
    a("s_nop 0")
    a(f"v_add_f32 v{v_S}, 1.0, v{v_S}")
    a(f"v_rcp_f32 v{v_S}, v{v_S}")
    a(f"s_lshl_b32 s{s_tmp}, s{s_t}, 7")
    a(f"s_lshl_b32 s{s_tmp2}, s{s_g4}, 5")
    a(f"s_add_u32 s{s_tmp}, s{s_tmp}, s{s_tmp2}")
    a(f"s_lshl_b32 s{s_tmp}, s{s_tmp}, 2")
    a(f"s_add_u32 s{s_tmp}, s{s_tmp}, {WS_G}")
    a("s_mov_b32 exec_hi, 0")
    a(f"buffer_store_dword v{v_S}, v{m+6}, {sr(SW,4)}, s{s_tmp} offen sc0 sc1")
    a("s_mov_b32 exec_hi, -1")
    a("L_nogate2:")
    stp()
    a(f"v_and_b32 v{m}, 15, v{v_lane}")
    a(f"v_lshrrev_b32 v{m}, 2, v{m}")
    a(f"v_lshrrev_b32 v{m+1}, 5, v{v_lane}")
    a(f"v_lshlrev_b32 v{m+2}, 3, v{m+1}")
    a(f"v_add_u32 v{m}, v{m}, v{m+2}")
    a(f"v_mul_u32_u24 v{m}, {TS}, v{m}")
    a(f"v_lshrrev_b32 v{m+2}, 4, v{v_lane}")
    a(f"v_and_b32 v{m+2}, 1, v{m+2}")
    a(f"v_lshlrev_b32 v{m+2}, 5, v{m+2}")
    a(f"v_add_u32 v{m}, v{m}, v{m+2}")
    a(f"v_and_b32 v{m+2}, 3, v{v_lane}")
    a(f"v_lshlrev_b32 v{m+2}, 3, v{m+2}")
    a(f"v_add_u32 v{m}, v{m}, v{m+2}")
    a(f"s_lshl_b32 s{s_tmp}, s{s_i}, 6")
    a(f"s_mul_i32 s{s_tmp2}, s{s_jj}, {4*18*TS}")
    a(f"s_add_u32 s{s_tmp}, s{s_tmp}, s{s_tmp2}")
    a(f"s_add_u32 s{s_tmp}, s{s_tmp}, {LDS_T}")
    a(f"v_add_u32 v{m}, s{s_tmp}, v{m}")
    a(f"v_lshlrev_b32 v{m+2}, 2, v{v_l16}")
    a(f"v_lshlrev_b32 v{m+3}, 4, v{m+1}")
    a(f"v_add_u32 v{m+2}, v{m+2}, v{m+3}")
    a(f"s_lshl_b32 s{s_tmp}, s{s_jj}, 13")
    a(f"s_add_u32 s{s_tmp}, s{s_tmp}, {LDS_KVA}")
    a(f"v_add_u32 v{m+2}, s{s_tmp}, v{m+2}")
    a(f"v_lshrrev_b32 v{m+3}, 4, v{v_l16}")
    a(f"v_mul_u32_u24 v{m+3}, {O2S}, v{m+3}")
    a(f"v_lshlrev_b32 v{m+4}, 3, v{m+1}")
    a(f"v_add_u32 v{m+3}, v{m+3}, v{m+4}")
    a(f"s_mul_i32 s{s_tmp}, s{s_i}, {32*O2S}")
    a(f"s_mul_i32 s{s_tmp2}, s{s_jj}, {4*36}")
    a(f"s_add_u32 s{s_tmp}, s{s_tmp}, s{s_tmp2}")
    a(f"s_add_u32 s{s_tmp}, s{s_tmp}, {LDS_O2}")
    a(f"v_add_u32 v{m+3}, s{s_tmp}, v{m+3}")
    for hh in range(4):
        FA, FB = V_Y + 16*hh, V_Y + 16*hh + 8
        for s in range(2):
            a(f"ds_read_b128 {vr(FA+4*s,4)}, v{m+2} offset:{hh*2048+32*s}")
            a(f"ds_read_b64_tr_b16 {vr(FB+4*s,2)}, v{m} offset:{(18*hh+16*s)*TS}")
            a(f"ds_read_b64_tr_b16 {vr(FB+4*s+2,2)}, v{m} offset:{(18*hh+16*s+4)*TS}")
        if hh == 1: a("s_waitcnt lgkmcnt(6)") if False else None
    a("s_waitcnt lgkmcnt(0)")
    for hh in range(4):
        FA, FB, R = V_Y + 16*hh, V_Y + 16*hh + 8, V_Y + 64 + 16*hh
        a(f"{MFMA} {vr(R,16)}, {vr(FA,4)}, {vr(FB,4)}, 0")
        a(f"{MFMA} {vr(R,16)}, {vr(FA+4,4)}, {vr(FB+4,4)}, {vr(R,16)}")
    a("s_nop 7")
    if "profT" in g.flags: a("s_memtime s[88:89]")
    for hh in range(4):
        R = V_Y + 64 + 16*hh
        if hh == 3: a("s_nop 7")
        a(f"v_mov_b32 v{V_T}, v{R+10}")
        a(f"v_mov_b32 v{V_T+1}, v{R+10}")
        a("s_nop 1")
        a(f"v_permlane32_swap_b32 v{V_T+1}, v{V_T}")
        a("s_nop 1")
        a(f"v_add_f32 v{V_T+1}, {f2u(1e-6):#x}, v{V_T+1}")
        a(f"v_rcp_f32 v{V_T+1}, v{V_T+1}")
        a("s_nop 0")
        for r in range(10): a(f"v_mul_f32 v{R+r}, v{R+r}, v{V_T+1}")
        for p in range(5): a(f"v_cvt_pk_bf16_f32 v{V_HP+p}, v{R+2*p}, v{R+2*p+1}")
        if hh % 2 == 0:
            a(f"ds_write_b64 v{m+3}, {vr(V_HP,2)} offset:{hh*36}")
            a(f"ds_write_b64 v{m+3}, {vr(V_HP+2,2)} offset:{hh*36 + 16}")
        else:
            for p in range(4):
                a(f"ds_write_b32 v{m+3}, v{V_HP+p} offset:{hh*36 + (p//2)*16 + (p%2)*4}")
        a("s_mov_b32 exec_hi, 0")
        a(f"ds_write_b32 v{m+3}, v{V_HP+4} offset:{hh*36 + 32}")
        a("s_mov_b32 exec_hi, -1")
    a("s_waitcnt vmcnt(0) lgkmcnt(0)")
    a("s_barrier")
    a(f"v_lshrrev_b32 v{m}, 4, v{v_l16}")
    if "profT" in g.flags: a("s_memtime s[90:91]")
    a(f"v_mul_u32_u24 v{m}, {O2S}, v{m}")
    a(f"v_lshrrev_b32 v{m+1}, 5, v{v_lane}")
    a(f"v_lshlrev_b32 v{m+1}, 4, v{m+1}")
    a(f"v_add_u32 v{m}, v{m}, v{m+1}")
    a(f"s_mul_i32 s{s_tmp}, s{s_i}, {32*O2S}")
    a(f"s_add_u32 s{s_tmp}, s{s_tmp}, {LDS_O2}")
    a(f"v_add_u32 v{m}, s{s_tmp}, v{m}")
    for s in range(9):
        a(f"ds_read_b128 {vr(V_Y+4*s,4)}, v{m} offset:{32*s}")
    a("s_waitcnt lgkmcnt(0)")
    a("s_barrier")
    stp()
    a(f"s_lshl_b32 s{s_tmp}, s{s_t}, 2")
    a(f"s_add_u32 s{s_tmp}, s{s_tmp}, s{s_i}")
    a(f"s_mul_i32 s{s_tmp}, s{s_tmp}, {18*16}")
    a(f"s_add_u32 s{s_tmp}, s{s_tmp}, s{s_g4}")
    a(f"s_add_u32 s{s_tmp}, s{s_tmp}, 12")
    a(f"s_lshl_b32 s{s_posbase}, s{s_tmp}, 11")
    a(f"s_add_u32 s{s_posbase}, s{s_posbase}, {WS_P}")
    a(f"s_lshl_b32 s{s_tmp}, s{s_jj}, 15")
    a(f"s_add_u32 s{s_posbase}, s{s_posbase}, s{s_tmp}")
    a(f"s_mov_b32 s{s_P}, s{s_Pd0}")
    a(f"s_mov_b32 s{s_n}, 0")
    sf = " nt" if "stnt" in g.flags else (" sc0 sc1" if "stsc" in g.flags else (" sc1" if "stsc1" in g.flags else (" sc0 sc1 nt" if "stall" in g.flags else "")))
    st0 = f"buffer_store_dwordx4 {vr(V_HP,4)}, v{v_st}, {sr(SW,4)}, s{s_pos} offen{sf}"
    st1 = f"buffer_store_dwordx4 {vr(V_HP+4,4)}, v{v_st}, {sr(SW,4)}, s{s_pos} offen offset:1024{sf}"
    a(f"s_mov_b32 s{s_pos}, {OOB}")
    FW = V_Y + 40
    def wrd(s):
        r = FW + 4 * s
        a(f"ds_read_b64_tr_b16 {vr(r,2)}, v{v_rd} offset:{s*2048}")
        a(f"ds_read_b64_tr_b16 {vr(r+2,2)}, v{v_rd} offset:{s*2048+512}")
    a(f"v_mov_b32 v{v_rd}, v{v_abase}")
    for s in range(9): wrd(s)
    a(f"s_mov_b32 s{s_ro}, {WPAIR}")
    a(".p2align 3")
    a("L_W:")
    a(f"s_cmp_le_u32 s{s_n}, 6")
    a("s_cbranch_scc1 L_W_act")
    a("L_W_go:")
    a(f"v_add_u32 v{v_rd}, s{s_ro}, v{v_abase}")
    for s in range(9):
        if s == 0:
            a(f"s_waitcnt lgkmcnt(15)") if False else None
        n_younger = 2 * (8 - s) + 2 * s
        if s % 3 == 0:
            ny = 2 * (8 - (s + 2)) + 2 * s
            a(f"s_waitcnt lgkmcnt({min(15, ny)})")
        D = V_G if s == 8 else V_ACC
        C = "0" if s == 0 else vr(V_ACC, 16)
        a(f"{MFMA} {vr(D,16)}, {vr(FW+4*s,4)}, {vr(V_Y+4*s,4)}, {C}")
        if s == 1:
            for r in range(4): a(f"v_cvt_pk_bf16_f32 v{V_HP+r}, v{V_G+2*r}, v{V_G+2*r+1}")
        if s == 2:
            for r in range(4, 8): a(f"v_cvt_pk_bf16_f32 v{V_HP+r}, v{V_G+2*r}, v{V_G+2*r+1}")
        wrd(s)
        if s == 3: a(st0)
        if s == 5: a(st1)
        if s == 6:
            a(f"s_lshl_b32 s{s_tmp}, s{s_P}, 16")
            a(f"s_add_u32 s{s_pos}, s{s_posbase}, s{s_tmp}")
            a(f"s_add_u32 s{s_P}, s{s_P}, 1")
            a(f"s_cmp_eq_u32 s{s_P}, 9")
            a(f"s_cselect_b32 s{s_P}, 0, s{s_P}")
        if s == 7:
            a(f"s_add_u32 s{s_n}, s{s_n}, 1")
            a(f"s_add_u32 s{s_tmp}, s{s_n}, 1")
            a(f"s_mul_i32 s{s_ro}, s{s_tmp}, {WPAIR}")
            a(f"s_cmp_ge_u32 s{s_tmp}, 3")
            a(f"s_cselect_b32 s{s_tmp2}, {LDS_H - 3*WPAIR}, 0")
            a(f"s_add_u32 s{s_ro}, s{s_ro}, s{s_tmp2}")
            a(f"s_cmp_ge_u32 s{s_tmp}, 8")
            a(f"s_cselect_b32 s{s_ro}, 0, s{s_ro}")
    a(f"s_cmp_lt_u32 s{s_n}, 9")
    a("s_cbranch_scc1 L_W")
    a("s_branch L_W_done")
    a("L_W_act:")
    for n in range(7):
        a(f"s_cmp_eq_u32 s{s_n}, {n}")
        a(f"s_cbranch_scc1 L_W_a{n}")
    a("s_branch L_W_go")
    a("L_W_a0:")
    wo_pair_dma(3, LDS_H + 0 * WPAIR); wo_pair_dma(4, LDS_H + 1 * WPAIR)
    a("s_branch L_W_go")
    a("L_W_a1:")
    wo_pair_dma(5, LDS_H + 2 * WPAIR); wo_pair_dma(6, LDS_H + 3 * WPAIR)
    a("s_branch L_W_go")
    a("L_W_a2:")
    a("s_waitcnt vmcnt(8)")
    a("s_barrier")
    wo_pair_dma(7, LDS_H + 4 * WPAIR)
    wo_pair_dma(8, 0)
    a("s_branch L_W_go")
    a("L_W_a3:")
    a("s_branch L_W_go")
    a("L_W_a4:")
    a("s_waitcnt vmcnt(10)")
    a("s_barrier")
    a("s_branch L_W_go")
    a("L_W_a5:")
    a("s_branch L_W_go")
    a("L_W_a6:")
    a("s_waitcnt vmcnt(8)")
    a("s_barrier")
    a("s_branch L_W_go")
    a("L_W_done:")
    a("s_nop 15")
    for r in range(8): a(f"v_cvt_pk_bf16_f32 v{V_HP+r}, v{V_G+2*r}, v{V_G+2*r+1}")
    a(st0); a(st1)
    a("s_waitcnt vmcnt(0) lgkmcnt(0)")
    stp()
    if g.stamps:
        a("s_waitcnt lgkmcnt(0)")
        a(f"s_lshl_b32 s{s_tmp}, s2, 3")
        a(f"s_add_u32 s{s_tmp}, s{s_tmp}, s{s_w}")
        a(f"s_lshl_b32 s{s_tmp}, s{s_tmp}, 6")
        a(f"s_add_u32 s{s_tmp}, s{s_tmp}, {WS_STAMP}")
        a("s_mov_b64 exec, 1")
        a(f"v_mov_b32 v{V_M+1}, 0")
        stl.append(92)
        if "profT" in g.flags: stl[:] = [60, stl[5], stl[6], 80, 82, 84, 86, 88, 90, stl[8], stl[9]]
        for i, r in enumerate(stl):
            a(f"v_mov_b32 v{V_M}, s{r}")
            a(f"buffer_store_dword v{V_M}, v{V_M+1}, {sr(SW,4)}, s{s_tmp} offen offset:{4*i}")
        a("s_waitcnt vmcnt(0)")
```

```python
from asmlib import *
from mlp3 import *
from fin import WS_FLAG, DBG_NONCE, gen_nonce_init
WS_FLAGE = WS_FLAG + 4096

def gen_signal(g, jreg, pre):
    a = g.a
    m = V_M
    a("s_mov_b64 exec, -1")
    a(f"v_mov_b32 v{m}, {DBG_NONCE}")
    a(f"{pre}_poll:")
    a(f"buffer_load_dword v{m+1}, v{m}, {sr(SG,4)}, 0 offen sc1")
    a("s_waitcnt vmcnt(0)")
    a(f"v_readfirstlane_b32 s52, v{m+1}")
    a("s_nop 3")
    a("s_cmp_eq_u32 s52, 0")
    a(f"s_cbranch_scc1 {pre}_poll")
    a("s_barrier")
    a(f"s_lshl_b32 s53, s{s_t}, 7")
    a(f"s_add_u32 s53, s53, {WS_FLAG}")
    a(f"s_cmp_eq_u32 s{s_w}, 0")
    a(f"s_cbranch_scc0 {pre}_nosig")
    a(f"s_lshl_b32 s{s_tmp}, s{jreg}, 2")
    a(f"v_mov_b32 v{m}, s{s_tmp}")
    a(f"v_mov_b32 v{m+1}, s52")
    a("s_mov_b64 exec, 1")
    a(f"buffer_store_dword v{m+1}, v{m}, {sr(SW,4)}, s53 offen sc0 sc1")
    a("s_mov_b64 exec, -1")
    a(f"{pre}_nosig:")

def wait_flags(g, lo, n, pre, base=53):
    a = g.a
    m = V_M
    a(f"s_cmp_eq_u32 s{s_w}, 0")
    a(f"s_cbranch_scc0 {pre}_done")
    a(f"v_min_u32 v{m}, {n-1}, v{v_lane}")
    a(f"v_add_u32 v{m}, {lo}, v{m}")
    a(f"v_lshlrev_b32 v{m}, 2, v{m}")
    a(f"{pre}_wait:")
    a(f"buffer_load_dword v{m+1}, v{m}, {sr(SW,4)}, s{base} offen sc0 sc1")
    a("s_waitcnt vmcnt(0)")
    a(f"v_cmp_ne_u32 vcc, s52, v{m+1}")
    a("s_nop 4")
    a("s_cmp_eq_u64 vcc, 0")
    a(f"s_cbranch_scc1 {pre}_done")
    a("s_sleep 1")
    a(f"s_branch {pre}_wait")
    a(f"{pre}_done:")
    a("s_barrier")

def gen_final_att(g, jreg):
    a = g.a
    RT = "rtf" in g.flags
    if RT: a("s_memrealtime s[64:65]")
    gen_signal(g, jreg, "L_fa")
    a("s_waitcnt vmcnt(0)")
    if RT:
        a("s_memrealtime s[68:69]")
        a("s_waitcnt lgkmcnt(0)")
        a("s_lshl_b32 s80, s2, 4")
        a("s_add_u32 s80, s80, 0x3100000")
        a("s_mov_b64 exec, 1")
        a("v_mov_b32 v1, 0")
        a("v_mov_b32 v2, s96"); a("v_mov_b32 v3, s64"); a("v_mov_b32 v4, s64"); a("v_mov_b32 v5, s68")
        a(f"s_cmp_eq_u32 s{s_w}, 0")
        a("s_cbranch_scc0 L_fa_x")
        a(f"buffer_store_dwordx4 v[2:5], v1, {sr(SW,4)}, s80 offen")
        a("s_waitcnt vmcnt(0)")
        a("L_fa_x:")

def gen_final_mlp(g, jreg):
    a = g.a
    SO, SB2 = 4, 20
    RT = "rtf" in g.flags
    a.c("final reduce (MLP WGs)")
    if RT: a("s_memrealtime s[64:65]")
    a(f"s_load_dwordx2 s[{SO}:{SO+1}], s[0:1], {KA['out']}")
    a(f"s_load_dwordx2 s[{SB2}:{SB2+1}], s[0:1], {KA['B_b2']}")
    gen_signal(g, jreg, "L_fm")
    a("s_waitcnt lgkmcnt(0)")
    a(f"s_mov_b32 s{SO+2}, {SIZES['out']}")
    a(f"s_mov_b32 s{SO+3}, 0x00020000")
    a(f"s_mov_b32 s{SB2+2}, {SIZES['B_b2']}")
    a(f"s_mov_b32 s{SB2+3}, 0x00020000")
    if RT: a("s_memrealtime s[82:83]")
    def unit_addr(ureg, sbase):
        a(f"s_lshr_b32 s54, s{ureg}, 1")
        a(f"s_and_b32 s55, s{ureg}, 1")
        a(f"s_mul_i32 s56, s{s_t}, 72")
        a(f"s_add_u32 s56, s56, s54")
        a(f"s_lshl_b32 s57, s56, 15")
        a(f"s_lshl_b32 s58, s55, 10")
        a(f"s_add_u32 s57, s57, s58")
        a(f"s_add_u32 s{sbase}, s57, {WS_P}")
        a(f"s_mul_i32 s58, s54, 3641")
        a(f"s_lshr_b32 s{sbase+2}, s58, 16")
        a(f"s_mul_i32 s59, s{sbase+2}, 18")
        a(f"s_sub_u32 s59, s54, s59")
        a(f"s_lshl_b32 s59, s59, 5")
        a(f"s_lshl_b32 s55, s55, 4")
        a(f"s_add_u32 s{sbase+1}, s59, s55")
    def unit_loads1(V, sbase):
        a(f"s_mov_b32 s57, s{sbase}")
        for sl in range(12):
            a(f"buffer_load_dwordx4 {vr(V+4*sl,4)}, v{v_st}, {sr(SW,4)}, s57 offen sc0 sc1")
            if sl < 11: a(f"s_add_u32 s57, s57, 2048")
        A0 = V + 48
        a(f"v_lshrrev_b32 v{A0}, 5, v{v_lane}")
        a(f"v_lshlrev_b32 v{A0+1}, 2, v{A0}")
        a(f"v_add_u32 v{A0+1}, s{sbase+1}, v{A0+1}")
        a(f"v_lshlrev_b32 v{A0+1}, 1, v{A0+1}")
        a(f"buffer_load_dwordx2 {vr(A0+2,2)}, v{A0+1}, {sr(SB2,4)}, 0 offen")
        a(f"buffer_load_dwordx2 {vr(A0+4,2)}, v{A0+1}, {sr(SB2,4)}, 0 offen offset:16")
        a(f"v_lshrrev_b32 v{A0+6}, 4, v{v_l16}")
        a(f"s_lshl_b32 s56, s{s_t}, 7")
        a(f"s_lshl_b32 s58, s{sbase+2}, 5")
        a(f"s_add_u32 s56, s56, s58")
        a(f"v_add_u32 v{A0+6}, s56, v{A0+6}")
        a(f"v_mul_u32_u24 v{A0+9}, 1152, v{A0+6}")
        a(f"v_lshlrev_b32 v{A0+7}, 4, v{A0}")
        a(f"v_add_u32 v{A0+9}, v{A0+9}, v{A0+7}")
        a(f"s_lshl_b32 s59, s{sbase+1}, 1")
        a(f"v_add_u32 v{A0+9}, s59, v{A0+9}")
        a(f"v_lshlrev_b32 v{A0+7}, 2, v{A0+6}")
    SL, SH = 34, 35
    def acc_slice(dst, src, first):
        for r in range(4):
            if first:
                a(f"v_lshlrev_b32 v{dst+2*r}, 16, v{src+r}")
                a(f"v_and_b32 v{dst+2*r+1}, 0xffff0000, v{src+r}")
            else:
                a(f"v_dot2c_f32_bf16 v{dst+2*r}, v{SL}, v{src+r}")
                a(f"v_dot2c_f32_bf16 v{dst+2*r+1}, v{SH}, v{src+r}")
    def sum1(V, younger):
        A = V + 60
        for sl in range(12):
            a(f"s_waitcnt vmcnt({min(63, 11 - sl + 2 + younger)})")
            acc_slice(A, V + 4*sl, sl == 0)
            if sl == 0: a("s_nop 1")
        a(f"s_waitcnt vmcnt({younger})")
        A0 = V + 48
        acc_slice(A, A0 + 2, False)
        a("s_nop 3")
    def unit_loads2(V, sbase):
        a(f"s_add_u32 s57, s{sbase}, {12*2048}")
        for sl in range(4):
            a(f"buffer_load_dwordx4 {vr(V+4*sl,4)}, v{v_st}, {sr(SW,4)}, s57 offen sc0 sc1")
            if sl < 3: a(f"s_add_u32 s57, s57, 2048")
        a(f"s_mov_b32 s58, {WS_G}")
        a(f"buffer_load_dword v{V+48+8}, v{V+48+7}, {sr(SW,4)}, s58 offen sc0 sc1")
    def fin2(V, younger):
        A = V + 60; B = V + 16; T0, T1 = 32, 33; A0 = V + 48
        for sl in range(4):
            a(f"s_waitcnt vmcnt({3 - sl + 1 + younger})")
            acc_slice(B, V + 4*sl, sl == 0)
            if sl == 0: a("s_nop 1")
        a("s_nop 3")
        a(f"s_waitcnt vmcnt({younger})")
        for e in range(8):
            a(f"v_sub_f32 v{B+e}, v{B+e}, v{A+e}")
            a(f"v_fma_f32 v{A+e}, v{A0+8}, v{B+e}, v{A+e}")
        for r in range(4):
            a(f"v_cvt_pk_bf16_f32 v{36+r}, v{A+2*r}, v{A+2*r+1}")
        a("s_nop 1")
        a("v_permlane32_swap_b32 v36, v38")
        a("v_permlane32_swap_b32 v37, v39")
        a("s_nop 1")
        a(f"buffer_store_dwordx4 v[36:39], v{A0+9}, {sr(SO,4)}, 0 offen")
    a(f"v_mov_b32 v{SL}, 0x00003f80")
    a(f"v_mov_b32 v{SH}, 0x3f800000")
    V1, V2 = 64, 140
    a(f"s_lshr_b32 s63, s{jreg}, 2")
    a(f"s_and_b32 s60, s{jreg}, 3")
    def unit_index(dst, posreg, wreg):
        a(f"s_add_u32 s{dst}, s{s_Pd0}, s{posreg}")
        a(f"s_cmp_ge_u32 s{dst}, 9")
        a(f"s_cselect_b32 s54, 9, 0")
        a(f"s_sub_u32 s{dst}, s{dst}, s54")
        a(f"s_lshl_b32 s{dst}, s{dst}, 1")
        a(f"s_lshr_b32 s54, s{wreg}, 1")
        a(f"s_and_b32 s54, s54, 1")
        a(f"s_add_u32 s{dst}, s{dst}, s54")
        a(f"s_mul_i32 s54, s60, 18")
        a(f"s_add_u32 s{dst}, s{dst}, s54")
        a(f"s_lshl_b32 s{dst}, s{dst}, 1")
        a(f"s_and_b32 s54, s{wreg}, 1")
        a(f"s_add_u32 s{dst}, s{dst}, s54")
    a(f"s_lshr_b32 s61, s{s_w}, 2")
    a(f"s_mul_i32 s61, s61, 3")
    a(f"s_add_u32 s61, s61, s63")
    unit_index(78, 61, s_w)
    a(f"s_add_u32 s79, s53, 4096")
    wait_flags(g, 0, 12, "L_fe", base=79)
    unit_addr(78, 70)
    unit_loads1(V1, 70)
    wait_flags(g, 0, 12, "L_f1")
    if RT: a("s_memrealtime s[84:85]")
    a(f"s_cmp_lt_u32 s{s_w}, 4")
    a("s_cbranch_scc0 L_f_one")
    a(f"s_add_u32 s61, s63, 6")
    unit_index(78, 61, s_w)
    unit_addr(78, 74)
    unit_loads1(V2, 74)
    sum1(V1, 14)
    sum1(V2, 0)
    if RT: a("s_memrealtime s[66:67]")
    wait_flags(g, 12, 4, "L_f2a")
    unit_loads2(V1, 70)
    unit_loads2(V2, 74)
    fin2(V1, 5)
    fin2(V2, 1)
    a("s_branch L_f_end")
    a("L_f_one:")
    sum1(V1, 0)
    wait_flags(g, 12, 4, "L_f2b")
    unit_loads2(V1, 70)
    fin2(V1, 0)
    a("L_f_end:")
    a("s_waitcnt vmcnt(0)")
    if RT:
        a("s_memrealtime s[68:69]")
        a("s_waitcnt lgkmcnt(0)")
        a("s_lshl_b32 s80, s2, 4")
        a("s_add_u32 s80, s80, 0x3100000")
        a("s_mov_b64 exec, 1")
        a("v_mov_b32 v1, 0")
        a("v_mov_b32 v2, s96"); a("v_mov_b32 v3, s64"); a("v_mov_b32 v4, s66"); a("v_mov_b32 v5, s68")
        if "rtf2" in g.flags:
            a("v_mov_b32 v2, s64"); a("v_mov_b32 v3, s82"); a("v_mov_b32 v4, s84"); a("v_mov_b32 v5, s66")
        a(f"s_cmp_eq_u32 s{s_w}, 0")
        a("s_cbranch_scc0 L_fn_x")
        a(f"buffer_store_dwordx4 v[2:5], v1, {sr(SW,4)}, s80 offen")
        a("s_waitcnt vmcnt(0)")
        a("L_fn_x:")
```

```python
from asmlib import *
import struct

NS = 8
SLOT = 8192
RINGSZ = NS * SLOT
LDS_RING = 0
LDS_H = 65536
LDS_TOTAL = 163840
LDS_SCR = 6 * SLOT
LDS_STAT = LDS_H
import sys as _s
WS_BASE = 0
for _f in _s.argv:
    if _f.startswith('wsb'): WS_BASE = int(_f[3:]) << 20
WS_P = WS_BASE
WS_CSP = WS_BASE + 37748736
WS_G = WS_CSP + 12*16*384*4
WS_FLAGE_CONST = ((WS_G + 2048 * 4 + 32 * 18 * 80 + 4096 + 4095) // 4096 * 4096) + 4096
WS_STAMP = 0x3000000 if WS_BASE == 0 else 0
W1_RS = 9216
W2_RS = 1152
X_RS = 1152
LOG2E = 1.4426950408889634
K1C = -2.0 * 0.7978845608028654 * LOG2E
K2C = -2.0 * 0.7978845608028654 * 0.044715 * LOG2E
def f2u(x): return struct.unpack("<I", struct.pack("<f", x))[0]
OOB = 0x40000000

SX, SD, SW, SG, SB = 4, 8, 12, 16, 20
S_W2 = 24
s_t, s_js, s_w, s_i, s_jj, s_F0 = 28, 29, 30, 31, 32, 33
s_n = 34
s_ro, s_wo, s_wbase = 35, 36, 37
s_dso, s_dstep = 38, 39
s_P, s_Pn = 40, 41
s_tmp, s_tmp2, s_tmp3 = 42, 43, 44
s_pos, s_posbase, s_xso, s_xw, s_Pd0 = 45, 46, 47, 48, 49
s_hwn = 50
S_ST = 60
v_tid, v_lane, v_doff, v_doffB, v_abaseA, v_abase, v_rd = 0, 1, 2, 3, 4, 5, 6
v_abaseB = 7
v_hw, v_l16 = 8, 9
v_k1r, v_k2r, v_rstd = 10, 11, 12
v_S, v_xrd, v_st = 13, 14, 15
V_T, V_HP, V_FR, V_M = 16, 24, 32, 56
V_ACC, V_G, V_CS, V_Y = 64, 80, 96, 112
V_AUGA, V_AUGB = 96, 100
NB, PD = 6, 4
MFMA = "v_mfma_f32_32x32x16_bf16"
def vr(a, n): return f"v[{a}:{a+n-1}]"
def sr(a, n): return f"s[{a}:{a+n-1}]"

class Q:
    def __init__(self): self.q = []
    def issue(self, tag): self.q.append(tag)
    def need(self, *tags):
        last = -1
        for idx, tg in enumerate(self.q):
            if tg in tags: last = idx
        assert last >= 0, f"{tags} not in queue"
        return len(self.q) - 1 - last

class Gen:
    def __init__(self, stamps=False, flags=()):
        self.flags = set(flags)
        self.a = Asm()
        self.stamps = stamps
        self.nst = 0
        self.inloop = False
    def stamp(self):
        if self.stamps:
            i = self.nst; self.nst += 1
            self.a(f"{'s_memrealtime' if 'stampRT' in self.flags else 's_memtime'} s[{S_ST+2*i}:{S_ST+2*i+1}]")
    def flagval(self, pre, default):
        for f in self.flags:
            if f.startswith(pre) and f[len(pre):].isdigit(): return int(f[len(pre):])
        return default
    def dma_a(self):
        L = [f"s_and_b32 m0, s{s_wo}, {RINGSZ-1}", f"s_add_u32 s{s_wo}, s{s_wo}, {SLOT}"]
        if not ("nodma" in self.flags and self.inloop):
            L.append(f"buffer_load_dwordx4 v{v_doff}, {sr(SD,4)}, s{s_dso} offen lds")
        return L
    def dma_b(self):
        return [f"s_add_u32 s{s_dso}, s{s_dso}, s{s_dstep}"]
    def rd_salu(self):
        return []
    def rd_valu(self):
        return [f"v_add_u16 v{v_rd}, {SLOT}, v{v_rd}"]
    def dma_full(self, vq, tag):
        for x in self.dma_a(): self.a(x)
        vq.issue(tag)
        for x in self.dma_b(): self.a(x)
    def frag_read(self, lq, kslot, buf, second, tag):
        a = self.a
        r = V_FR + 4 * buf
        a(f"ds_read_b64_tr_b16 {vr(r,2)}, v{v_rd} offset:{kslot*2048}")
        a(f"ds_read_b64_tr_b16 {vr(r+2,2)}, v{v_rd} offset:{kslot*2048+second}")
        lq.issue(tag); lq.issue(tag)

USE_FMA = True
def gelu_chain(e, T):
    G = V_G + e
    if USE_FMA:
        return [(f"v_mul_f32 v{T}, v{G}, v{G}", 4), (f"v_fma_f32 v{T}, v{T}, v{v_k2r}, v{v_k1r}", 4),
                (f"v_mul_f32 v{T}, v{G}, v{T}", 4), (f"v_exp_f32 v{T}, v{T}", 8), (f"v_add_f32 v{T}, 1.0, v{T}", 4),
                (f"v_rcp_f32 v{T}, v{T}", 8), (f"v_mul_f32 v{T}, v{G}, v{T}", 4)]
    return [(f"v_mul_f32 v{T}, v{G}, v{G}", 4), (f"v_mul_f32 v{T}, v{T}, v{v_k2r}", 4), (f"v_add_f32 v{T}, v{T}, v{v_k1r}", 4),
            (f"v_mul_f32 v{T}, v{G}, v{T}", 4), (f"v_exp_f32 v{T}, v{T}", 8), (f"v_add_f32 v{T}, 1.0, v{T}", 4),
            (f"v_rcp_f32 v{T}, v{T}", 8), (f"v_mul_f32 v{T}, v{G}, v{T}", 4)]

TSH = 0
DSW = 'b128'
def gelu_sched(slots, nslots, caps, maxT=2, GS=4, gapP=2, gapT=3):
    NT = 8
    chains = [gelu_chain(e, V_T + ((e + TSH) % NT)) for e in range(16)]
    NOPS = len(chains[0])
    pos = [0] * 16; done_cvt = [False] * 8; last = [-10] * 16
    fill = [[] for _ in range(nslots)]; dsw = [[] for _ in range(nslots)]
    gi = 0; wrote = [False, False]
    for s in slots:
        budget = caps[s]; nT = 0; progress = True
        while budget > 0 and progress:
            progress = False
            for p in range(8):
                if not done_cvt[p] and pos[2*p] == NOPS and pos[2*p+1] == NOPS and budget >= 4 and gi - max(last[2*p], last[2*p+1]) >= 1:
                    fill[s].append(f"v_cvt_pk_bf16_f32 v{V_HP+p}, v{V_T+(2*p+TSH)%NT}, v{V_T+(2*p+1+TSH)%NT}")
                    done_cvt[p] = True; budget -= 4; gi += 1; progress = True
                    if DSW == "pl": dsw[s].append(f"ds_write_b32 v{v_hw}, v{V_HP+p} offset:{p*256}")
                    break
            if progress: continue
            best = None
            for e in range(16):
                if pos[e] >= NOPS: continue
                if e >= NT and pos[e] == 0 and not done_cvt[(e - NT) // 2]: continue
                ins, c = chains[e][pos[e]]
                if c > budget: continue
                if c == 8 and nT >= maxT: continue
                gap = gi - last[e]
                if pos[e] > 0:
                    prev_trans = chains[e][pos[e]-1][1] == 8
                    if gap < (gapT if prev_trans else gapP): continue
                key = ((e // GS) * NOPS + pos[e]) * GS + (e % GS)
                if best is None or key < best[0]: best = (key, e)
            if best is not None:
                e = best[1]
                ins, c = chains[e][pos[e]]
                fill[s].append(ins); pos[e] += 1; last[e] = gi; gi += 1; budget -= c
                if c == 8: nT += 1
                progress = True
        gi += 3
        for ks in range(2):
            if DSW == "pl":
                if all(done_cvt[4*ks:4*ks+4]): wrote[ks] = True
                continue
            if not wrote[ks] and all(done_cvt[4*ks:4*ks+4]):
                if DSW == "b64":
                    dsw[s].append(f"ds_write_b64 v{v_hw}, {vr(V_HP+4*ks,2)} offset:{ks*1024}")
                    dsw[s].append(f"ds_write_b64 v{v_hw}, {vr(V_HP+4*ks+2,2)} offset:{ks*1024+8}")
                elif DSW == "w2":
                    dsw[s].append(f"ds_write2_b64 v{v_hw}, {vr(V_HP+4*ks,2)}, {vr(V_HP+4*ks+2,2)} offset0:{ks*128} offset1:{ks*128+1}")
                elif DSW == "b32":
                    for j in range(4): dsw[s].append(f"ds_write_b32 v{v_hw}, v{V_HP+4*ks+j} offset:{ks*1024+4*j}")
                else:
                    dsw[s].append(f"ds_write_b128 v{v_hw}, {vr(V_HP+4*ks,4)} offset:{ks*1024}")
                wrote[ks] = True
    ok = all(done_cvt) and all(wrote)
    return ok, fill, dsw

def gelu_plain():
    L = []
    for q in range(4):
        T = [V_T + (q % 2) * 4 + e for e in range(4)]
        ch = [gelu_chain(4*q+e, T[e]) for e in range(4)]
        for o in range(len(ch[0])):
            for e in range(4): L.append(ch[e][o][0])
        L.append(f"v_cvt_pk_bf16_f32 v{V_HP+2*q}, v{T[0]}, v{T[1]}")
        L.append(f"v_cvt_pk_bf16_f32 v{V_HP+2*q+1}, v{T[2]}, v{T[3]}")
        if DSW == "pl":
            L.append(f"ds_write_b32 v{v_hw}, v{V_HP+2*q} offset:{(2*q)*256}")
            L.append(f"ds_write_b32 v{v_hw}, v{V_HP+2*q+1} offset:{(2*q+1)*256}")
        elif q % 2 == 1:
            L.append(f"ds_write_b128 v{v_hw}, {vr(V_HP+4*(q//2),4)} offset:{(q//2)*1024}")
    return L

def emit_epoch(g, e, nk_total, vq, lq, vm_tags, second, bregs, fill, misc, dma_tag, tagp="g", force_lgkm=None, ndma=1, end_extra=None,
               bar=True, nextbar=True, swap=False, kvalid=None, lastD=None, dma_fn=None, firstC0=True):
    a = g.a
    def put(lst):
        for ins in lst:
            if callable(ins): ins(); continue
            a(ins)
            if ins.startswith(("ds_write", "ds_read")): lq.issue("x")
            if ins.startswith(("buffer_store",)): vq.issue("st")
    def rvalid(x): return kvalid is None or (x % nk_total) < kvalid
    for k in range(4):
        s = 4 * e + k
        last_pre = (k == 3 and nextbar)
        if last_pre:
            if rvalid(s + PD): g.frag_read(lq, 3, (s + PD) % NB, second, f"{tagp}{s+PD}")
            for x in g.rd_valu(): a(x)
        tags = []
        if k % 2 == 0:
            tags = [f"{tagp}{x}" for x in (s, s + 1) if rvalid(x)]
        if k == 0 and bar:
            nl = min(15, lq.need(*tags)) if tags else 15
            if force_lgkm is not None: nl = min(nl, force_lgkm)
            nv = vq.need(*vm_tags)
            nv = max(0, nv - (g.flagval("vmx", 0) if g.inloop else 0))
            if "novm" in g.flags and g.inloop: a(f"s_waitcnt lgkmcnt({nl})")
            else: a(f"s_waitcnt vmcnt({nv}) lgkmcnt({nl})")
            if not ("nobar" in g.flags and g.inloop): a("s_barrier")
        elif tags:
            nl = min(15, lq.need(*tags))
            if k == 0 and force_lgkm is not None: nl = min(nl, force_lgkm)
            a(f"s_waitcnt lgkmcnt({nl})")
        lastk = (nk_total if kvalid is None else kvalid) - 1
        D = (V_G if lastD is None else lastD) if s == lastk else V_ACC
        C = "0" if (s == 0 and firstC0) else vr(V_ACC, 16)
        if rvalid(s):
            opA, opB = vr(V_FR+4*(s%NB),4), vr(bregs+4*s,4)
            if swap: opA, opB = opB, opA
            a(f"{MFMA} {vr(D,16)}, {opA}, {opB}, {C}")
        if not last_pre:
            put(fill[s])
            if rvalid(s + PD): g.frag_read(lq, k, (s + PD) % NB, second, f"{tagp}{s+PD}")
            if k == 3:
                for x in g.rd_valu(): a(x)
            if k == 0:
                if dma_fn is not None:
                    dma_fn(); vq.issue(dma_tag[0])
                else:
                    for d in range(ndma):
                        for x in g.dma_a(): a(x)
                        vq.issue(dma_tag[d])
                        for x in g.dma_b(): a(x)
            put(misc[s])
        else:
            assert not fill[s], (s, fill[s])
            put(misc[s])
        if k == 3 and end_extra: end_extra(s)


def touch(g, vq, srd, U, N, soff, mode, vt, vd, tag="pf"):
    a = g.a
    for u in range(U):
        a(f"s_mul_i32 s{s_tmp}, s{s_w}, {U*64}")
        a(f"s_add_u32 s{s_tmp}, s{s_tmp}, {u*64}")
        a(f"v_add_u32 v{vt}, s{s_tmp}, v{v_lane}")
        if mode[0] == 'lin':
            a(f"v_lshlrev_b32 v{vt+1}, 7, v{vt}")
        elif mode[0] == 'div':
            L, RS = mode[1], mode[2]
            magic = (65536 + L - 1) // L
            a(f"v_mul_u32_u24 v{vt+1}, {magic}, v{vt}")
            a(f"v_lshrrev_b32 v{vt+1}, 16, v{vt+1}")
            a(f"v_mul_u32_u24 v{vt+2}, {L}, v{vt+1}")
            a(f"v_sub_u32 v{vt+2}, v{vt}, v{vt+2}")
            a(f"v_lshlrev_b32 v{vt+2}, 7, v{vt+2}")
            a(f"v_mul_u32_u24 v{vt+1}, {RS}, v{vt+1}")
            a(f"v_add_u32 v{vt+1}, v{vt+1}, v{vt+2}")
        elif mode[0] == 'qkv':
            magic = (65536 + 11) // 12
            a(f"v_mul_u32_u24 v{vt+1}, {magic}, v{vt}")
            a(f"v_lshrrev_b32 v{vt+1}, 16, v{vt+1}")
            a(f"v_mul_u32_u24 v{vt+2}, 12, v{vt+1}")
            a(f"v_sub_u32 v{vt+2}, v{vt}, v{vt+2}")
            a(f"v_lshrrev_b32 v{vt+3}, 2, v{vt+2}")
            a(f"v_and_b32 v{vt+2}, 3, v{vt+2}")
            a(f"v_lshlrev_b32 v{vt+2}, 7, v{vt+2}")
            a(f"v_mul_u32_u24 v{vt+3}, 1152, v{vt+3}")
            a(f"v_add_u32 v{vt+2}, v{vt+2}, v{vt+3}")
            a(f"v_mul_u32_u24 v{vt+1}, 3456, v{vt+1}")
            a(f"v_add_u32 v{vt+1}, v{vt+1}, v{vt+2}")
        a(f"v_cmp_gt_u32 vcc, {N}, v{vt}")
        a(f"v_mov_b32 v{vt+2}, {OOB}")
        a("s_nop 0")
        a(f"v_cndmask_b32 v{vt+1}, v{vt+2}, v{vt+1}, vcc")
        a(f"buffer_load_dword v{vd}, v{vt+1}, {sr(srd,4)}, s{soff} offen")
        if vq is not None: vq.issue(tag)


def tlb_touch(g, vq, items, vt, vd):
    a = g.a
    for (srd, so_fn, n, stride) in items:
        so_fn()
        a(f"v_mul_u32_u24 v{vt}, {stride}, v{v_lane}")
        a(f"v_cmp_gt_u32 vcc, {n}, v{v_lane}")
        a(f"v_mov_b32 v{vt+1}, {OOB}")
        a("s_nop 0")
        a(f"v_cndmask_b32 v{vt}, v{vt+1}, v{vt}, vcc")
        a(f"buffer_load_dword v{vd}, v{vt}, {sr(srd,4)}, s52 offen")
        if vq is not None: vq.issue("tlb")

def gen_mlp(g):
    global TSH, DSW
    for f in g.flags:
        if f.startswith('dsw') and f[3:] in ('b64','w2','b32','pl'): DSW = f[3:]
    a = g.a
    a.c("MLP role v2")
    a(f"v_and_b32 v{v_lane}, 63, v{v_tid}")
    a(f"v_lshrrev_b32 v{V_M}, 6, v{v_tid}")
    a("s_nop 0")
    a(f"v_readfirstlane_b32 s{s_w}, v{V_M}")
    t0, t1, t2, xo = V_T, V_T+1, V_T+2, V_T+3
    a(f"v_lshrrev_b32 v{t0}, 3, v{v_lane}")
    a(f"v_and_b32 v{t2}, 7, v{v_lane}")
    a(f"s_lshl_b32 s{s_tmp}, s{s_w}, 3")
    a(f"v_add_u32 v{t0}, s{s_tmp}, v{t0}")
    a(f"v_lshrrev_b32 v{t1}, 1, v{t0}")
    a(f"v_and_b32 v{t1}, 7, v{t1}")
    a(f"v_xor_b32 v{t1}, v{t1}, v{t2}")
    a(f"v_lshlrev_b32 v{t1}, 4, v{t1}")
    a(f"v_mul_u32_u24 v{xo}, {X_RS}, v{t0}")
    a(f"v_add_u32 v{xo}, v{xo}, v{t1}")
    a(f"s_mul_i32 s{s_xso}, s{s_t}, {128*X_RS}")
    a(f"s_lshl_b32 s{s_xw}, s{s_w}, 10")
    vq = Q()
    def x_dma(c):
        slot = c % 6
        a(f"s_add_u32 m0, s{s_xw}, {LDS_H+slot*16384}")
        a(f"s_add_u32 s{s_tmp}, s{s_xso}, {c*128}")
        a(f"buffer_load_dwordx4 v{xo}, {sr(SX,4)}, s{s_tmp} offen lds")
        vq.issue(f"x{c}")
        a(f"s_add_u32 m0, s{s_xw}, {LDS_H+slot*16384+8192}")
        a(f"s_add_u32 s{s_tmp}, s{s_xso}, {c*128+64*X_RS}")
        a(f"buffer_load_dwordx4 v{xo}, {sr(SX,4)}, s{s_tmp} offen lds")
        vq.issue(f"x{c}")
    a(f"v_lshrrev_b32 v{t1}, 4, v{v_lane}")
    a(f"v_and_b32 v{t1}, 1, v{t1}")
    a(f"v_lshlrev_b32 v{t1}, 2, v{t1}")
    a(f"v_xor_b32 v{t1}, v{t1}, v{t2}")
    a(f"v_lshlrev_b32 v{t1}, 4, v{t1}")
    a(f"v_mul_u32_u24 v{v_doff}, {W1_RS}, v{t0}")
    a(f"v_add_u32 v{v_doff}, v{v_doff}, v{t1}")
    a(f"v_mul_u32_u24 v{v_doffB}, {W2_RS}, v{t0}")
    a(f"v_add_u32 v{v_doffB}, v{v_doffB}, v{t1}")
    a(f"s_mul_i32 s{s_F0}, s{s_js}, 384")
    a(f"s_mov_b32 s{s_wo}, s{s_xw}")
    a(f"s_mov_b32 s{s_dstep}, {64*W1_RS}")
    a(f"s_lshl_b32 s{s_tmp}, s{s_P}, 6")
    a(f"s_add_u32 s{s_tmp}, s{s_tmp}, s{s_F0}")
    a(f"s_lshl_b32 s{s_dso}, s{s_tmp}, 1")
    m0_, m1_, m2_ = V_M, V_M+1, V_M+2
    a(f"v_mul_u32_u24 v{m0_}, 1366, v{v_tid}")
    a(f"v_lshrrev_b32 v{m0_}, 16, v{m0_}")
    a(f"v_mul_u32_u24 v{m1_}, 48, v{m0_}")
    a(f"v_sub_u32 v{m1_}, v{v_tid}, v{m1_}")
    a(f"v_mul_u32_u24 v{V_M+3}, 1536, v{m0_}")
    a(f"v_lshlrev_b32 v{m2_}, 5, v{m1_}")
    a(f"v_add_u32 v{V_M+3}, v{V_M+3}, v{m2_}")
    a(f"v_mul_u32_u24 v{m2_}, {4*W1_RS}, v{m0_}")
    a(f"v_lshlrev_b32 v{m1_}, 4, v{m1_}")
    a(f"v_add_u32 v{m2_}, v{m2_}, v{m1_}")
    a(f"v_cmp_lt_u32 vcc, 8, v{m0_}")
    a(f"v_mov_b32 v{m1_}, {OOB}")
    a(f"s_mul_i32 s{s_tmp}, s{s_t}, {36*W1_RS}")
    a(f"v_cndmask_b32 v{m2_}, v{m2_}, v{m1_}, vcc")
    a(f"s_lshl_b32 s{s_tmp2}, s{s_F0}, 1")
    a(f"s_add_u32 s{s_tmp}, s{s_tmp}, s{s_tmp2}")
    for q in range(4):
        a(f"buffer_load_dwordx4 {vr(V_CS+4*q,4)}, v{m2_}, {sr(SD,4)}, s{s_tmp} offen")
        vq.issue("cs")
        if q < 3: a(f"s_add_u32 s{s_tmp}, s{s_tmp}, {W1_RS}")
    a(f"v_min_u32 v{V_M+3}, {9*1536+47*32}, v{V_M+3}")
    x_dma(0); g.dma_full(vq, "r0")
    x_dma(1); g.dma_full(vq, "r1")
    x_dma(2); g.dma_full(vq, "r2")
    if "oldpf" in g.flags:
        a(f"s_and_b32 s{s_tmp2}, s{s_t}, 3")
        a(f"s_mul_i32 s{s_tmp2}, s{s_tmp2}, {144*W1_RS}")
        a(f"s_lshl_b32 s{s_tmp3}, s{s_F0}, 1")
        a(f"s_add_u32 s52, s{s_tmp2}, s{s_tmp3}")
        touch(g, vq, SD, 2, 864, 52, ('div', 6, W1_RS), V_T+4, V_M+7)
    a(f"s_and_b32 s{s_i}, s{s_w}, 3")
    a(f"s_lshr_b32 s{s_jj}, s{s_w}, 2")
    a(f"v_and_b32 v{t0}, 15, v{v_lane}")
    a(f"v_lshrrev_b32 v{t0}, 2, v{t0}")
    a(f"v_lshrrev_b32 v{t1}, 1, v{t0}")
    a(f"v_xor_b32 v{t1}, s{s_jj}, v{t1}")
    a(f"v_lshlrev_b32 v{t1}, 6, v{t1}")
    a(f"v_lshlrev_b32 v{t0}, 7, v{t0}")
    a(f"v_add_u32 v{t0}, v{t0}, v{t1}")
    a(f"v_lshrrev_b32 v{t1}, 4, v{v_lane}")
    a(f"v_and_b32 v{t1}, 1, v{t1}")
    a(f"v_lshlrev_b32 v{t1}, 5, v{t1}")
    a(f"v_add_u32 v{t0}, v{t0}, v{t1}")
    a(f"v_and_b32 v{t1}, 3, v{v_lane}")
    a(f"v_lshlrev_b32 v{t1}, 3, v{t1}")
    a(f"v_add_u32 v{t0}, v{t0}, v{t1}")
    a(f"v_lshrrev_b32 v{t1}, 5, v{v_lane}")
    a(f"v_lshlrev_b32 v{t2}, 10, v{t1}")
    a(f"v_add_u32 v{v_abaseA}, v{t0}, v{t2}")
    a(f"v_lshlrev_b32 v{t2}, 9, v{t1}")
    a(f"v_add_u32 v{v_abaseB}, v{t0}, v{t2}")
    a(f"v_mov_b32 v{v_abase}, v{v_abaseA}")
    a(f"v_mov_b32 v{v_rd}, v{v_abaseA}")
    a(f"v_and_b32 v{t0}, 31, v{v_lane}")
    a(f"v_lshlrev_b32 v{v_l16}, 4, v{t0}")
    a(f"s_lshl_b32 s{s_tmp}, s{s_i}, 5")
    a(f"v_add_u32 v{t0}, s{s_tmp}, v{t0}")
    a(f"v_lshrrev_b32 v{t2}, 1, v{t0}")
    a(f"v_and_b32 v{t2}, 7, v{t2}")
    a(f"v_xor_b32 v{t2}, v{t2}, v{t1}")
    a(f"v_lshlrev_b32 v{t2}, 4, v{t2}")
    a(f"v_lshlrev_b32 v{t0}, 7, v{t0}")
    a(f"v_add_u32 v{v_xrd}, v{t0}, v{t2}")
    a(f"v_add_u32 v{v_xrd}, {LDS_H}, v{v_xrd}")
    a(f"v_lshlrev_b32 v{v_st}, 4, v{v_lane}")
    a(f"v_mov_b32 v{v_S}, 0")
    g.stamp()
    SCR = LDS_SCR
    def cs_sum():
        a(f"s_waitcnt vmcnt({vq.need('cs')})")
        acc = V_HP
        for r in range(4):
            a(f"v_lshlrev_b32 v{acc+2*r}, 16, v{V_CS+r}")
            a(f"v_and_b32 v{acc+2*r+1}, 0xffff0000, v{V_CS+r}")
        for q in range(1, 4):
            for r in range(4):
                a(f"v_lshlrev_b32 v{V_T}, 16, v{V_CS+4*q+r}")
                a(f"v_and_b32 v{V_T+1}, 0xffff0000, v{V_CS+4*q+r}")
                a(f"v_add_f32 v{acc+2*r}, v{acc+2*r}, v{V_T}")
                a(f"v_add_f32 v{acc+2*r+1}, v{acc+2*r+1}, v{V_T+1}")
        a(f"v_add_u32 v{V_M+3}, {SCR}, v{V_M+3}")
        a(f"ds_write_b128 v{V_M+3}, {vr(acc,4)}")
        a(f"ds_write_b128 v{V_M+3}, {vr(acc+4,4)} offset:16")
        lq.issue("csw"); lq.issue("csw")
    def cs_pub():
        a(f"v_lshlrev_b32 v{V_T+4}, 2, v{v_tid}")
        a(f"v_min_u32 v{V_T+5}, {383*4}, v{V_T+4}")
        a(f"v_add_u32 v{V_T+5}, {SCR}, v{V_T+5}")
        for q in range(9):
            a(f"ds_read_b32 v{V_CS+q}, v{V_T+5} offset:{q*1536}")
            lq.issue("csr")
        a(f"v_cmp_gt_u32 vcc, 384, v{v_tid}")
        a(f"v_mov_b32 v{V_T+5}, {OOB}")
        a(f"s_mul_i32 s{s_tmp}, s{s_js}, 16")
        a(f"v_cndmask_b32 v{V_T+4}, v{V_T+5}, v{V_T+4}, vcc")
        a(f"s_add_u32 s{s_tmp}, s{s_tmp}, s{s_t}")
        a(f"s_mul_i32 s{s_tmp}, s{s_tmp}, 1536")
        a(f"s_add_u32 s{s_tmp2}, s{s_tmp}, {WS_CSP}")
        a("s_waitcnt lgkmcnt(0)")
        for q in range(1, 9):
            a(f"v_add_f32 v{V_CS}, v{V_CS}, v{V_CS+q}")
        a(f"buffer_store_dword v{V_CS}, v{V_T+4}, {sr(SW,4)}, s{s_tmp2} offen sc0 sc1")
        vq.issue("cst")
    lq = Q()
    cs_sum()
    g.stamp()
    a(f"s_waitcnt vmcnt({vq.need('x0','r0')}) lgkmcnt(0)")
    a("s_barrier")
    g.stamp()
    def y_read(c):
        slot = c % 6
        for s in range(4):
            reg = V_Y + (4*c + s) * 4
            tmp = V_M + 4 + (s % 2)
            off = slot * 16384
            a(f"v_xor_b32 v{tmp}, {s*32}, v{v_xrd}")
            if off >= 65536:
                a(f"v_add_u32 v{tmp}, {off}, v{tmp}")
                a(f"ds_read_b128 {vr(reg,4)}, v{tmp}")
            else:
                a(f"ds_read_b128 {vr(reg,4)}, v{tmp} offset:{off}")
            lq.issue(f"y{c}")
    def stats(c):
        lab = a.label("Lst"); lab2 = a.label("Lst2")
        a(f"s_cmp_eq_u32 s{s_jj}, 0")
        a(f"s_cbranch_scc0 {lab}")
        for r in range(16):
            a(f"v_dot2c_f32_bf16 v{v_S}, 0x3f803f80, v{V_Y+16*c+r}")
        a(f"s_branch {lab2}")
        a(f"{lab}:")
        for r in range(16):
            a(f"v_dot2c_f32_bf16 v{v_S}, v{V_Y+16*c+r}, v{V_Y+16*c+r}")
        a(f"{lab2}:")
    y_read(0)
    for s in range(4):
        g.frag_read(lq, s, s, 512, f"f{s}")
    for x in g.rd_salu() + g.rd_valu(): a(x)
    nofill = [[] for _ in range(36)]
    VB1 = V_HP + 7
    def flag_load():
        a(f"s_lshl_b32 s{s_tmp}, s{s_js}, 2")
        a(f"v_mov_b32 v{V_T+4}, s{s_tmp}")
        a(f"buffer_load_dword v{V_T+5}, v{V_T+4}, {sr(SG,4)}, 0 offen sc1")
        vq.issue("flag")
    TSCR = LDS_H + 32768
    def tab_loads():
        a(f"v_lshlrev_b32 v{V_M+3}, 4, v{v_tid}")
        a(f"s_mul_i32 s{s_tmp}, s{s_js}, {16*1536}")
        a(f"s_add_u32 s{s_tmp}, s{s_tmp}, {WS_CSP}")
        for u in range(3):
            a(f"buffer_load_dwordx4 {vr(V_CS+4*u,4)}, v{V_M+3}, {sr(SW,4)}, s{s_tmp} offen sc0 sc1")
            if u < 2: a(f"s_add_u32 s{s_tmp}, s{s_tmp}, 8192")
        a(f"v_lshlrev_b32 v{V_M+2}, 1, v{v_tid}")
        a(f"v_cmp_gt_u32 vcc, 384, v{v_tid}")
        a(f"v_mov_b32 v{V_CS+12}, {OOB}")
        a(f"s_lshl_b32 s{s_tmp}, s{s_F0}, 1")
        a(f"v_cndmask_b32 v{V_M+2}, v{V_CS+12}, v{V_M+2}, vcc")
        a(f"buffer_load_ushort v{VB1}, v{V_M+2}, {sr(SB,4)}, s{s_tmp} offen")
    def flag_check():
        a(f"v_readfirstlane_b32 s{s_tmp}, v{V_T+5}")
        a(f"s_mov_b32 s55, 0")
        a("s_nop 2")
        a(f"s_cmp_ge_u32 s{s_tmp}, 16")
        a("s_cbranch_scc0 L_notyet")
        a(f"s_mov_b32 s55, 1")
        tab_loads()
        a("L_notyet:")
    FL, FC = g.flagval("fl", 5), g.flagval("fc", 7)
    for e in range(9):
        misc = [[] for _ in range(36)]
        fill0 = [[] for _ in range(36)]
        need = [f"r{e+1}"] + ([f"x{e+1}"] if e + 1 <= 8 else [])
        if e == 0: fill0[0].append(cs_pub)
        if e == 1:
            need = need + ["cst"]
            def sig():
                lab = a.label("Lsig")
                a(f"s_cmp_eq_u32 s{s_w}, 0")
                a(f"s_cbranch_scc0 {lab}")
                a(f"v_mov_b32 v{V_M}, 1")
                a(f"s_lshl_b32 s{s_tmp}, s{s_js}, 2")
                a(f"v_mov_b32 v{V_M+1}, s{s_tmp}")
                a("s_mov_b64 exec, 1")
                a(f"buffer_atomic_add v{V_M}, v{V_M+1}, {sr(SG,4)}, 0 offen sc1")
                a("s_mov_b64 exec, -1")
                a(f"{lab}:")
            fill0[4*e].append(sig)
        if e == FL: fill0[4*e].append(flag_load)
        if e == FC:
            need = need + ["flag"]
            fill0[4*e].append(flag_check)
        if e + 1 <= 8: misc[4*e].append(lambda e=e: y_read(e + 1))
        if e + 3 <= 8: misc[4*e].insert(0, lambda e=e: x_dma(e + 3))
        misc[4*e+1].append(lambda e=e: stats(e))
        if e == 5:
            def sw():
                a(f"s_add_u32 s{s_Pn}, s{s_P}, 1")
                a(f"s_cmp_eq_u32 s{s_Pn}, 6")
                a(f"s_cselect_b32 s{s_Pn}, 0, s{s_Pn}")
                a(f"s_lshl_b32 s{s_tmp}, s{s_Pn}, 6")
                a(f"s_add_u32 s{s_tmp}, s{s_tmp}, s{s_F0}")
                a(f"s_lshl_b32 s{s_dso}, s{s_tmp}, 1")
            misc[4*e+2].append(sw)
        if e <= 5: tags = [f"r{e+3}"]
        else: tags = [f"r{9+2*(e-6)}", f"r{10+2*(e-6)}"]
        if "prof0" in g.flags: a(f"s_memtime s[{80+2*e}:{81+2*e}]")
        emit_epoch(g, e, 36, vq, lq, need, 512, V_Y, fill0, misc, tags, tagp="f", force_lgkm=lq.need(f"y{e}"), ndma=len(tags))
    if "prof0" in g.flags: a(f"s_memtime s[98:99]")
    g.stamp()
    a("s_nop 3")
    a(f"v_mov_b32 v{V_M}, v{v_S}")
    a("s_nop 1")
    a(f"v_permlane32_swap_b32 v{v_S}, v{V_M}")
    a("s_nop 1")
    a(f"v_add_f32 v{v_S}, v{v_S}, v{V_M}")
    STAT = LDS_H + 1024
    a(f"s_lshl_b32 s{s_tmp}, s{s_i}, 8")
    a(f"s_lshl_b32 s{s_tmp2}, s{s_jj}, 7")
    a(f"s_add_u32 s{s_tmp}, s{s_tmp}, s{s_tmp2}")
    a(f"s_add_u32 s{s_tmp}, s{s_tmp}, {STAT}")
    a(f"v_lshrrev_b32 v{V_M+1}, 2, v{v_l16}")
    a(f"v_add_u32 v{V_M}, s{s_tmp}, v{V_M+1}")
    a(f"ds_write_b32 v{V_M}, v{v_S}")
    a(f"s_cmp_eq_u32 s55, 1")
    a("s_cbranch_scc1 L_haveflag")
    a(f"s_lshl_b32 s{s_tmp}, s{s_js}, 2")
    a(f"v_mov_b32 v{V_T+4}, s{s_tmp}")
    a("L_poll:")
    a(f"buffer_load_dword v{V_T+5}, v{V_T+4}, {sr(SG,4)}, 0 offen sc1")
    a("s_waitcnt vmcnt(0)")
    a(f"v_readfirstlane_b32 s{s_tmp}, v{V_T+5}")
    a("s_nop 3")
    a(f"s_cmp_ge_u32 s{s_tmp}, 16")
    a("s_cbranch_scc1 L_polled")
    a("s_sleep 1")
    a("s_branch L_poll")
    a("L_polled:")
    tab_loads()
    a("L_haveflag:")
    a("s_waitcnt vmcnt(0)")
    a(f"v_lshlrev_b32 v{V_M+3}, 4, v{v_tid}")
    a(f"v_add_u32 v{V_M+3}, {TSCR}, v{V_M+3}")
    for u in range(3):
        a(f"ds_write_b128 v{V_M+3}, {vr(V_CS+4*u,4)} offset:{u*8192}")
    a("s_waitcnt lgkmcnt(0)")
    a("s_barrier")
    g.stamp()
    a(f"v_lshlrev_b32 v{V_M+3}, 2, v{v_tid}")
    a(f"v_min_u32 v{V_M+3}, {383*4}, v{V_M+3}")
    a(f"v_add_u32 v{V_M+3}, {TSCR}, v{V_M+3}")
    for q in range(16):
        a(f"ds_read_b32 v{V_CS+q}, v{V_M+3} offset:{q*1536}")
    a(f"s_lshl_b32 s{s_tmp}, s{s_i}, 8")
    a(f"s_add_u32 s{s_tmp}, s{s_tmp}, {STAT}")
    a(f"v_add_u32 v{V_M}, s{s_tmp}, v{V_M+1}")
    a(f"ds_read_b32 v{V_T}, v{V_M}")
    a(f"ds_read_b32 v{V_T+1}, v{V_M} offset:128")
    a("s_waitcnt lgkmcnt(0)")
    mu, var, sd, tt = V_T, V_T+1, V_T+2, V_T+3
    a(f"v_mul_f32 v{mu}, {f2u(1.0/576):#x}, v{mu}")
    a(f"v_mul_f32 v{var}, {f2u(1.0/576):#x}, v{var}")
    a(f"v_fma_f32 v{var}, -v{mu}, v{mu}, v{var}")
    a(f"v_max_f32 v{var}, 0, v{var}")
    a(f"v_add_f32 v{var}, {f2u(1e-5):#x}, v{var}")
    a(f"v_sqrt_f32 v{sd}, v{var}")
    a("s_nop 0")
    a(f"v_rcp_f32 v{v_rstd}, v{sd}")
    a("s_nop 0")
    a(f"v_mul_f32 v{v_k1r}, {f2u(K1C):#x}, v{v_rstd}")
    a(f"v_mul_f32 v{v_k2r}, v{v_rstd}, v{v_rstd}")
    a(f"v_mul_f32 v{v_k2r}, v{v_k2r}, v{v_rstd}")
    a(f"v_mul_f32 v{v_k2r}, {f2u(K2C):#x}, v{v_k2r}")
    for q in range(1, 16):
        a(f"v_add_f32 v{V_CS}, v{V_CS}, v{V_CS+q}")
    a("s_barrier")
    a(f"v_cvt_pk_bf16_f32 v{V_HP}, v{V_CS}, v{V_CS}")
    a(f"v_lshlrev_b32 v{V_CS+1}, 16, v{V_HP}")
    a(f"v_sub_f32 v{V_CS+1}, v{V_CS}, v{V_CS+1}")
    a(f"v_cvt_pk_bf16_f32 v{V_CS+1}, v{V_CS+1}, v{V_CS+1}")
    a(f"v_and_b32 v{V_CS+1}, 0xffff, v{V_CS+1}")
    a(f"v_lshlrev_b32 v{V_CS+2}, 16, v{VB1}")
    a(f"v_or_b32 v{V_HP+1}, v{V_CS+1}, v{V_CS+2}")
    a(f"v_mov_b32 v{V_HP+2}, v{VB1}")
    a(f"v_mov_b32 v{V_HP+3}, 0")
    a(f"v_lshrrev_b32 v{V_M+3}, 5, v{v_tid}")
    a(f"v_lshlrev_b32 v{V_M+3}, 11, v{V_M+3}")
    a(f"v_add_u32 v{V_M+3}, v{V_M+3}, v{v_l16}")
    a(f"v_add_u32 v{V_M+3}, {LDS_H}, v{V_M+3}")
    a(f"v_cmp_gt_u32 vcc, 384, v{v_tid}")
    a("s_and_saveexec_b64 s[52:53], vcc")
    a("s_cbranch_execz L_notab")
    for i in range(4):
        if i*24576 < 65536:
            a(f"ds_write_b128 v{V_M+3}, {vr(V_HP,4)} offset:{i*24576}")
        else:
            a(f"v_add_u32 v{V_M+3}, {i*24576}, v{V_M+3}")
            a(f"ds_write_b128 v{V_M+3}, {vr(V_HP,4)}")
    a("L_notab:")
    a("s_mov_b64 exec, s[52:53]")
    nm, mh, ml, sh, sl = V_T+4, V_T+5, V_T+6, V_T+7, V_M+6
    a(f"v_sub_f32 v{nm}, 0, v{mu}")
    a(f"v_cvt_pk_bf16_f32 v{mh}, v{nm}, v{sd}")
    a(f"v_lshlrev_b32 v{ml}, 16, v{mh}")
    a(f"v_and_b32 v{sh}, 0xffff0000, v{mh}")
    a(f"v_sub_f32 v{ml}, v{nm}, v{ml}")
    a(f"v_sub_f32 v{sl}, v{sd}, v{sh}")
    a(f"v_cvt_pk_bf16_f32 v{ml}, v{ml}, v{sl}")
    a(f"v_mov_b32 v{V_AUGB+1}, v{mh}")
    a(f"v_and_b32 v{V_AUGB}, 0xffff, v{mh}")
    a(f"v_lshlrev_b32 v{tt}, 16, v{ml}")
    a(f"v_or_b32 v{V_AUGB}, v{V_AUGB}, v{tt}")
    a(f"v_lshrrev_b32 v{V_AUGB+2}, 16, v{ml}")
    a(f"v_mov_b32 v{V_AUGB+3}, 0")
    a(f"v_cmp_gt_u32 vcc, 32, v{v_lane}")
    a("s_nop 1")
    for r in range(3):
        a(f"v_cndmask_b32 v{V_AUGB+r}, 0, v{V_AUGB+r}, vcc")
    a("s_waitcnt lgkmcnt(0)")
    a("s_barrier")
    g.stamp()
    def tile_salu():
        return [f"s_lshl_b32 s{s_tmp}, s{s_P}, 1", f"s_add_u32 s{s_tmp}, s{s_tmp}, s{s_jj}", f"s_mul_i32 s{s_tmp2}, s{s_i}, 12",
                f"s_add_u32 s{s_tmp2}, s{s_tmp2}, s{s_tmp}", f"s_lshl_b32 s{s_tmp2}, s{s_tmp2}, 11", f"s_add_u32 s{s_hwn}, s{s_tmp2}, {LDS_H}"]
    for x in tile_salu(): a(x)
    a(f"v_add_u32 v{V_M}, s{s_hwn}, v{v_l16}")
    a(f"ds_read_b128 {vr(V_AUGA,4)}, v{V_M}")
    a(f"v_lshlrev_b32 v{v_abase}, 2, v{v_lane}")
    a(f"v_add_u32 v{v_hw}, s{s_hwn}, v{v_abase if DSW == 'pl' else v_st}")
    a("s_waitcnt lgkmcnt(0)")
    a(f"{MFMA} {vr(V_G,16)}, {vr(V_AUGA,4)}, {vr(V_AUGB,4)}, {vr(V_G,16)}")
    a(f"s_mov_b32 s{s_P}, s{s_Pn}")
    a(f"s_mov_b32 s{s_n}, 1")
    a(f"s_lshl_b32 s58, s{s_F0}, 1")
    a(f"s_mul_i32 s59, s{s_i}, 12")
    a(f"s_add_u32 s59, s59, s{s_jj}")
    a(f"s_lshl_b32 s59, s59, 11")
    a(f"s_add_u32 s59, s59, {LDS_H}")
    if "tpf" in g.flags:
        a(f"s_mov_b32 s88, s{S_W2}")
        a(f"s_mov_b32 s89, s{S_W2+1}")
        a(f"s_mov_b32 s90, {SIZES['B_w2']}")
        a(f"s_mov_b32 s91, 0x00020000")
        a(f"s_and_b32 s{s_tmp2}, s{s_t}, 3")
        a(f"s_mul_i32 s{s_tmp2}, s{s_tmp2}, 96")
        a(f"s_add_u32 s{s_tmp2}, s{s_tmp2}, s{s_F0}")
        a(f"s_mul_i32 s{s_tmp2}, s{s_tmp2}, {W2_RS}")
        a(f"s_mul_i32 s{s_tmp3}, s{s_w}, 13824")
        a(f"s_add_u32 s{s_tmp2}, s{s_tmp2}, s{s_tmp3}")
        a(f"v_lshlrev_b32 v{V_M+6}, 7, v{v_lane}")
        a(f"v_add_u32 v{V_M+6}, s{s_tmp2}, v{V_M+6}")
        a(f"v_cmp_gt_u32 vcc, 3, v{v_lane}")
        a(f"v_mov_b32 v{V_M+5}, {OOB}")
        a("s_nop 0")
        a(f"v_cndmask_b32 v{V_M+6}, v{V_M+5}, v{V_M+6}, vcc")
    BARA = [0, 2, 4, 6, 8]
    a(".p2align 3")
    a("L_A:")
    g.inloop = True
    vq = Q(); lq = Q()
    for e in range(-9, 0):
        vq.issue(f"r{e+6}")
        if "tpf" in g.flags and e >= -4: vq.issue("pf")
    for s in range(0, 4): lq.issue(f"g{s}"); lq.issue(f"g{s}")
    excl = [4*e - 1 for e in BARA if e > 0] + [35]
    slots = [sl for sl in range(1, 35) if sl not in excl]
    base = g.flagval("cap", 20)
    ok = False; extra = 0
    while not ok:
        dcap = g.flagval("dcap", base)
        caps = {sl: (dcap if sl % 4 == 0 else base) for sl in slots}
        nd = [sl for sl in slots if sl % 4 != 0 or dcap == base]
        for j in range(extra):
            caps[nd[(j * len(nd)) // max(extra, 1)]] = base + 4
        ok, fill, dsw = gelu_sched(slots, 36, caps, maxT=g.flagval("maxT", 2), GS=g.flagval("gs", 4), gapP=g.flagval("gp", 2), gapT=g.flagval("gt", 3))
        if not ok: extra += 1
        assert extra <= len(nd), 'gelu does not fit'
    if "nogelu" in g.flags:
        fill = [[] for _ in range(36)]; dsw = [[] for _ in range(36)]
    if "fake" in g.flags:
        nf = []
        for sl_ in fill:
            o = []
            for j, ins in enumerate(sl_):
                if ins.startswith(("v_exp", "v_rcp")): o.append(f"v_exp_f32 v{V_T+(j%4)}, v{V_M+1}")
                else: o.append(f"v_mul_f32 v{V_T+4+(j%4)}, v{V_M+1}, v{V_M+2}")
            nf.append(o)
        fill = nf
    if "notrans" in g.flags:
        fill = [[x for x in sl_ if not x.startswith(("v_exp", "v_rcp"))] for sl_ in fill]
    if "onlytrans" in g.flags:
        fill = [[x for x in sl_ if x.startswith(("v_exp", "v_rcp"))] for sl_ in fill]
    if "nodsw" in g.flags: dsw = [[] for _ in range(36)]
    g.info = f"gelu base {base} extra slots {extra}"
    if "dswrd" in g.flags:
        dsw = [[x.replace("ds_write_b128 v8, v[24:27]", "ds_read_b128 v[104:107], v8").replace("ds_write_b128 v8, v[28:31]", "ds_read_b128 v[108:111], v8") for x in sl_] for sl_ in dsw]
    if "dswconst" in g.flags:
        dsw = [[x.replace("v[24:27]", "v[104:107]").replace("v[28:31]", "v[108:111]") for x in sl_] for sl_ in dsw]
    if "dswlate" in g.flags:
        allw = [x for sl_ in dsw for x in sl_]
        dsw = [[] for _ in range(36)]
        dsw[34] = allw
    endw = []
    if "dswend" in g.flags or True:
        if "dswloop" not in g.flags:
            endw = [x for sl_ in dsw for x in sl_]
            dsw = [[] for _ in range(36)]
    misc = [list(dsw[s]) for s in range(36)]
    def sw():
        a(f"s_add_u32 s{s_Pn}, s{s_P}, 1")
        a(f"s_cmp_eq_u32 s{s_Pn}, 6")
        a(f"s_cselect_b32 s{s_Pn}, 0, s{s_Pn}")
        a(f"s_lshl_b32 s{s_tmp}, s{s_Pn}, 7")
        a(f"s_add_u32 s{s_dso}, s{s_tmp}, s58")
        a(f"s_cmp_eq_u32 s{s_n}, 5")
        a(f"s_cbranch_scc1 L_A_sw")
        a(f"L_A_swret:")
    misc[4*2+2].append(sw)
    misc[4*5+1] += [f"s_lshl_b32 s{s_tmp}, s{s_P}, 12", f"s_add_u32 s{s_hwn}, s59, s{s_tmp}"]
    def augrd():
        a(f"v_add_u32 v{V_M}, s{s_hwn}, v{v_l16}")
        a(f"ds_read_b128 {vr(V_AUGA,4)}, v{V_M}")
        lq.issue("aug")
    misc[4*8+0].append(augrd)
    V_PF = V_M + 6
    if "tpf" in g.flags:
        def pf():
            a(f"buffer_load_dword v{V_M+7}, v{V_PF}, s[88:91], 0 offen")
            vq.issue("pf")
            a(f"v_add_u32 v{V_PF}, 384, v{V_PF}")
        for e in range(9): misc[4*e+2].append(pf)
    misc[4*8+1] += [f"s_mov_b32 s{s_P}, s{s_Pn}", f"s_add_u32 s{s_n}, s{s_n}, 1", f"s_cmp_le_u32 s{s_n}, 5"]
    def endx(s):
        if s == 35:
            a(f"s_waitcnt lgkmcnt({min(15, lq.need('aug'))})")
            a(f"{MFMA} {vr(V_G,16)}, {vr(V_AUGA,4)}, {vr(V_AUGB,4)}, {vr(V_G,16)}")
            for x in endw:
                a(x); lq.issue("x")
            a(f"v_add_u32 v{v_hw}, s{s_hwn}, v{v_abase if DSW == 'pl' else v_st}")
    for e in range(9):
        if "profA" in g.flags: a(f"s_memtime s[{80+2*e}:{81+2*e}]")
        bar = e in BARA
        nb = (e + 1) in BARA or e == 8
        tags = [f"r{e+1}", f"r{e+2}"] if e < 8 else [f"r{e+1}"]
        emit_epoch(g, e, 36, vq, lq, tags, 512, V_Y, fill, misc, [f"r{e+6}"], end_extra=endx, bar=bar, nextbar=nb)
    if "profA" in g.flags: a(f"s_memtime s[98:99]")
    a(f"s_cbranch_scc1 L_A")
    a("s_branch L_A_done")
    a(f"L_A_sw:")
    a(f"s_mov_b32 s{SD}, s{S_W2}")
    a(f"s_mov_b32 s{SD+1}, s{S_W2+1}")
    a(f"s_mov_b32 s{SD+2}, {SIZES['B_w2']}")
    a(f"s_mov_b32 s{s_dstep}, {64*W2_RS}")
    a(f"s_mul_i32 s57, s{s_F0}, {W2_RS}")
    a(f"s_lshl_b32 s{s_tmp}, s{s_Pd0}, 7")
    a(f"s_add_u32 s{s_dso}, s57, s{s_tmp}")
    a(f"v_mov_b32 v{v_doff}, v{v_doffB}")
    a(f"s_branch L_A_swret")
    a("L_A_done:")
    g.stamp()
    PEEL = "peelB" in g.flags
    if not PEEL:
        if "early" in g.flags:
            a(f"v_mov_b32 v{V_M+3}, {63*4}")
            a(f"buffer_load_dword v{V_M+4}, v{V_M+3}, {sr(SG,4)}, 0 offen sc1")
        a("s_nop 15")
        for ins in gelu_plain(): a(ins)
        a("s_waitcnt vmcnt(0) lgkmcnt(0)")
        if "early" in g.flags: a(f"v_readfirstlane_b32 s90, v{V_M+4}")
        a("s_barrier")
        a(f"s_mul_i32 s{s_tmp}, s{s_i}, {12*2048}")
        a(f"s_add_u32 s{s_tmp}, s{s_tmp}, {LDS_H}")
        if DSW == "pl":
            a(f"v_add_u32 v{V_M}, s{s_tmp}, v{v_abase}")
            for s in range(24):
                a(f"ds_read2st64_b32 {vr(V_Y+4*s,2)}, v{V_M} offset0:{4*s} offset1:{4*s+1}")
                a(f"ds_read2st64_b32 {vr(V_Y+4*s+2,2)}, v{V_M} offset0:{4*s+2} offset1:{4*s+3}")
                if s % 6 == 5: a("s_waitcnt lgkmcnt(4)")
        else:
            a(f"v_add_u32 v{V_M}, s{s_tmp}, v{v_st}")
            for s in range(24):
                a(f"ds_read_b128 {vr(V_Y+4*s,4)}, v{V_M} offset:{s*1024}")
        a(f"v_sub_u16 v{V_M+1}, v{v_rd}, v{v_abaseA}")
        a(f"v_add_u16 v{V_M+1}, v{V_M+1}, v{v_abaseB}")
        a(f"v_add_u16 v{v_rd}, 0xe000, v{V_M+1}")
        lq = Q()
        a("s_waitcnt lgkmcnt(0)")
        for s in range(4):
            g.frag_read(lq, s, s, 1024, f"g{s}")
        a(f"v_mov_b32 v{v_rd}, v{V_M+1}")
    else:
        vqB = Q()
        for e in range(6): vqB.issue(f"r{e}")
        a(f"s_waitcnt vmcnt({vqB.need('r0','r1','r2')}) lgkmcnt(0)")
        a("s_barrier")
        a(f"s_mul_i32 s{s_tmp}, s{s_i}, {12*2048}")
        a(f"s_add_u32 s{s_tmp}, s{s_tmp}, {LDS_H}")
        a(f"v_add_u32 v{V_M+2}, s{s_tmp}, v{v_st}")
        a(f"v_sub_u16 v{V_M+1}, v{v_rd}, v{v_abaseA}")
        a(f"v_add_u16 v{V_M+1}, v{V_M+1}, v{v_abaseB}")
        a(f"v_add_u16 v{v_rd}, 0xe000, v{V_M+1}")
        lq = Q()
        for s in range(4):
            g.frag_read(lq, s, s, 1024, f"g{s}")
        a(f"v_mov_b32 v{v_rd}, v{V_M+1}")
        for s in range(20):
            a(f"ds_read_b128 {vr(V_Y+4*s,4)}, v{V_M+2} offset:{s*1024}")
            lq.issue(f"h{s}")
    g.stamp()
    a(f"s_lshl_b32 s{s_tmp}, s{s_t}, 2")
    a(f"s_add_u32 s{s_tmp}, s{s_tmp}, s{s_i}")
    a(f"s_mul_i32 s{s_tmp}, s{s_tmp}, {18*16}")
    a(f"s_add_u32 s{s_tmp}, s{s_tmp}, s{s_js}")
    a(f"s_lshl_b32 s{s_posbase}, s{s_tmp}, 11")
    a(f"s_add_u32 s{s_posbase}, s{s_posbase}, {WS_P}")
    a(f"s_lshl_b32 s{s_tmp}, s{s_jj}, 15")
    a(f"s_add_u32 s{s_posbase}, s{s_posbase}, s{s_tmp}")
    a(f"s_mov_b32 s{s_pos}, {OOB}")
    a(f"s_mov_b32 s{s_P}, s{s_Pd0}")
    a(f"s_add_u32 s{s_tmp}, s{s_P}, 1")
    a(f"s_cmp_eq_u32 s{s_tmp}, 9")
    a(f"s_cselect_b32 s{s_tmp}, 0, s{s_tmp}")
    a(f"s_lshl_b32 s{s_tmp}, s{s_tmp}, 7")
    a(f"s_add_u32 s{s_dso}, s57, s{s_tmp}")
    a(f"s_mov_b32 s{s_n}, 0")
    def epi_list():
        L = []
        for r in range(16): L.append(f"v_mul_f32 v{V_G+r}, v{V_G+r}, v{v_rstd}")
        for r in range(8): L.append(f"v_cvt_pk_bf16_f32 v{V_HP+r}, v{V_G+2*r}, v{V_G+2*r+1}")
        return L
    sf = " nt" if "stnt" in g.flags else (" sc0 sc1" if "stsc" in g.flags else (" sc1" if "stsc1" in g.flags else (" sc0 sc1 nt" if "stall" in g.flags else "")))
    st0 = f"buffer_store_dwordx4 {vr(V_HP,4)}, v{v_st}, {sr(SW,4)}, s{s_pos} offen{sf}"
    st1 = f"buffer_store_dwordx4 {vr(V_HP+4,4)}, v{v_st}, {sr(SW,4)}, s{s_pos} offen offset:1024{sf}"
    BARB = [0, 2, 4]
    fillB = [[] for _ in range(24)]
    miscB = [[] for _ in range(24)]
    el = epi_list()
    sl = [2, 3, 4, 5, 6, 8] if "oldB" in g.flags else [2, 3, 5, 6, 9, 10]
    for idx, ins in enumerate(el): fillB[sl[idx * len(sl) // len(el)]].append(ins)
    if "noepi" in g.flags: fillB = [[] for _ in range(24)]
    p0, p1 = g.flagval("sta", 9 if "oldB" in g.flags else 13), g.flagval("stb", 13 if "oldB" in g.flags else 14)
    if "nostore" not in g.flags:
        miscB[p0].append(st0); miscB[p1].append(st1)
    miscB[17] += [f"s_add_u32 s{s_Pn}, s{s_P}, 1", f"s_cmp_eq_u32 s{s_Pn}, 9", f"s_cselect_b32 s{s_Pn}, 0, s{s_Pn}"]
    miscB[18] += [f"s_lshl_b32 s{s_tmp}, s{s_P}, 16", f"s_add_u32 s{s_pos}, s{s_posbase}, s{s_tmp}"]
    miscB[21] += [f"s_add_u32 s{s_tmp}, s{s_Pn}, 1", f"s_cmp_eq_u32 s{s_tmp}, 9", f"s_cselect_b32 s{s_tmp}, 0, s{s_tmp}", f"s_lshl_b32 s{s_tmp}, s{s_tmp}, 7"]
    miscB[22] += [f"s_add_u32 s{s_dso}, s57, s{s_tmp}", f"s_mov_b32 s{s_P}, s{s_Pn}", f"s_add_u32 s{s_n}, s{s_n}, 1", f"s_cmp_lt_u32 s{s_n}, 9"]
    if PEEL:
        slots0 = [sl_ for sl_ in range(1, 19) if sl_ not in (7, 15)]
        capv = 24
        ok = False
        while not ok:
            ok, fill0, dsw0 = gelu_sched(slots0, 24, {sl_: capv for sl_ in slots0}, maxT=4, GS=4, gapP=2, gapT=3)
            capv += 4
        endw0 = [x for sl_ in dsw0 for x in sl_]
        misc0 = [list(miscB[s_]) for s_ in range(24)]
        def endx0(s_):
            if s_ == 19:
                for x in endw0:
                    a(x); lq.issue("hw5")
        for e in range(6):
            bar = e in (0, 2, 4, 5)
            nb = (e + 1) in (0, 2, 4, 5) or e == 5
            tags = [f"r{e+1}", f"r{e+2}"] if e < 4 else [f"r{e+1}"]
            fl = None
            if e < 5:
                fl = lq.need(*[f"h{x}" for x in range(4*e, 4*e+4)])
            if e == 0:
                emit_epoch(g, e, 24, vqB, lq, tags, 1024, V_Y, fill0, misc0, [f"r{e+6}"], bar=False, nextbar=nb, force_lgkm=fl, end_extra=endx0)
            elif e == 5:
                a(f"s_waitcnt vmcnt({vqB.need('r6')}) lgkmcnt(0)")
                a("s_barrier")
                for s_ in range(20, 24):
                    a(f"ds_read_b128 {vr(V_Y+4*s_,4)}, v{V_M+2} offset:{s_*1024}")
                    lq.issue(f"h{s_}")
                emit_epoch(g, e, 24, vqB, lq, tags, 1024, V_Y, fill0, misc0, [f"r{e+6}"], bar=False, nextbar=True, force_lgkm=0, end_extra=endx0)
            else:
                if not bar:
                    emit_epoch(g, e, 24, vqB, lq, tags, 1024, V_Y, fill0, misc0, [f"r{e+6}"], bar=False, nextbar=nb, force_lgkm=fl, end_extra=endx0)
                else:
                    emit_epoch(g, e, 24, vqB, lq, tags, 1024, V_Y, fill0, misc0, [f"r{e+6}"], bar=True, nextbar=nb, force_lgkm=fl, end_extra=endx0)
    a(".p2align 3")
    a("L_B:")
    if "early" in g.flags:
        def esig():
            a(f"s_cmp_eq_u32 s{s_n}, 7")
            a("s_cbranch_scc1 L_B_esig")
            a("L_B_esigret:")
        miscB[8].append(esig)
    vq = Q(); lq = Q()
    for e in range(6):
        for k in range(4):
            s = 4*e + k
            if k == 0: vq.issue(f"r{e}")
            for ins in miscB[s]:
                if isinstance(ins, str) and ins.startswith("buffer_store"): vq.issue("st")
    for s in range(4): lq.issue(f"g{s}"); lq.issue(f"g{s}")
    for e in range(6):
        if "prof" in g.flags: a(f"s_memtime s[{80+2*e}:{81+2*e}]")
        bar = e in BARB
        nb = (e + 1) in BARB or e == 5
        emit_epoch(g, e, 24, vq, lq, [f"r{e+1}", f"r{e+2}"], 1024, V_Y, fillB, miscB, [f"r{e+6}"], bar=bar, nextbar=nb)
    if "prof" in g.flags: a(f"s_memtime s[92:93]")
    a(f"s_cbranch_scc1 L_B")
    if "early" in g.flags:
        a("s_branch L_B_fin")
        a("L_B_esig:")
        a(f"s_cmp_eq_u32 s{s_w}, 0")
        a("s_cbranch_scc0 L_B_esigret")
        a("L_B_esig_n:")
        a("s_cmp_lg_u32 s90, 0")
        a("s_cbranch_scc1 L_B_esig_go")
        a(f"v_mov_b32 v{V_M+3}, {63*4}")
        a(f"buffer_load_dword v{V_M+4}, v{V_M+3}, {sr(SG,4)}, 0 offen sc1")
        a("s_waitcnt vmcnt(0)")
        a(f"v_readfirstlane_b32 s90, v{V_M+4}")
        a("s_nop 3")
        a("s_branch L_B_esig_n")
        a("L_B_esig_go:")
        a(f"s_lshl_b32 s{s_tmp}, s{s_t}, 7")
        a(f"s_add_u32 s{s_tmp}, s{s_tmp}, {WS_FLAGE_CONST}")
        a(f"s_lshl_b32 s{s_tmp2}, s{s_js}, 2")
        a(f"v_mov_b32 v{V_M+3}, s{s_tmp2}")
        a(f"v_mov_b32 v{V_M+4}, s90")
        a("s_mov_b64 exec, 1")
        a(f"buffer_store_dword v{V_M+4}, v{V_M+3}, {sr(SW,4)}, s{s_tmp} offen sc0 sc1")
        a("s_mov_b64 exec, -1")
        a("s_branch L_B_esigret")
        a("L_B_fin:")
    g.stamp()
    a("s_nop 15")
    for ins in epi_list(): a(ins)
    a(st0); a(st1)
    a("s_waitcnt vmcnt(0) lgkmcnt(0)")
    g.stamp()
    if g.stamps:
        a("s_waitcnt lgkmcnt(0)")
        a(f"s_lshl_b32 s{s_tmp}, s2, 3")
        a(f"s_add_u32 s{s_tmp}, s{s_tmp}, s{s_w}")
        a(f"s_lshl_b32 s{s_tmp}, s{s_tmp}, 6")
        a(f"s_add_u32 s{s_tmp}, s{s_tmp}, {WS_STAMP}")
        a("s_mov_b64 exec, 1")
        a(f"v_mov_b32 v{V_M+1}, 0")
        lst = [S_ST+2*i for i in range(g.nst)]
        if "prof" in g.flags: lst = [80, 82, 84, 86, 88, 90, 92]
        if "profA" in g.flags: lst = [80, 82, 84, 86, 88, 90, 92, 94, 96, 98]
        if "profS" in g.flags: lst = [60, 80, 82, 84, 86, 62, 66]
        if "prof0" in g.flags: lst = [60, 80, 82, 84, 86, 88, 90, 92, 94, 96, 98]
        if g.flagval("fine", -1) >= 0: lst = [80, 82, 84, 86, 88, 90, 92, 94]
        for i in range(len(lst)):
            a(f"v_mov_b32 v{V_M}, s{lst[i]}")
            a(f"buffer_store_dword v{V_M}, v{V_M+1}, {sr(SW,4)}, s{s_tmp} offen offset:{4*i}")
        a("s_waitcnt vmcnt(0)")
```
